```python
import torch

def _softmax(x, axis=-1):
    return torch.softmax(x, dim=axis)
def _gelu(x):
    return torch.nn.functional.gelu(x, approximate="tanh")
def _silu(x):
    return torch.nn.functional.silu(x)
def _sigmoid(x):
    return torch.sigmoid(x)
def _layernorm(x, axis=-1, eps=1e-5):
    m = x.mean(dim=axis, keepdim=True)
    v = x.var(dim=axis, keepdim=True, unbiased=False)
    return (x - m) / torch.sqrt(v + eps)
def _scatter_add(tgt, idx, src, axis=0):
    return tgt.clone().index_add_(axis, idx, src)
def _segment_sum(src, seg, n):
    out = torch.zeros((n,) + src.shape[1:], dtype=src.dtype)
    return out.index_add_(0, seg, src)
def _pad(x, pw):
    flat = tuple(v for pair in reversed(pw) for v in pair)
    return torch.nn.functional.pad(x, flat)

kernel_name = 'interleave_layers__gqa_block_cached__dense_activation_silu__decode'

def setup_inputs():

    _w = (lambda a: (lambda t: t.to(torch.bfloat16) if t.is_floating_point() else t)(torch.as_tensor(a)))
    def _A_setup():
        B, Sq, D = 2, 1, 640
        Hq, Hkv, Sk, Dh = 32, 32, 8192, 128
        assert Hq % Hkv == 0, (Hq, Hkv)
        return {
            "x": _w((lambda *s: torch.randn(*s, dtype=torch.bfloat16) * 0.1)(B, Sq, D)),
            "k_cache": _w((lambda *s: torch.randn(*s, dtype=torch.bfloat16) * 1.6)(B, Hkv, Sk, Dh)),
            "v_cache": _w((lambda *s: torch.randn(*s, dtype=torch.bfloat16) * 3.2)(B, Hkv, Sk, Dh)),
            "wq": _w((lambda *s: torch.randn(*s, dtype=torch.bfloat16) * 1.6)(D, Hq * Dh) * (D ** -0.5)),
            "wo": _w((lambda *s: torch.randn(*s, dtype=torch.bfloat16) * 3.2)(Hq * Dh, D) * ((Hq * Dh) ** -0.5)),
        }
    _A_in = _A_setup()

    def _B_setup():
        B, S, D, F = 2, 1, 640, 1728
        return {
            "x": _w((lambda *s: torch.randn(*s, dtype=torch.bfloat16) * 0.1)(B, S, D)),
            "w1": _w((lambda *s: torch.randn(*s, dtype=torch.bfloat16) * 3.2)(D, F) * (D ** -0.5)),
            "w2": _w((lambda *s: torch.randn(*s, dtype=torch.bfloat16) * 0.8)(F, D) * (F ** -0.5)),
        }
    _B_in = _B_setup()

    return {
        "A_x": _A_in["x"],
        "A_k_cache": _A_in["k_cache"],
        "A_v_cache": _A_in["v_cache"],
        "A_wq": _A_in["wq"],
        "A_wo": _A_in["wo"],
        "B_x": _B_in["x"],
        "B_w1": _B_in["w1"],
        "B_w2": _B_in["w2"],
    }

def reference(A_x, A_k_cache, A_v_cache, A_wq, A_wo, B_x, B_w1, B_w2):
    def _A_ref(x, k_cache, v_cache, wq, wo):
        B, Sq, D = x.shape
        Hq, Dh = 32, 128
        Hkv = k_cache.shape[1]
        rep = Hq // Hkv
        q = (lambda x, *d: x.permute(*d))((x @ wq).reshape(B, Sq, Hq, Dh), 0, 2, 1, 3)
        k = (lambda x, n, axis: torch.repeat_interleave(x, n, dim=axis))(k_cache, rep, axis=1)
        v = (lambda x, n, axis: torch.repeat_interleave(x, n, dim=axis))(v_cache, rep, axis=1)
        scores = torch.einsum("bhqd,bhkd->bhqk", q, k) * (Dh ** -0.5)
        p = _softmax(scores, axis=-1)
        o = torch.einsum("bhqk,bhkd->bhqd", p, v)
        return (lambda x, *d: x.permute(*d))(o, 0, 2, 1, 3).reshape(B, Sq, Hq * Dh) @ wo

    def _B_ref(x, w1, w2):
        h = torch.einsum("bsd,df->bsf", x, w1)
        h = _silu(h)
        out = torch.einsum("bsf,fd->bsd", h, w2)
        return out

    x = A_x
    x = x + _A_ref(_layernorm(x, axis=-1), A_k_cache, A_v_cache, A_wq, A_wo)
    x = x + _B_ref(_layernorm(x, axis=-1), B_w1, B_w2)
    x = x + _A_ref(_layernorm(x, axis=-1), A_k_cache, A_v_cache, A_wq, A_wo)
    x = x + _B_ref(_layernorm(x, axis=-1), B_w1, B_w2)
    return x
```

```python
KN = "interleave_layers__gqa_block_cached__dense_activation_silu__decode_kernel"

class G:
    def __init__(self):
        self.L = []
        self.nl = 0
        self.lg = []
    def e(self, s):
        self.L.append(s)
    def c(self, s):
        self.L.append("; " + s)
    def lab(self, name):
        self.L.append(name + ":")
    def newlab(self, p="L"):
        self.nl += 1
        return "%s_%d" % (p, self.nl)
    def nop(self, n):
        while n > 0:
            k = min(n, 16)
            self.e("s_nop %d" % (k - 1))
            n -= k
    def lds(self, s, tag=None):
        self.e(s)
        self.lg.append(tag)
    def lwait(self, tag):
        if tag not in self.lg:
            return
        idx = len(self.lg) - 1 - self.lg[::-1].index(tag)
        younger = len(self.lg) - 1 - idx
        assert younger <= 15, younger
        self.e("s_waitcnt lgkmcnt(%d)" % younger)
        self.lg = self.lg[idx + 1:]
    def lwait_all(self):
        self.e("s_waitcnt lgkmcnt(0)")
        self.lg = []
    def text(self):
        return "\n".join(self.L) + "\n"

def vr(a, n=1):
    return "v%d" % a if n == 1 else "v[%d:%d]" % (a, a + n - 1)
def ar(a, n=1):
    return "a%d" % a if n == 1 else "a[%d:%d]" % (a, a + n - 1)
def sr(a, n=1):
    return "s%d" % a if n == 1 else "s[%d:%d]" % (a, a + n - 1)

def interleave(main, side, ratio):
    out = []
    si = 0
    for i, m in enumerate(main):
        out.append(m)
        if (i + 1) % ratio == 0 and si < len(side):
            out.append(side[si]); si += 1
    out.extend(side[si:])
    return out
```

```python
import sys
from gl import *

OPT = dict(ts=False, dbgq=False)
for a in sys.argv[2:]:
    k, _, v = a.partition("=")
    OPT[k] = (int(v) if v else True)

WS_OA = 0x0;      OA_ST = 0x20000
WS_ML = 0x80000;  ML_ST = 0x800
WS_PB = 0x82000;  PB_ST = 0x5000
WS_H  = 0x96000;  H_ST  = 0x1000
WS_X1 = 0x9A000;  X1_ST = 0x800
WS_X2 = 0x9C000;  X2_ST = 0x800
WS_Q  = 0x9E000;  Q_ST  = 0x2000
WS_TS = 0x100000
LQ = 0
LP = 65536
LM = 147456
COMB = LM;            COMB_ST = 0x840
PD   = LM + 0x1100
RED  = LM + 0x1C00
ST   = LM + 0x2000
CS   = LM + 0x2100
PD3  = LP + 57344
SPIN = 200000

R4_0, R4_N = 0, 64
R1_0, R1_N = 64, 80
R2_0, R2_N = 144, 27
R3_0, R3_N = 171, 40

sW = 3
sK, sV, sWT = 4, 8, 12
sWS, sDBG, sOUT, sX = 16, 18, 20, 22
sH, sS, sPH, sINV, sROLE, sJ = 24, 25, 26, 27, 28, 29
sOFF, sSPIN = 30, 31
sT = 32
sC, sONE = 48, 49
sEX = 50
sKS, sGRP = 52, 53
sM0B = 54
sBO = 55
sTQ = 56
sFIRST = 57
sCLK = 60
sTS = 64
vL, vKV, vM01, vM23, vQ = 0, 1, 2, 3, 4
vRW, vRP, vRR, vRA, vPW, vFL, vRB, vRC = 8, 9, 10, 11, 12, 13, 14, 15
vS = 16
vKT = 32
vD = 48
vE = 56
vT = 58
vACC = 32
vA = 40
vK0 = 64

g = G()
e = g.e

def ts(i):
    if not OPT["ts"]:
        return
    e("s_memrealtime s[%d:%d]" % (sCLK, sCLK + 1))
    e("s_waitcnt lgkmcnt(0)")
    e("s_mov_b32 s%d, s%d" % (sTS + i, sCLK))

def ts_dyn(base):
    if not OPT["ts"]:
        return
    e("s_memrealtime s[%d:%d]" % (sCLK, sCLK + 1))
    e("s_waitcnt lgkmcnt(0)")
    for p in range(8):
        e("s_cmp_eq_u32 s%d, %d" % (sPH, p))
        e("s_cselect_b32 s%d, s%d, s%d" % (sTS + base + p, sCLK, sTS + base + p))

def sentinel_check(regs, fail_label, tmp):
    r = list(regs)
    cur = None
    if len(r) == 1:
        cur = r[0]
    else:
        e("v_max_u32 v%d, v%d, v%d" % (tmp, r[0], r[1])); r = r[2:]
        while len(r) >= 2:
            e("v_max3_u32 v%d, v%d, v%d, v%d" % (tmp, tmp, r[0], r[1])); r = r[2:]
        if r:
            e("v_max_u32 v%d, v%d, v%d" % (tmp, tmp, r[0]))
        cur = tmp
    e("v_cmp_eq_u32 vcc, -1, v%d" % cur)
    e("s_nop 1")
    e("s_cmp_lg_u64 vcc, 0")
    e("s_cbranch_scc1 %s" % fail_label)

def poll(issue, regs, tmp):
    top = g.newlab("L_poll"); again = g.newlab("L_again"); done = g.newlab("L_pdone")
    e("s_mov_b32 s%d, 0" % sSPIN)
    g.lab(top)
    issue()
    e("s_waitcnt vmcnt(0)")
    sentinel_check(regs, again, tmp)
    e("s_branch %s" % done)
    g.lab(again)
    e("s_add_u32 s%d, s%d, 1" % (sSPIN, sSPIN))
    e("s_cmp_lt_u32 s%d, %d" % (sSPIN, SPIN))
    e("s_cbranch_scc1 %s" % top)
    g.lab(done)

def counter_spin():
    top = g.newlab("L_cnt"); done = g.newlab("L_cdone")
    e("s_mov_b32 s%d, 0" % sSPIN)
    e("v_mov_b32 v%d, 0" % vT)
    g.lab(top)
    e("global_load_dword v%d, v%d, s[%d:%d] sc1" % (vT + 1, vT, sDBG, sDBG + 1))
    e("s_waitcnt vmcnt(0)")
    e("v_readfirstlane_b32 s%d, v%d" % (sT, vT + 1))
    e("s_add_u32 s%d, s%d, 1" % (sSPIN, sSPIN))
    e("s_cmp_ge_u32 s%d, %d" % (sSPIN, SPIN))
    e("s_cbranch_scc1 %s" % done)
    e("s_cmp_lt_u32 s%d, 256" % sT)
    e("s_cbranch_scc1 %s" % top)
    g.lab(done)

e("; @launch grid=(256,1,1) block=(256,1,1) lds=163840")
e('.amdgcn_target "amdgcn-amd-amdhsa--gfx950"')
e(".text")
e(".globl %s" % KN)
e(".p2align 8")
e(".type %s,@function" % KN)
g.lab(KN)
e("s_cmp_ge_u32 s2, 256")
e("s_cbranch_scc1 L_end")
e("s_load_dwordx4 s[32:35], s[0:1], 0")
e("s_load_dwordx4 s[36:39], s[0:1], 16")
e("s_load_dwordx2 s[40:41], s[0:1], 32")
e("s_load_dwordx4 s[44:47], s[0:1], 48")
e("s_load_dwordx4 s[56:59], s[0:1], 64")
e("s_load_dwordx2 s[%d:%d], s[0:1], 80" % (sWS, sWS + 1))
e("v_lshrrev_b32 v1, 6, v0")
e("v_and_b32 v0, 63, v0")
e("v_readfirstlane_b32 s%d, v1" % sW)
e("s_and_b32 s%d, s2, 31" % sH)
e("s_lshr_b32 s%d, s2, 5" % sS)
if OPT["ts"]:
    for i in range(32):
        e("s_mov_b32 s%d, 0" % (sTS + i))
e("s_mov_b32 s%d, 0x3e0293ee" % sC)
import struct, math
cval = struct.unpack("<I", struct.pack("<f", (128 ** -0.5) * math.log2(math.e)))[0]
g.L[-1] = "s_mov_b32 s%d, 0x%08x" % (sC, cval)
e("s_mov_b32 s%d, 0x3f803f80" % sONE)
e("v_lshlrev_b32 v%d, 4, v0" % vKV)
e("s_lshl_b32 s%d, s%d, 10" % (sM0B, sW))
e("v_add_u32 v%d, s%d, v%d" % (vKV, sM0B, vKV))
e("s_lshl_b32 s%d, s%d, 14" % (sM0B, sW))
e("v_and_b32 v%d, 3, v0" % vT)
e("v_mov_b32 v%d, 0" % vM01); e("v_mov_b32 v%d, 0" % vM23)
e("v_mov_b32 v%d, 0xffff" % (vT + 1)); e("v_mov_b32 v%d, 0xffff0000" % (vT + 2))
for val, dst, src in ((0, vM01, vT + 1), (1, vM01, vT + 2), (2, vM23, vT + 1), (3, vM23, vT + 2)):
    e("v_cmp_eq_u32 vcc, %d, v%d" % (val, vT))
    e("s_nop 1")
    e("v_cndmask_b32 v%d, v%d, v%d, vcc" % (dst, dst, src))
e("s_waitcnt lgkmcnt(0)")
ts(0)
e("s_mov_b64 s[%d:%d], s[32:33]" % (sX, sX + 1))
e("s_mov_b64 s[%d:%d], s[56:57]" % (sOUT, sOUT + 1))
e("s_mov_b64 s[%d:%d], s[58:59]" % (sDBG, sDBG + 1))
e("s_lshl_b32 s42, s%d, 21" % sH)
e("s_lshl_b32 s43, s%d, 18" % sS)
e("s_add_u32 s42, s42, s43")
e("s_add_u32 s%d, s34, s42" % sK); e("s_addc_u32 s%d, s35, 0" % (sK + 1))
e("s_mov_b32 s%d, 0x4040000" % (sK + 2)); e("s_mov_b32 s%d, 0x20000" % (sK + 3))
e("s_add_u32 s%d, s36, s42" % sV); e("s_addc_u32 s%d, s37, 0" % (sV + 1))
e("s_mov_b32 s%d, 0x4040000" % (sV + 2)); e("s_mov_b32 s%d, 0x20000" % (sV + 3))
e("s_cmp_lg_u32 s%d, 0" % sW)
e("s_cbranch_scc1 L_noclear")
e("s_mul_i32 s42, s2, 3072")
e("v_lshlrev_b32 v%d, 4, v0" % vT)
e("v_add_u32 v%d, s42, v%d" % (vT, vT))
for i in range(4):
    e("v_mov_b32 v%d, -1" % (vKT + i))
for i in range(3):
    e("global_store_dwordx4 v%d, v[%d:%d], s[%d:%d] offset:%d sc1" % (vT, vKT, vKT + 3, sWS, sWS + 1, i * 1024))
g.lab("L_noclear")

e("s_mov_b32 s%d, 0" % sROLE); e("s_mov_b32 s%d, 0" % sJ)
e("s_mov_b32 s%d, 0" % sKS); e("s_mov_b32 s%d, 0" % sGRP)
e("s_mov_b64 s[%d:%d], s[38:39]" % (sWT, sWT + 1))
e("s_mov_b32 s%d, %d" % (sWT + 2, 640 * 8192)); e("s_mov_b32 s%d, 0x20000" % (sWT + 3))
def in_range(lo, n, skip):
    e("s_sub_u32 s42, s2, %d" % lo)
    e("s_cmp_lt_u32 s42, %d" % n)
    e("s_cbranch_scc0 %s" % skip)

def gemv64_consts(NL, rowb):
    KW = 8 * NL
    e("s_mul_i32 s42, s%d, %d" % (sW, NL * 1024))
    e("s_add_u32 s42, s42, %d" % LP)
    e("v_lshlrev_b32 v%d, 4, v0" % vRW)
    e("v_add_u32 v%d, s42, v%d" % (vRW, vRW))
    e("v_lshrrev_b32 v%d, 3, v0" % vT)
    e("v_mul_u32_u24 v%d, %d, v%d" % (vRP, NL * 4, vT))
    e("s_mul_i32 s42, s%d, %d" % (sW, KW * 4))
    e("s_add_u32 s42, s42, %d" % PD)
    e("v_add_u32 v%d, s42, v%d" % (vRP, vRP))
    e("v_and_b32 v%d, 7, v0" % vRR)
    e("v_lshlrev_b32 v%d, 3, v%d" % (vRR, vRR))
    e("v_lshrrev_b32 v%d, 5, v0" % (vT + 1))
    e("v_lshl_add_u32 v%d, v%d, 2, v%d" % (vRR, vT + 1, vRR))
    e("v_bfe_u32 v%d, v0, 4, 1" % (vT + 1))
    e("v_add_u32 v%d, v%d, v%d" % (vRR, vRR, vT + 1))
    e("v_bfe_u32 v%d, v0, 3, 1" % (vT + 1))
    e("v_lshl_add_u32 v%d, v%d, 1, v%d" % (vRR, vT + 1, vRR))
    e("s_lshl_b32 s42, s%d, 8" % sW)
    e("s_add_u32 s42, s42, %d" % RED)
    e("v_lshlrev_b32 v%d, 2, v%d" % (vRR, vRR))
    e("v_add_u32 v%d, s42, v%d" % (vRR, vRR))

def gemv64_wload(NL, rowb, k0_expr_sreg, cb_sreg):
    KW = 8 * NL
    e("v_lshrrev_b32 v%d, 3, v0" % vT)
    e("v_mul_u32_u24 v%d, %d, v%d" % (vT, NL * rowb, vT)) if NL * rowb < (1 << 24) else None
    e("v_and_b32 v%d, 7, v0" % (vT + 1))
    e("v_lshl_add_u32 v%d, v%d, 4, v%d" % (vT, vT + 1, vT))
    e("s_mul_i32 s42, s%d, %d" % (sW, KW))
    if k0_expr_sreg is not None:
        e("s_add_u32 s42, s42, s%d" % k0_expr_sreg)
    e("s_mul_i32 s42, s42, %d" % rowb)
    e("s_add_u32 s42, s42, s%d" % cb_sreg)
    e("s_mul_i32 s43, s%d, %d" % (sW, NL * 1024))
    e("s_add_u32 s43, s43, %d" % LP)
    for i in range(NL):
        e("s_mov_b32 m0, s43")
        e("s_add_u32 s43, s43, 1024")
        e("buffer_load_dwordx4 v%d, s[%d:%d], s42 offen nt lds" % (vT, sWT, sWT + 3))
        e("s_add_u32 s42, s42, %d" % rowb)

def x160_consts():
    e("v_min_u32 v%d, 39, v0" % vT)
    e("v_lshlrev_b32 v%d, 2, v%d" % (vT, vT))
    e("s_mul_i32 s42, s%d, 160" % sW)
    e("v_add_u32 v%d, s42, v%d" % (vT, vT))
    e("v_lshlrev_b32 v%d, 1, v%d" % (vRB, vT))
    e("v_lshlrev_b32 v%d, 2, v%d" % (vRA, vT))
    e("v_add_u32 v%d, %d, v%d" % (vPW, PD, vRA))
    e("v_mov_b32 v%d, 0" % vFL)
    e("v_cmp_gt_u32 vcc, 40, v0")
    e("s_nop 1")
    e("v_cndmask_b32 v%d, v%d, 1.0, vcc" % (vFL, vFL))

in_range(R4_0, R4_N, "L_nr4")
e("s_mov_b32 s%d, 4" % sROLE); e("s_mov_b32 s%d, s42" % sJ)
e("s_mov_b64 s[%d:%d], s[38:39]" % (sWT, sWT + 1)); e("s_mov_b32 s%d, %d" % (sWT + 2, 640 * 8192))
e("s_lshl_b32 s%d, s%d, 7" % (sGRP, sJ))
gemv64_wload(20, 8192, None, sGRP)
gemv64_consts(20, 8192); x160_consts()
e("s_branch L_roledone")
g.lab("L_nr4")
in_range(R1_0, R1_N, "L_nr1")
e("s_mov_b32 s%d, 1" % sROLE); e("s_mov_b32 s%d, s42" % sJ)
e("s_mov_b64 s[%d:%d], s[40:41]" % (sWT, sWT + 1)); e("s_mov_b32 s%d, %d" % (sWT + 2, 4096 * 1280))
e("s_and_b32 s%d, s%d, 7" % (sKS, sJ))
e("s_lshr_b32 s%d, s%d, 3" % (sGRP, sJ))
e("s_lshl_b32 s44, s%d, 9" % sKS)
e("s_lshl_b32 s45, s%d, 7" % sGRP)
gemv64_wload(16, 1280, 44, 45)
gemv64_consts(16, 1280)
e("s_lshl_b32 s42, s%d, 2" % sKS); e("s_add_u32 s42, s42, s%d" % sW)
e("v_lshrrev_b32 v%d, 5, v0" % vT)
e("v_and_b32 v%d, 31, v0" % (vT + 1))
e("v_lshlrev_b32 v%d, 4, v%d" % (vT + 1, vT + 1))
e("v_lshl_add_u32 v%d, v%d, 9, v%d" % (vRA, vT, vT + 1))
e("s_lshl_b32 s43, s42, 12"); e("v_add_u32 v%d, s43, v%d" % (vRA, vRA))
e("v_lshlrev_b32 v%d, 5, v%d" % (vRB, vT))
e("s_lshl_b32 s43, s42, 6"); e("v_add_u32 v%d, s43, v%d" % (vRB, vRB))
e("v_lshl_add_u32 v%d, v%d, 2, v%d" % (vPW, vT, vT + 1))
e("s_lshl_b32 s43, s%d, 9" % sW); e("s_add_u32 s43, s43, %d" % PD)
e("v_add_u32 v%d, s43, v%d" % (vPW, vPW))
e("s_branch L_roledone")
g.lab("L_nr1")
in_range(R2_0, R2_N, "L_nr2")
e("s_mov_b32 s%d, 2" % sROLE); e("s_mov_b32 s%d, s42" % sJ)
e("s_mov_b64 s[%d:%d], s[44:45]" % (sWT, sWT + 1)); e("s_mov_b32 s%d, %d" % (sWT + 2, 640 * 3456))
e("s_lshl_b32 s%d, s%d, 7" % (sGRP, sJ))
gemv64_wload(20, 3456, None, sGRP)
gemv64_consts(20, 3456); x160_consts()
e("s_branch L_roledone")
g.lab("L_nr2")
in_range(R3_0, R3_N, "L_roledone")
e("s_mov_b32 s%d, 3" % sROLE); e("s_mov_b32 s%d, s42" % sJ)
e("s_mov_b64 s[%d:%d], s[46:47]" % (sWT, sWT + 1)); e("s_mov_b32 s%d, %d" % (sWT + 2, 1728 * 1280))
e("v_bfe_u32 v%d, v0, 1, 4" % vT)
e("v_mul_u32_u24 v%d, %d, v%d" % (vT, 4 * 1280, vT))
e("v_lshrrev_b32 v%d, 5, v0" % (vT + 1))
e("v_mul_u32_u24 v%d, 1280, v%d" % (vT + 1, vT + 1))
e("v_add_u32 v%d, v%d, v%d" % (vT, vT, vT + 1))
e("v_and_b32 v%d, 1, v0" % (vT + 1))
e("v_lshl_add_u32 v%d, v%d, 4, v%d" % (vT, vT + 1, vT))
e("s_mul_i32 s42, s%d, %d" % (sW, 432 * 1280))
e("s_lshl_b32 s43, s%d, 5" % sJ)
e("s_add_u32 s42, s42, s43")
e("s_mul_i32 s43, s%d, 14336" % sW); e("s_add_u32 s43, s43, %d" % LP)
for ld in range(14):
    i0 = 2 * ld
    rowoff = (64 * (i0 // 4) + (i0 % 4)) * 1280
    e("s_mov_b32 m0, s43")
    e("s_add_u32 s44, s42, %d" % rowoff)
    e("buffer_load_dwordx4 v%d, s[%d:%d], s44 offen nt lds" % (vT, sWT, sWT + 3))
    e("s_add_u32 s43, s43, 1024")
e("s_mul_i32 s42, s%d, 14336" % sW); e("s_add_u32 s42, s42, %d" % LP)
e("v_lshlrev_b32 v%d, 3, v0" % vRW); e("v_add_u32 v%d, s42, v%d" % (vRW, vRW))
e("s_mul_i32 s42, s%d, 1792" % sW); e("s_add_u32 s42, s42, %d" % PD3)
e("v_lshrrev_b32 v%d, 2, v0" % vT); e("v_lshlrev_b32 v%d, 4, v%d" % (vRP, vT)); e("v_add_u32 v%d, s42, v%d" % (vRP, vRP))
e("v_min_u32 v%d, 53, v0" % vT)
e("v_lshlrev_b32 v%d, 5, v%d" % (vPW, vT)); e("v_add_u32 v%d, s42, v%d" % (vPW, vPW))
e("v_lshlrev_b32 v%d, 4, v%d" % (vRA, vT))
e("s_mul_i32 s43, s%d, 864" % sW); e("v_add_u32 v%d, s43, v%d" % (vRA, vRA))
e("v_and_b32 v%d, 3, v0" % vT); e("v_lshlrev_b32 v%d, 2, v%d" % (vT, vT))
e("v_lshrrev_b32 v%d, 4, v0" % (vT + 1)); e("v_add_u32 v%d, v%d, v%d" % (vT, vT, vT + 1))
e("v_lshlrev_b32 v%d, 2, v%d" % (vRR, vT))
e("s_lshl_b32 s43, s%d, 6" % sW); e("s_add_u32 s43, s43, %d" % RED); e("v_add_u32 v%d, s43, v%d" % (vRR, vRR))
e("v_and_b32 v%d, 14, v0" % vT); e("v_lshlrev_b32 v%d, 1, v%d" % (vRB, vT))
e("s_lshl_b32 s43, s%d, 5" % sJ); e("v_add_u32 v%d, s43, v%d" % (vRB, vRB))
e("v_lshlrev_b32 v%d, 2, v0" % vT); e("v_add_u32 v%d, s42, v%d" % (vT, vT))
e("v_mov_b32 v%d, 0" % (vT + 1))
e("s_mov_b64 exec, 0xffff")
e("ds_write_b32 v%d, v%d offset:1728" % (vT, vT + 1))
e("s_mov_b64 exec, -1")
g.lab("L_roledone")


vP, vGA, vGAA, vGW = 16, 36, 44, 48

def signal_cleared():
    lab = g.newlab("L_nosig")
    e("s_cmp_lg_u32 s%d, 0" % sW)
    e("s_cbranch_scc1 %s" % lab)
    e("v_mov_b32 v%d, 0" % vT); e("v_mov_b32 v%d, 1" % (vT + 1))
    e("s_mov_b64 exec, 1")
    e("global_atomic_add v%d, v%d, s[%d:%d] sc1" % (vT, vT + 1, sDBG, sDBG + 1))
    e("s_mov_b64 exec, -1")
    g.lab(lab)

def reduce8_to_col(acc, out):
    g.nop(5)
    for i in range(4):
        e("v_permlane32_swap_b32 v%d, v%d" % (acc + i, acc + 4 + i))
    for i in range(4):
        e("v_add_f32 v%d, v%d, v%d" % (acc + i, acc + i, acc + 4 + i))
    g.nop(1)
    e("v_permlane16_swap_b32 v%d, v%d" % (acc, acc + 1))
    e("v_permlane16_swap_b32 v%d, v%d" % (acc + 2, acc + 3))
    e("v_add_f32 v%d, v%d, v%d" % (acc, acc, acc + 1))
    e("v_add_f32 v%d, v%d, v%d" % (acc + 2, acc + 2, acc + 3))
    g.nop(2)
    e("v_add_f32_dpp v%d, v%d, v%d row_ror:8 row_mask:0xf bank_mask:0x3" % (out, acc, acc))
    e("v_add_f32_dpp v%d, v%d, v%d row_ror:8 row_mask:0xf bank_mask:0xc" % (out, acc + 2, acc + 2))

def gemv64(NL, ones=False):
    g.lg = []
    for i in range(min(4, NL)):
        g.lds("ds_read_b128 v[%d:%d], v%d offset:%d" % (vGW + 4 * i, vGW + 4 * i + 3, vRW, i * 1024), "W%d" % i)
    if not ones:
        for j in range(NL // 4):
            g.lds("ds_read_b128 v[%d:%d], v%d offset:%d" % (vP + 4 * j, vP + 4 * j + 3, vRP, j * 16), "P%d" % j)
    for i in range(8):
        e("v_mov_b32 v%d, 0" % (vGA + i))
    def ands(i):
        b = vGAA + 2 * (i % 2)
        if ones:
            if i < 2:
                e("v_and_b32 v%d, s%d, v%d" % (b, sONE, vM01)); e("v_and_b32 v%d, s%d, v%d" % (b + 1, sONE, vM23))
        else:
            if i % 4 == 0:
                g.lwait("P%d" % (i // 4))
            e("v_and_b32 v%d, v%d, v%d" % (b, vP + i, vM01)); e("v_and_b32 v%d, v%d, v%d" % (b + 1, vP + i, vM23))
    ands(0)
    for i in range(NL):
        if i + 1 < NL:
            ands(i + 1)
        if ones and i >= 1:
            pass
        g.lwait("W%d" % i)
        if i == 0 or ones:
            g.nop(2)
        b = vGAA + 2 * (i % 2); wb = vGW + 4 * (i % 4)
        e("v_mfma_f32_4x4x4_16b_bf16 v[%d:%d], v[%d:%d], v[%d:%d], v[%d:%d]" % (vGA, vGA + 3, b, b + 1, wb, wb + 1, vGA, vGA + 3))
        e("v_mfma_f32_4x4x4_16b_bf16 v[%d:%d], v[%d:%d], v[%d:%d], v[%d:%d]" % (vGA + 4, vGA + 7, b, b + 1, wb + 2, wb + 3, vGA + 4, vGA + 7))
        if i + 4 < NL:
            g.lds("ds_read_b128 v[%d:%d], v%d offset:%d" % (wb, wb + 3, vRW, (i + 4) * 1024), "W%d" % (i + 4))
    reduce8_to_col(vGA, vGAA)
    e("ds_write_b32 v%d, v%d" % (vRR, vGAA))
    g.lg = []

def wave_sum2(a, b, t):
    for ctl in ("quad_perm:[1,0,3,2]", "quad_perm:[2,3,0,1]", "row_half_mirror", "row_mirror"):
        g.nop(1)
        e("v_add_f32_dpp v%d, v%d, v%d %s row_mask:0xf bank_mask:0xf" % (a, a, a, ctl))
        e("v_add_f32_dpp v%d, v%d, v%d %s row_mask:0xf bank_mask:0xf" % (b, b, b, ctl))
    g.nop(2)
    e("v_permlane32_swap_b32 v%d, v%d" % (a, b))
    e("v_add_f32 v%d, v%d, v%d" % (a, a, b))
    e("v_mov_b32 v%d, v%d" % (t, a))
    g.nop(2)
    e("v_permlane16_swap_b32 v%d, v%d" % (a, t))
    e("v_add_f32 v%d, v%d, v%d" % (a, a, t))

def x_to_p_and_stats(x0):
    for i in range(4):
        e("v_cvt_pk_bf16_f32 v%d, v%d, v%d" % (vGW + i, x0 + i, x0 + i))
    e("ds_write_b128 v%d, v[%d:%d]" % (vPW, vGW, vGW + 3))
    e("v_add_f32 v%d, v%d, v%d" % (vT, x0, x0 + 1))
    e("v_add_f32 v%d, v%d, v%d" % (vT + 1, x0 + 2, x0 + 3))
    e("v_mul_f32 v%d, v%d, v%d" % (vT + 2, x0, x0))
    e("v_add_f32 v%d, v%d, v%d" % (vT, vT, vT + 1))
    for i in (1, 2, 3):
        e("v_fmac_f32 v%d, v%d, v%d" % (vT + 2, x0 + i, x0 + i))
    e("v_mul_f32 v%d, v%d, v%d" % (vT, vT, vFL))
    e("v_mul_f32 v%d, v%d, v%d" % (vT + 2, vT + 2, vFL))
    wave_sum2(vT, vT + 2, vT + 1)
    e("v_lshrrev_b32 v%d, 5, v0" % (vT + 1))
    e("v_lshlrev_b32 v%d, 2, v%d" % (vT + 1, vT + 1))
    e("s_lshl_b32 s%d, s%d, 3" % (sT, sW)); e("s_add_u32 s%d, s%d, %d" % (sT, sT, ST))
    e("v_add_u32 v%d, s%d, v%d" % (vT + 1, sT, vT + 1))
    e("s_mov_b32 exec_lo, 1"); e("s_mov_b32 exec_hi, 1")
    e("ds_write_b32 v%d, v%d" % (vT + 1, vT))
    e("s_mov_b64 exec, -1")
    e("s_waitcnt lgkmcnt(0)")

def final_col_sum(y, with_ln):
    e("v_lshlrev_b32 v%d, 2, v0" % vT)
    e("v_add_u32 v%d, %d, v%d" % (vT + 1, RED, vT))
    e("ds_read2_b32 v[%d:%d], v%d offset0:0 offset1:64" % (16, 17, vT + 1))
    e("ds_read2_b32 v[%d:%d], v%d offset0:128 offset1:192" % (18, 19, vT + 1))
    if with_ln:
        e("v_mov_b32 v%d, %d" % (vT + 2, ST))
        e("ds_read_b128 v[20:23], v%d" % (vT + 2))
        e("ds_read_b128 v[24:27], v%d offset:16" % (vT + 2))
        e("v_add_u32 v%d, %d, v%d" % (vT + 1, CS, vT))
        e("ds_read_b32 v28, v%d" % (vT + 1))
    e("s_waitcnt lgkmcnt(0)")
    e("v_add_f32 v16, v16, v17"); e("v_add_f32 v18, v18, v19"); e("v_add_f32 v%d, v16, v18" % y)
    if with_ln:
        e("v_add_f32 v20, v20, v22"); e("v_add_f32 v24, v24, v26"); e("v_add_f32 v20, v20, v24")
        e("v_add_f32 v21, v21, v23"); e("v_add_f32 v25, v25, v27"); e("v_add_f32 v21, v21, v25")
        e("v_mul_f32 v20, 0x3acccccd, v20")
        e("v_mul_f32 v21, 0x3acccccd, v21")
        e("v_fma_f32 v21, -v20, v20, v21")
        e("v_add_f32 v21, 0x3727c5ac, v21")
        e("v_rsq_f32 v21, v21")
        e("v_fma_f32 v%d, -v20, v28, v%d" % (y, y))
        e("v_mul_f32 v%d, v%d, v21" % (y, y))

def round_bf16(r, t=None):
    e("v_cvt_pk_bf16_f32 v%d, v%d, v%d" % (r, r, r))
    e("v_and_b32 v%d, 0xffff0000, v%d" % (r, r))

def pack_pair_even(y, out):
    g.nop(2)
    e("v_mov_b32_dpp v%d, v%d quad_perm:[1,0,3,2] row_mask:0xf bank_mask:0xf" % (out, y))
    e("v_cvt_pk_bf16_f32 v%d, v%d, v%d" % (out, y, out))

def colsum(NL):
    gemv64(NL, ones=True)
    e("s_waitcnt lgkmcnt(0)")
    e("s_barrier")
    lab = g.newlab("L_cs")
    e("s_cmp_lg_u32 s%d, 0" % sW)
    e("s_cbranch_scc1 %s" % lab)
    final_col_sum(30, False)
    e("v_add_u32 v%d, %d, v%d" % (vT + 1, CS, vT))
    e("ds_write_b32 v%d, v30" % (vT + 1))
    e("s_waitcnt lgkmcnt(0)")
    g.lab(lab)
    e("s_barrier")

def s4_block():
    g.lab("L_s4")
    odd = g.newlab("L_s4odd"); got = g.newlab("L_s4got")
    e("s_and_b32 s%d, s%d, 1" % (sT, sTQ))
    e("s_cmp_eq_u32 s%d, 1" % sT)
    e("s_cbranch_scc1 %s" % odd)
    e("s_lshr_b32 s%d, s%d, 1" % (sT, sTQ)); e("s_mul_i32 s%d, s%d, 1280" % (sT, sT))
    e("v_add_u32 v%d, s%d, v%d" % (50, sT, vRB))
    e("global_load_dwordx2 v[48:49], v50, s[%d:%d]" % (sX, sX + 1))
    e("s_waitcnt vmcnt(0)")
    e("s_branch %s" % got)
    g.lab(odd)
    e("s_sub_u32 s%d, s%d, 1" % (sT, sTQ)); e("s_mul_i32 s%d, s%d, %d" % (sT, sT, X2_ST)); e("s_add_u32 s%d, s%d, %d" % (sT, sT, WS_X2))
    e("v_add_u32 v%d, s%d, v%d" % (50, sT, vRB))
    poll(lambda: e("global_load_dwordx2 v[48:49], v50, s[%d:%d] sc1" % (sWS, sWS + 1)), [48, 49], vT)
    g.lab(got)
    e("v_lshlrev_b32 v16, 16, v48"); e("v_and_b32 v17, 0xffff0000, v48")
    e("v_lshlrev_b32 v18, 16, v49"); e("v_and_b32 v19, 0xffff0000, v49")
    x_to_p_and_stats(16)
    gemv64(20)
    e("s_waitcnt lgkmcnt(0)")
    e("s_barrier")
    lab = g.newlab("L_s4w")
    e("s_cmp_lg_u32 s%d, 0" % sW)
    e("s_cbranch_scc1 %s" % lab)
    final_col_sum(30, True)
    pack_pair_even(30, 31)
    e("s_mul_i32 s%d, s%d, %d" % (sT, sTQ, Q_ST)); e("s_add_u32 s%d, s%d, %d" % (sT, sT, WS_Q))
    e("s_lshl_b32 s%d, s%d, 7" % (sT + 1, sJ)); e("s_add_u32 s%d, s%d, s%d" % (sT, sT, sT + 1))
    e("v_lshlrev_b32 v%d, 1, v0" % vT); e("v_add_u32 v%d, s%d, v%d" % (vT, sT, vT))
    e("s_mov_b32 exec_lo, 0x55555555"); e("s_mov_b32 exec_hi, 0x55555555")
    e("global_store_dword v%d, v31, s[%d:%d] sc1" % (vT, sWS, sWS + 1))
    e("s_mov_b64 exec, -1")
    g.lab(lab)
    e("s_barrier")
    e("s_cmp_eq_u32 s%d, 0" % sFIRST)
    e("s_cbranch_scc1 L_disp")
    e("s_cmp_eq_u32 s%d, 0" % sTQ)
    e("s_cbranch_scc0 L_lka")
    e("s_mov_b32 s%d, 2" % sTQ)
    e("s_branch L_s4")

def kload(t, wait=None):
    if wait is not None:
        e("s_waitcnt vmcnt(%d)" % wait)
    if t < 48:
        e("buffer_load_dwordx4 v[%d:%d], v%d, s[%d:%d], s%d offen nt" % (vK0 + 4 * t, vK0 + 4 * t + 3, vKV, sK, sK + 3, sOFF))
        e("s_add_u32 s%d, s%d, 4096" % (sOFF, sOFF))
    else:
        e("s_add_u32 m0, s%d, %d" % (sM0B, LQ + (t - 48) * 1024))
        e("s_nop 0")
        e("buffer_load_dwordx4 v%d, s[%d:%d], s%d offen nt lds" % (vKV, sK, sK + 3, sOFF))
        e("s_add_u32 s%d, s%d, 4096" % (sOFF, sOFF))

def vload(t, wait=58):
    e("s_waitcnt vmcnt(%d)" % wait)
    e("buffer_load_dwordx4 a[%d:%d], v%d, s[%d:%d], s%d offen nt" % (4 * t, 4 * t + 3, vKV, sV, sV + 3, sOFF))
    e("s_add_u32 s%d, s%d, 4096" % (sOFF, sOFF))

def lka():
    g.lab("L_lka")
    e("s_mov_b32 s%d, s%d" % (sOFF, sBO))
    for t in range(56):
        if t == 8:
            lab = g.newlab("L_sig")
            e("s_cmp_eq_u32 s%d, 0" % sFIRST); e("s_cbranch_scc1 %s" % lab)
            e("s_cmp_eq_u32 s%d, 4" % sROLE); e("s_cbranch_scc1 %s" % lab)
            e("s_waitcnt vmcnt(8)")
            signal_cleared()
            g.lab(lab)
        kload(t, 58 if t >= 36 else None)
    e("s_cmp_eq_u32 s%d, 0" % sFIRST)
    e("s_cbranch_scc1 L_softmax")

def lkbv():
    g.lab("L_lkbv")
    e("s_add_u32 s%d, s%d, %d" % (sOFF, sBO, 56 * 4096))
    for t in range(56, 64):
        kload(t, 58)
    e("v_mov_b32 v%d, 0" % vT)
    e("global_load_dword v%d, v%d, s[%d:%d] sc1" % (vT + 1, vT, sDBG, sDBG + 1))
    e("s_mov_b32 s%d, s%d" % (sOFF, sBO))
    for t in range(32):
        vload(t)
    e("s_waitcnt vmcnt(32)")
    e("v_readfirstlane_b32 s%d, v%d" % (sT, vT + 1))
    ok = g.newlab("L_cok")
    e("s_cmp_ge_u32 s%d, 256" % sT)
    e("s_cbranch_scc1 %s" % ok)
    counter_spin()
    g.lab(ok)
    e("s_cmp_eq_u32 s%d, 0" % sFIRST)
    e("s_cselect_b32 s%d, 2, 0" % sINV)
    e("s_cselect_b32 s%d, 3, 0" % sPH)
    qaddr(vT + 2)
    e("global_load_dwordx4 v[%d:%d], v%d, s[%d:%d] sc1" % (vQ, vQ + 3, vT + 2, sWS, sWS + 1))
    for t in range(32, 64):
        vload(t)
    e("s_waitcnt vmcnt(32)")
    bad = g.newlab("L_qbad"); good = g.newlab("L_qgood")
    sentinel_check([vQ, vQ + 1, vQ + 2, vQ + 3], bad, vT)
    e("s_branch %s" % good)
    g.lab(bad)
    poll(lambda: e("global_load_dwordx4 v[%d:%d], v%d, s[%d:%d] sc1" % (vQ, vQ + 3, vT + 2, sWS, sWS + 1)), [vQ, vQ + 1, vQ + 2, vQ + 3], vT)
    g.lab(good)
    noinit = g.newlab("L_noinit")
    e("s_cmp_eq_u32 s%d, 0" % sFIRST); e("s_cbranch_scc1 %s" % noinit)
    e("s_mov_b32 s%d, 0" % sFIRST)
    e("s_cmp_eq_u32 s%d, 2" % sROLE); e("s_cbranch_scc0 %s" % noinit)
    colsum(20)
    g.lab(noinit)
    e("s_mov_b32 s%d, 0" % sFIRST)
    e("s_branch L_qk")

def qaddr(dst):
    e("s_mul_i32 s%d, s%d, %d" % (sT, sINV, Q_ST)); e("s_add_u32 s%d, s%d, %d" % (sT, sT, WS_Q))
    e("s_lshl_b32 s%d, s%d, 8" % (sT + 1, sH)); e("s_add_u32 s%d, s%d, s%d" % (sT, sT, sT + 1))
    e("v_and_b32 v%d, 15, v0" % dst); e("v_lshlrev_b32 v%d, 4, v%d" % (dst, dst))
    e("v_add_u32 v%d, s%d, v%d" % (dst, sT, dst))

def att_core():
    g.lab("L_att")
    qaddr(vT + 2)
    poll(lambda: e("global_load_dwordx4 v[%d:%d], v%d, s[%d:%d] sc1" % (vQ, vQ + 3, vT + 2, sWS, sWS + 1)), [vQ, vQ + 1, vQ + 2, vQ + 3], vT)
    g.lab("L_qk")
    ts_dyn(8)
    e("v_lshlrev_b32 v%d, 4, v0" % (vT + 3)); e("v_add_u32 v%d, s%d, v%d" % (vT + 3, sM0B, vT + 3))
    order = []
    for j in range(4):
        order += [3 * j, 3 * j + 1, 3 * j + 2, 12 + j]
    def ldsread(j):
        return ["ds_read_b128 v[%d:%d], v%d offset:%d" % (vKT + 4 * u, vKT + 4 * u + 3, vT + 3, LQ + (4 * j + u) * 1024) for u in range(4)]
    def dots(T, par):
        out = []
        for jj in range(4):
            for u in range(4):
                src = (vK0 + 4 * (4 * T + u) + jj) if T < 12 else (vKT + 4 * u + jj)
                d = vD + 4 * par + u
                if jj == 0:
                    out.append("v_dot2_f32_bf16 v%d, v%d, v%d, 0" % (d, src, vQ + jj))
                else:
                    out.append("v_dot2c_f32_bf16 v%d, v%d, v%d" % (d, src, vQ + jj))
        return out
    def red(T, par):
        d = vD + 4 * par; s = vS + T
        return [
            "v_add_f32_dpp v%d, v%d, v%d row_ror:8 row_mask:0xf bank_mask:0x3" % (vE, d, d),
            "v_add_f32_dpp v%d, v%d, v%d row_ror:8 row_mask:0xf bank_mask:0x3" % (vE + 1, d + 1, d + 1),
            "v_add_f32_dpp v%d, v%d, v%d row_ror:8 row_mask:0xf bank_mask:0xc" % (vE, d + 2, d + 2),
            "v_add_f32_dpp v%d, v%d, v%d row_ror:8 row_mask:0xf bank_mask:0xc" % (vE + 1, d + 3, d + 3),
            "v_add_f32_dpp v%d, v%d, v%d row_shl:4 row_mask:0xf bank_mask:0x5" % (s, vE, vE),
            "v_add_f32_dpp v%d, v%d, v%d row_shr:4 row_mask:0xf bank_mask:0xa" % (s, vE + 1, vE + 1),
            "v_add_f32_dpp v%d, v%d, v%d quad_perm:[1,0,3,2] row_mask:0xf bank_mask:0xf" % (s, s, s),
            "v_add_f32_dpp v%d, v%d, v%d quad_perm:[2,3,0,1] row_mask:0xf bank_mask:0xf" % (s, s, s),
        ]
    for x in ldsread(0): e(x)
    prev = None
    for n, T in enumerate(order):
        par = n % 2
        if T >= 12:
            e("s_waitcnt lgkmcnt(0)")
        main = dots(T, par)
        side = red(*prev) if prev is not None else []
        for x in interleave(main, side, 2): e(x)
        if T >= 12 and T < 15:
            for x in ldsread(T - 12 + 1): e(x)
        prev = (T, par)
    r = red(*prev)
    g.nop(3)
    for i, x in enumerate(r):
        e(x)
        if i >= 3: g.nop(2)
        elif i == 1: g.nop(1)
    e("s_cmp_eq_u32 s%d, 1" % sINV)
    nl = g.newlab("L_nolk")
    e("s_cbranch_scc0 %s" % nl)
    e("s_mov_b32 s%d, 0x4000000" % sBO)
    e("s_branch L_lka")
    g.lab(nl)
    g.lab("L_softmax")
    m = vT; t1 = vT + 1
    e("v_max3_f32 v%d, v%d, v%d, v%d" % (m, vS, vS + 1, vS + 2))
    for i in range(3, 15, 2):
        e("v_max3_f32 v%d, v%d, v%d, v%d" % (m, m, vS + i, vS + i + 1))
    e("v_max_f32 v%d, v%d, v%d" % (m, m, vS + 15))
    g.nop(2)
    e("v_max_f32_dpp v%d, v%d, v%d row_ror:4 row_mask:0xf bank_mask:0xf" % (m, m, m)); g.nop(2)
    e("v_max_f32_dpp v%d, v%d, v%d row_ror:8 row_mask:0xf bank_mask:0xf" % (m, m, m))
    e("v_mov_b32 v%d, v%d" % (t1, m)); g.nop(2)
    e("v_permlane16_swap_b32 v%d, v%d" % (m, t1)); e("v_max_f32 v%d, v%d, v%d" % (m, m, t1))
    e("v_mov_b32 v%d, v%d" % (t1, m)); g.nop(2)
    e("v_permlane32_swap_b32 v%d, v%d" % (m, t1)); e("v_max_f32 v%d, v%d, v%d" % (m, m, t1))
    e("v_mul_f32 v%d, s%d, v%d" % (m, sC, m))
    for i in range(16):
        e("v_fma_f32 v%d, v%d, s%d, -v%d" % (vS + i, vS + i, sC, m))
    for i in range(16):
        e("v_exp_f32 v%d, v%d" % (vS + i, vS + i))
    l = vT + 2
    e("v_add_f32 v%d, v%d, v%d" % (l, vS, vS + 1))
    for i in range(2, 16):
        e("v_add_f32 v%d, v%d, v%d" % (l, l, vS + i))
    for i in range(16):
        e("v_cvt_pk_bf16_f32 v%d, v%d, v%d" % (vS + i, vS + i, vS + i))
    e("v_add_f32_dpp v%d, v%d, v%d row_ror:4 row_mask:0xf bank_mask:0xf" % (l, l, l)); g.nop(2)
    e("v_add_f32_dpp v%d, v%d, v%d row_ror:8 row_mask:0xf bank_mask:0xf" % (l, l, l))
    e("v_mov_b32 v%d, v%d" % (t1, l)); g.nop(2)
    e("v_permlane16_swap_b32 v%d, v%d" % (l, t1)); e("v_add_f32 v%d, v%d, v%d" % (l, l, t1))
    e("v_mov_b32 v%d, v%d" % (t1, l)); g.nop(2)
    e("v_permlane32_swap_b32 v%d, v%d" % (l, t1)); e("v_add_f32 v%d, v%d, v%d" % (l, l, t1))
    for i in range(8):
        e("v_mov_b32 v%d, 0" % (vACC + i))
    def ands(t):
        b = vA + 2 * (t % 3); T, u = t // 4, t % 4
        e("v_and_b32_dpp v%d, v%d, v%d row_newbcast:%d row_mask:0xf bank_mask:0xf" % (b, vS + T, vM01, 4 * u))
        e("v_and_b32_dpp v%d, v%d, v%d row_newbcast:%d row_mask:0xf bank_mask:0xf" % (b + 1, vS + T, vM23, 4 * u))
    e("s_cmp_eq_u32 s%d, 1" % sINV)
    ands(0)
    for t in range(64):
        if t + 1 < 64:
            ands(t + 1)
        else:
            g.nop(2)
        if t % 4 == 0 and t >= 32:
            lab = g.newlab("L_nw")
            e("s_cbranch_scc1 %s" % lab)
            e("s_waitcnt vmcnt(%d)" % (60 - t))
            g.lab(lab)
        b = vA + 2 * (t % 3)
        e("v_mfma_f32_4x4x4_16b_bf16 v[%d:%d], v[%d:%d], a[%d:%d], v[%d:%d]" % (vACC, vACC + 3, b, b + 1, 4 * t, 4 * t + 1, vACC, vACC + 3))
        e("v_mfma_f32_4x4x4_16b_bf16 v[%d:%d], v[%d:%d], a[%d:%d], v[%d:%d]" % (vACC + 4, vACC + 7, b, b + 1, 4 * t + 2, 4 * t + 3, vACC + 4, vACC + 7))
    g.nop(5)
    for i in range(4):
        e("v_permlane32_swap_b32 v%d, v%d" % (vACC + i, vACC + 4 + i))
    for i in range(4):
        e("v_add_f32 v%d, v%d, v%d" % (vACC + i, vACC + i, vACC + 4 + i))
    g.nop(1)
    e("v_permlane16_swap_b32 v%d, v%d" % (vACC, vACC + 1))
    e("v_permlane16_swap_b32 v%d, v%d" % (vACC + 2, vACC + 3))
    e("v_add_f32 v%d, v%d, v%d" % (vACC, vACC, vACC + 1))
    e("v_add_f32 v%d, v%d, v%d" % (vACC + 2, vACC + 2, vACC + 3))
    e("s_and_b32 s%d, s%d, 1" % (sT, sINV)); e("s_mul_i32 s%d, s%d, %d" % (sT, sT, COMB_ST)); e("s_add_u32 s%d, s%d, %d" % (sT, sT, COMB))
    e("s_lshl_b32 s%d, s%d, 9" % (sT + 1, sW)); e("s_add_u32 s%d, s%d, s%d" % (sT + 1, sT + 1, sT))
    e("v_and_b32 v%d, 15, v0" % t1); e("v_lshlrev_b32 v%d, 5, v%d" % (t1, t1))
    e("v_lshrrev_b32 v%d, 5, v0" % (vT + 3)); e("v_lshl_add_u32 v%d, v%d, 4, v%d" % (t1, vT + 3, t1))
    e("v_bfe_u32 v%d, v0, 4, 1" % (vT + 3)); e("v_lshl_add_u32 v%d, v%d, 2, v%d" % (t1, vT + 3, t1))
    e("v_add_u32 v%d, s%d, v%d" % (t1, sT + 1, t1))
    e("ds_write2_b32 v%d, v%d, v%d offset0:0 offset1:2" % (t1, vACC, vACC + 2))
    e("s_lshl_b32 s%d, s%d, 3" % (sT + 1, sW)); e("s_add_u32 s%d, s%d, s%d" % (sT + 1, sT + 1, sT))
    e("v_mov_b32 v%d, s%d" % (t1, sT + 1))
    e("v_mov_b32 v%d, v%d" % (vT + 4, m)); e("v_mov_b32 v%d, v%d" % (vT + 5, l))
    e("s_mov_b64 exec, 1")
    e("ds_write_b64 v%d, v[%d:%d] offset:2048" % (t1, vT + 4, vT + 5))
    e("s_mov_b64 exec, -1")
    e("s_waitcnt lgkmcnt(0)")
    e("s_barrier")
    nw = g.newlab("L_npub")
    e("s_cmp_lg_u32 s%d, 0" % sW)
    e("s_cbranch_scc1 %s" % nw)
    e("v_lshlrev_b32 v%d, 3, v0" % t1); e("v_add_u32 v%d, s%d, v%d" % (t1, sT, t1))
    for w in range(4):
        e("ds_read_b64 v[%d:%d], v%d offset:%d" % (16 + 2 * w, 17 + 2 * w, t1, w * 512))
    e("v_mov_b32 v%d, s%d" % (vT + 3, sT))
    e("ds_read_b128 v[24:27], v%d offset:2048" % (vT + 3))
    e("ds_read_b128 v[28:31], v%d offset:2064" % (vT + 3))
    e("s_waitcnt lgkmcnt(0)")
    e("v_max_f32 v32, v24, v26"); e("v_max3_f32 v32, v32, v28, v30")
    for w, r in enumerate((24, 26, 28, 30)):
        e("v_sub_f32 v%d, v%d, v32" % (r, r))
    for r in (24, 26, 28, 30):
        e("v_exp_f32 v%d, v%d" % (r, r))
    e("s_nop 0")
    e("v_mul_f32 v34, v16, v24"); e("v_mul_f32 v35, v17, v24"); e("v_mul_f32 v33, v25, v24")
    for w, r in ((1, 26), (2, 28), (3, 30)):
        e("v_fmac_f32 v34, v%d, v%d" % (16 + 2 * w, r)); e("v_fmac_f32 v35, v%d, v%d" % (17 + 2 * w, r)); e("v_fmac_f32 v33, v%d, v%d" % (r + 1, r))
    e("s_mul_i32 s%d, s%d, %d" % (sT, sINV, OA_ST))
    e("s_lshl_b32 s%d, s%d, 12" % (sT + 1, sH)); e("s_add_u32 s%d, s%d, s%d" % (sT, sT, sT + 1))
    e("s_lshl_b32 s%d, s%d, 9" % (sT + 1, sS)); e("s_add_u32 s%d, s%d, s%d" % (sT, sT, sT + 1))
    e("v_lshlrev_b32 v%d, 3, v0" % t1); e("v_add_u32 v%d, s%d, v%d" % (t1, sT, t1))
    e("global_store_dwordx2 v%d, v[34:35], s[%d:%d] sc1" % (t1, sWS, sWS + 1))
    e("s_mul_i32 s%d, s%d, %d" % (sT, sINV, ML_ST)); e("s_add_u32 s%d, s%d, %d" % (sT, sT, WS_ML))
    e("s_lshl_b32 s%d, s%d, 6" % (sT + 1, sH)); e("s_add_u32 s%d, s%d, s%d" % (sT, sT, sT + 1))
    e("s_and_b32 s%d, s%d, 1" % (sT + 1, sS)); e("s_lshl_b32 s%d, s%d, 5" % (sT + 1, sT + 1)); e("s_add_u32 s%d, s%d, s%d" % (sT, sT, sT + 1))
    e("s_lshr_b32 s%d, s%d, 1" % (sT + 1, sS)); e("s_lshl_b32 s%d, s%d, 3" % (sT + 1, sT + 1)); e("s_add_u32 s%d, s%d, s%d" % (sT, sT, sT + 1))
    e("v_mov_b32 v%d, s%d" % (t1, sT))
    e("s_mov_b64 exec, 1")
    e("global_store_dwordx2 v%d, v[32:33], s[%d:%d] sc1" % (t1, sWS, sWS + 1))
    e("s_mov_b64 exec, -1")
    g.lab(nw)
    ts_dyn(16)
    e("s_cmp_eq_u32 s%d, 1" % sINV)
    e("s_cbranch_scc1 L_lkbv")
    e("s_branch L_disp")

def s1_block():
    g.lab("L_s1")
    e("s_mul_i32 s%d, s%d, %d" % (sT, sINV, OA_ST)); e("v_add_u32 v50, s%d, v%d" % (sT, vRA))
    e("s_mul_i32 s%d, s%d, %d" % (sT, sINV, ML_ST)); e("s_add_u32 s%d, s%d, %d" % (sT, sT, WS_ML)); e("v_add_u32 v51, s%d, v%d" % (sT, vRB))
    def issue():
        for i in range(4):
            e("global_load_dwordx4 v[%d:%d], v50, s[%d:%d] offset:%d sc1" % (16 + 4 * i, 19 + 4 * i, sWS, sWS + 1, i * 1024))
        e("global_load_dwordx4 v[32:35], v51, s[%d:%d] sc1" % (sWS, sWS + 1))
        e("global_load_dwordx4 v[36:39], v51, s[%d:%d] offset:16 sc1" % (sWS, sWS + 1))
    poll(issue, list(range(16, 40)), vT)
    e("v_max_f32 v40, v32, v34"); e("v_max3_f32 v40, v40, v36, v38")
    e("v_mov_b32 v41, v40"); g.nop(2)
    e("v_permlane32_swap_b32 v40, v41"); e("v_max_f32 v40, v40, v41")
    for r in (32, 34, 36, 38): e("v_sub_f32 v%d, v%d, v40" % (r, r))
    for r in (32, 34, 36, 38): e("v_exp_f32 v%d, v%d" % (r, r))
    e("s_nop 0")
    e("v_mul_f32 v42, v33, v32")
    for r in (34, 36, 38): e("v_fmac_f32 v42, v%d, v%d" % (r + 1, r))
    for d in range(4): e("v_mul_f32 v%d, v%d, v32" % (44 + d, 16 + d))
    for i, r in ((1, 34), (2, 36), (3, 38)):
        for d in range(4): e("v_fmac_f32 v%d, v%d, v%d" % (44 + d, 16 + 4 * i + d, r))
    e("v_mov_b32 v43, v42"); g.nop(2)
    e("v_permlane32_swap_b32 v42, v43")
    e("v_permlane32_swap_b32 v44, v45")
    e("v_permlane32_swap_b32 v46, v47")
    e("v_add_f32 v42, v42, v43"); e("v_add_f32 v44, v44, v45"); e("v_add_f32 v46, v46, v47")
    e("v_rcp_f32 v42, v42"); e("s_nop 0")
    e("v_mul_f32 v44, v44, v42"); e("v_mul_f32 v46, v46, v42")
    e("v_cvt_pk_bf16_f32 v44, v44, v44"); e("v_cvt_pk_bf16_f32 v46, v46, v46")
    e("ds_write2_b32 v%d, v44, v46 offset0:0 offset1:2" % vPW)
    e("s_waitcnt lgkmcnt(0)")
    gemv64(16)
    e("s_waitcnt lgkmcnt(0)")
    e("s_barrier")
    lab = g.newlab("L_s1w")
    e("s_cmp_lg_u32 s%d, 0" % sW); e("s_cbranch_scc1 %s" % lab)
    final_col_sum(30, False)
    e("s_mul_i32 s%d, s%d, %d" % (sT, sINV, PB_ST)); e("s_add_u32 s%d, s%d, %d" % (sT, sT, WS_PB))
    e("s_mul_i32 s%d, s%d, 2560" % (sT + 1, sKS)); e("s_add_u32 s%d, s%d, s%d" % (sT, sT, sT + 1))
    e("s_lshl_b32 s%d, s%d, 8" % (sT + 1, sGRP)); e("s_add_u32 s%d, s%d, s%d" % (sT, sT, sT + 1))
    e("v_add_u32 v%d, s%d, v%d" % (vT, sT, vT))
    e("global_store_dword v%d, v30, s[%d:%d] sc1" % (vT, sWS, sWS + 1))
    g.lab(lab)
    e("s_barrier")
    e("s_branch L_disp")

def s2_block():
    g.lab("L_s2")
    e("s_mul_i32 s%d, s%d, %d" % (sT, sINV, PB_ST)); e("s_add_u32 s%d, s%d, %d" % (sT, sT, WS_PB))
    e("v_add_u32 v52, s%d, v%d" % (sT, vRA))
    for k in range(1, 4): e("v_add_u32 v%d, %d, v52" % (52 + k, 5120 * k))
    odd = g.newlab("L_s2odd"); got = g.newlab("L_s2got")
    e("s_and_b32 s%d, s%d, 1" % (sT, sINV)); e("s_cmp_eq_u32 s%d, 1" % sT); e("s_cbranch_scc1 %s" % odd)
    e("s_lshr_b32 s%d, s%d, 1" % (sT, sINV)); e("s_mul_i32 s%d, s%d, 1280" % (sT, sT))
    e("v_add_u32 v50, s%d, v%d" % (sT, vRB))
    e("global_load_dwordx2 v[48:49], v50, s[%d:%d]" % (sX, sX + 1))
    e("s_branch %s" % got)
    g.lab(odd)
    e("s_sub_u32 s%d, s%d, 1" % (sT, sINV)); e("s_mul_i32 s%d, s%d, %d" % (sT, sT, X2_ST)); e("s_add_u32 s%d, s%d, %d" % (sT, sT, WS_X2))
    e("v_add_u32 v50, s%d, v%d" % (sT, vRB))
    poll(lambda: e("global_load_dwordx2 v[48:49], v50, s[%d:%d] sc1" % (sWS, sWS + 1)), [48, 49], vT)
    g.lab(got)
    def issue():
        for ks in range(8):
            e("global_load_dwordx4 v[%d:%d], v%d, s[%d:%d] offset:%d sc1" % (16 + 4 * ks, 19 + 4 * ks, 52 + ks // 2, sWS, sWS + 1, (ks % 2) * 2560))
    poll(issue, list(range(16, 48)), vT)
    for d in range(4):
        e("v_add_f32 v%d, v%d, v%d" % (16 + d, 16 + d, 20 + d)); e("v_add_f32 v%d, v%d, v%d" % (24 + d, 24 + d, 28 + d))
        e("v_add_f32 v%d, v%d, v%d" % (32 + d, 32 + d, 36 + d)); e("v_add_f32 v%d, v%d, v%d" % (40 + d, 40 + d, 44 + d))
    for d in range(4):
        e("v_add_f32 v%d, v%d, v%d" % (16 + d, 16 + d, 24 + d)); e("v_add_f32 v%d, v%d, v%d" % (32 + d, 32 + d, 40 + d))
    for d in range(4):
        e("v_add_f32 v%d, v%d, v%d" % (16 + d, 16 + d, 32 + d))
    for d in range(4): round_bf16(16 + d)
    e("v_lshlrev_b32 v20, 16, v48"); e("v_and_b32 v21, 0xffff0000, v48")
    e("v_lshlrev_b32 v22, 16, v49"); e("v_and_b32 v23, 0xffff0000, v49")
    for d in range(4): e("v_add_f32 v%d, v%d, v%d" % (16 + d, 16 + d, 20 + d))
    for d in range(4): round_bf16(16 + d)
    nx = g.newlab("L_s2nx")
    e("s_cmp_lg_u32 s%d, 0" % sJ); e("s_cbranch_scc1 %s" % nx)
    e("v_cvt_pk_bf16_f32 v20, v16, v17"); e("v_cvt_pk_bf16_f32 v21, v18, v19")
    e("s_mul_i32 s%d, s%d, %d" % (sT, sINV, X1_ST)); e("s_add_u32 s%d, s%d, %d" % (sT, sT, WS_X1))
    e("v_add_u32 v50, s%d, v%d" % (sT, vRB))
    e("global_store_dwordx2 v50, v[20:21], s[%d:%d] sc1" % (sWS, sWS + 1))
    g.lab(nx)
    x_to_p_and_stats(16)
    gemv64(20)
    e("s_waitcnt lgkmcnt(0)")
    e("s_barrier")
    lab = g.newlab("L_s2w")
    e("s_cmp_lg_u32 s%d, 0" % sW); e("s_cbranch_scc1 %s" % lab)
    final_col_sum(30, True)
    round_bf16(30)
    e("v_mul_f32 v31, 0xbfb8aa3b, v30")
    e("v_exp_f32 v31, v31"); e("s_nop 0")
    e("v_add_f32 v31, 1.0, v31")
    e("v_rcp_f32 v31, v31"); e("s_nop 0")
    e("v_mul_f32 v30, v30, v31")
    pack_pair_even(30, 31)
    e("s_mul_i32 s%d, s%d, %d" % (sT, sINV, H_ST)); e("s_add_u32 s%d, s%d, %d" % (sT, sT, WS_H))
    e("s_lshl_b32 s%d, s%d, 7" % (sT + 1, sJ)); e("s_add_u32 s%d, s%d, s%d" % (sT, sT, sT + 1))
    e("v_lshlrev_b32 v%d, 1, v0" % vT); e("v_add_u32 v%d, s%d, v%d" % (vT, sT, vT))
    e("s_mov_b32 exec_lo, 0x55555555"); e("s_mov_b32 exec_hi, 0x55555555")
    e("global_store_dword v%d, v31, s[%d:%d] sc1" % (vT, sWS, sWS + 1))
    e("s_mov_b64 exec, -1")
    g.lab(lab)
    e("s_barrier")
    e("s_branch L_disp")

def s3_block():
    g.lab("L_s3")
    e("s_mul_i32 s%d, s%d, %d" % (sT, sINV, H_ST)); e("s_add_u32 s%d, s%d, %d" % (sT, sT, WS_H))
    e("v_add_u32 v50, s%d, v%d" % (sT, vRA))
    e("s_mul_i32 s%d, s%d, %d" % (sT, sINV, X1_ST)); e("s_add_u32 s%d, s%d, %d" % (sT, sT, WS_X1))
    e("v_add_u32 v51, s%d, v%d" % (sT, vRB))
    def issue():
        e("global_load_dwordx4 v[16:19], v50, s[%d:%d] sc1" % (sWS, sWS + 1))
        e("global_load_dword v15, v51, s[%d:%d] sc1" % (sWS, sWS + 1))
    poll(issue, [16, 17, 18, 19, 15], vT)
    for i in range(4):
        e("v_and_b32 v%d, 0xffff, v%d" % (28, 16 + i))
        e("v_lshl_or_b32 v%d, v%d, 16, v%d" % (20 + 2 * i, 28, 28))
        e("v_lshrrev_b32 v%d, 16, v%d" % (28, 16 + i))
        e("v_lshl_or_b32 v%d, v%d, 16, v%d" % (21 + 2 * i, 28, 28))
    e("ds_write_b128 v%d, v[20:23]" % vPW)
    e("ds_write_b128 v%d, v[24:27] offset:16" % vPW)
    e("s_waitcnt lgkmcnt(0)")
    g.lg = []
    NI = 28; NB = 6
    for i in range(NB):
        g.lds("ds_read_b64 v[%d:%d], v%d offset:%d" % (52 + 2 * i, 53 + 2 * i, vRW, i * 512), "W%d" % i)
    for jj in range(7):
        g.lds("ds_read_b128 v[%d:%d], v%d offset:%d" % (16 + 4 * jj, 19 + 4 * jj, vRP, jj * 256), "P%d" % jj)
    for i in range(4): e("v_mov_b32 v%d, 0" % (44 + i))
    def ands(i):
        b = 48 + 2 * (i % 2)
        if i % 4 == 0: g.lwait("P%d" % (i // 4))
        e("v_and_b32 v%d, v%d, v%d" % (b, 16 + i, vM01)); e("v_and_b32 v%d, v%d, v%d" % (b + 1, 16 + i, vM23))
    ands(0)
    for i in range(NI):
        if i + 1 < NI: ands(i + 1)
        else: g.nop(2)
        g.lwait("W%d" % i)
        if i == 0: g.nop(2)
        b = 48 + 2 * (i % 2); wb = 52 + 2 * (i % NB)
        e("v_mfma_f32_4x4x4_16b_bf16 v[44:47], v[%d:%d], v[%d:%d], v[44:47]" % (b, b + 1, wb, wb + 1))
        if i + NB < NI:
            g.lds("ds_read_b64 v[%d:%d], v%d offset:%d" % (wb, wb + 1, vRW, (i + NB) * 512), "W%d" % (i + NB))
    g.lg = []
    g.nop(5)
    e("v_permlane32_swap_b32 v44, v46"); e("v_permlane32_swap_b32 v45, v47")
    e("v_add_f32 v44, v44, v46"); e("v_add_f32 v45, v45, v47")
    g.nop(2)
    e("v_permlane16_swap_b32 v44, v45"); e("v_add_f32 v44, v44, v45")
    g.nop(2)
    e("v_add_f32_dpp v44, v44, v44 row_ror:8 row_mask:0xf bank_mask:0xf"); g.nop(2)
    e("v_add_f32_dpp v44, v44, v44 row_ror:4 row_mask:0xf bank_mask:0xf")
    e("ds_write_b32 v%d, v44" % vRR)
    e("s_waitcnt lgkmcnt(0)")
    e("s_barrier")
    lab = g.newlab("L_s3w")
    e("s_cmp_lg_u32 s%d, 0" % sW); e("s_cbranch_scc1 %s" % lab)
    e("v_and_b32 v%d, 15, v0" % vT); e("v_lshlrev_b32 v%d, 2, v%d" % (vT, vT)); e("v_add_u32 v%d, %d, v%d" % (vT, RED, vT))
    e("ds_read2_b32 v[16:17], v%d offset0:0 offset1:16" % vT)
    e("ds_read2_b32 v[18:19], v%d offset0:32 offset1:48" % vT)
    e("s_waitcnt lgkmcnt(0)")
    e("v_add_f32 v16, v16, v17"); e("v_add_f32 v18, v18, v19"); e("v_add_f32 v30, v16, v18")
    round_bf16(30)
    e("v_lshlrev_b32 v16, 16, v15"); e("v_and_b32 v17, 0xffff0000, v15")
    e("v_and_b32 v18, 1, v0"); e("v_cmp_eq_u32 vcc, 1, v18"); e("s_nop 1")
    e("v_cndmask_b32 v16, v16, v17, vcc")
    e("v_add_f32 v30, v30, v16")
    pack_pair_even(30, 31)
    odd = g.newlab("L_s3odd"); fin = g.newlab("L_s3fin")
    e("s_mov_b32 exec_lo, 0x5555"); e("s_mov_b32 exec_hi, 0")
    e("s_and_b32 s%d, s%d, 1" % (sT, sINV)); e("s_cmp_eq_u32 s%d, 1" % sT); e("s_cbranch_scc1 %s" % odd)
    e("s_mul_i32 s%d, s%d, %d" % (sT, sINV, X2_ST)); e("s_add_u32 s%d, s%d, %d" % (sT, sT, WS_X2))
    e("v_add_u32 v%d, s%d, v%d" % (vT, sT, vRB))
    e("global_store_dword v%d, v31, s[%d:%d] sc1" % (vT, sWS, sWS + 1))
    e("s_branch %s" % fin)
    g.lab(odd)
    e("s_lshr_b32 s%d, s%d, 1" % (sT, sINV)); e("s_mul_i32 s%d, s%d, 1280" % (sT, sT))
    e("v_add_u32 v%d, s%d, v%d" % (vT, sT, vRB))
    e("global_store_dword v%d, v31, s[%d:%d]" % (vT, sOUT, sOUT + 1))
    g.lab(fin)
    e("s_mov_b64 exec, -1")
    g.lab(lab)
    e("s_barrier")
    e("s_branch L_disp")

e("s_mov_b32 s%d, 1" % sFIRST)
e("s_mov_b32 s%d, 0" % sBO)
e("s_mov_b32 s%d, 0" % sPH); e("s_mov_b32 s%d, 0" % sINV); e("s_mov_b32 s%d, 0" % sTQ)
e("s_cmp_eq_u32 s%d, 4" % sROLE)
e("s_cbranch_scc0 L_lka")
e("s_waitcnt vmcnt(0)")
signal_cleared()
colsum(20)
counter_spin()
s4_block()
lka()
lkbv()
att_core()
s1_block(); s2_block(); s3_block()

g.lab("L_disp")
ts_dyn(24)
e("s_add_u32 s%d, s%d, 1" % (sPH, sPH))
e("s_cmp_ge_u32 s%d, 8" % sPH)
e("s_cbranch_scc1 L_fin")
e("s_lshl_b32 s%d, s%d, 2" % (sT, sPH))
e("s_lshr_b32 s%d, 0x33122100, s%d" % (sINV, sT))
e("s_and_b32 s%d, s%d, 15" % (sINV, sINV))
e("s_lshr_b32 s%d, 0x4d, s%d" % (sT, sPH))
e("s_bitcmp1_b32 s%d, 0" % sT)
e("s_cbranch_scc1 L_att")
e("s_cmp_eq_u32 s%d, 1" % sROLE); e("s_cbranch_scc1 L_s1")
e("s_cmp_eq_u32 s%d, 2" % sROLE); e("s_cbranch_scc1 L_s2")
e("s_cmp_eq_u32 s%d, 3" % sROLE); e("s_cbranch_scc1 L_s3")
e("s_cmp_eq_u32 s%d, 4" % sROLE); e("s_cbranch_scc0 L_disp")
e("s_bitcmp1_b32 s%d, 0" % sINV)
e("s_cbranch_scc1 L_disp")
e("s_add_u32 s%d, s%d, 1" % (sTQ, sINV))
e("s_branch L_s4")
g.lab("L_fin")
if OPT["ts"]:
    lab = g.newlab("L_nots")
    e("s_cmp_lg_u32 s%d, 0" % sW); e("s_cbranch_scc1 %s" % lab)
    e("s_lshl_b32 s%d, s2, 7" % sT); e("s_add_u32 s%d, s%d, %d" % (sT, sT, WS_TS))
    e("v_mov_b32 v%d, s%d" % (vT, sT))
    e("s_mov_b64 exec, 1")
    for i in range(32):
        e("v_mov_b32 v%d, s%d" % (vT + 1, sTS + i))
        e("global_store_dword v%d, v%d, s[%d:%d] offset:%d" % (vT, vT + 1, sWS, sWS + 1, 4 * i))
        e("s_nop 1")
    e("s_mov_b64 exec, -1")
    g.lab(lab)
g.lab("L_end")
e("s_endpgm")
e('.section .rodata,"a"')
e(".p2align 6")
e(".amdhsa_kernel %s" % KN)
e("  .amdhsa_next_free_vgpr 512")
e("  .amdhsa_next_free_sgpr 102")
e("  .amdhsa_accum_offset 256")
e("  .amdhsa_group_segment_fixed_size 0")
e("  .amdhsa_kernarg_size 88")
e("  .amdhsa_user_sgpr_count 2")
e("  .amdhsa_user_sgpr_kernarg_segment_ptr 1")
e("  .amdhsa_system_sgpr_workgroup_id_x 1")
e(".end_amdhsa_kernel")
open(sys.argv[1], "w").write(g.text())
```

```python
import sys
from gl import *

OPT = dict(ts=False, dbgq=False)
for a in sys.argv[2:]:
    k, _, v = a.partition("=")
    OPT[k] = (int(v) if v else True)

WS_OA = 0x0;      OA_ST = 0x20000
WS_ML = 0x80000;  ML_ST = 0x800
WS_PB = 0x82000;  PB_ST = 0x5000
WS_H  = 0x96000;  H_ST  = 0x1000
WS_X1 = 0x9A000;  X1_ST = 0x800
WS_X2 = 0x9C000;  X2_ST = 0x800
WS_Q  = 0xC0000;  Q_ST  = 0x2000
WS_TS = 0x100000
LQ = 0
LP = 65536
LM = 147456
COMB = LM;            COMB_ST = 0x840
PD   = LM + 0x1100
RED  = LM + 0x1C00
ST   = LM + 0x2000
CS   = LM + 0x2100
PD3  = LP + 57344
SPIN = int(OPT.get("spin", 200000))
KPRE = int(OPT.get("kpre", 16))

R4_0, R4_N = 0, 64
R1_0, R1_N = 64, 80
R2_0, R2_N = 144, 27
R3_0, R3_N = 171, 40

sW = 3
sK, sV, sWT = 4, 8, 12
sWS, sDBG, sOUT, sX = 16, 18, 20, 22
sH, sS, sPH, sINV, sROLE, sJ = 24, 25, 26, 27, 28, 29
sOFF, sSPIN = 30, 31
sT = 32
sC, sONE = 48, 49
sEX = 50
sKS, sGRP = 52, 53
sM0B = 54
sBO = 55
sTQ = 56
sFIRST = 57
sCLK = 60
sTS = 64
vL, vKV, vM01, vM23, vQ = 0, 1, 2, 3, 4
vRW, vRP, vRR, vRA, vPW, vFL, vRB, vRC = 8, 9, 10, 11, 12, 13, 14, 15
vS = 16
vKT = 32
vD = 48
vE = 56
vT = 58
vACC = 32
vA = 40
vK0 = 64

g = G()
e = g.e

def ts(i):
    if not OPT["ts"]:
        return
    e("s_memrealtime s[%d:%d]" % (sCLK, sCLK + 1))
    e("s_waitcnt lgkmcnt(0)")
    e("s_mov_b32 s%d, s%d" % (sTS + i, sCLK))

def ts_dyn(base):
    if not OPT["ts"]:
        return
    e("s_memrealtime s[%d:%d]" % (sCLK, sCLK + 1))
    e("s_waitcnt lgkmcnt(0)")
    for p in range(8):
        e("s_cmp_eq_u32 s%d, %d" % (sPH, p))
        e("s_cselect_b32 s%d, s%d, s%d" % (sTS + base + p, sCLK, sTS + base + p))

def ts_first(i):
    if not OPT["ts"]:
        return
    e("s_memrealtime s[%d:%d]" % (sCLK, sCLK + 1))
    e("s_waitcnt lgkmcnt(0)")
    e("s_cmp_eq_u32 s%d, 1" % sFIRST)
    e("s_cselect_b32 s%d, s%d, s%d" % (sTS + i, sCLK, sTS + i))

def sentinel_check(regs, fail_label, tmp):
    r = list(regs)
    cur = None
    if len(r) == 1:
        cur = r[0]
    else:
        e("v_max_u32 v%d, v%d, v%d" % (tmp, r[0], r[1])); r = r[2:]
        while len(r) >= 2:
            e("v_max3_u32 v%d, v%d, v%d, v%d" % (tmp, tmp, r[0], r[1])); r = r[2:]
        if r:
            e("v_max_u32 v%d, v%d, v%d" % (tmp, tmp, r[0]))
        cur = tmp
    e("v_cmp_eq_u32 vcc, -1, v%d" % cur)
    e("s_nop 1")
    e("s_cmp_lg_u64 vcc, 0")
    e("s_cbranch_scc1 %s" % fail_label)

def poll(issue, regs, tmp):
    top = g.newlab("L_poll"); again = g.newlab("L_again"); done = g.newlab("L_pdone")
    e("s_mov_b32 s%d, 0" % sSPIN)
    g.lab(top)
    issue()
    e("s_waitcnt vmcnt(0)")
    sentinel_check(regs, again, tmp)
    e("s_branch %s" % done)
    g.lab(again)
    e("s_add_u32 s%d, s%d, 1" % (sSPIN, sSPIN))
    e("s_cmp_lt_u32 s%d, %d" % (sSPIN, SPIN))
    e("s_cbranch_scc1 %s" % top)
    g.lab(done)

def counter_spin():
    top = g.newlab("L_cnt"); done = g.newlab("L_cdone")
    e("s_mov_b32 s%d, 0" % sSPIN)
    e("v_mov_b32 v%d, 0" % vT)
    g.lab(top)
    e("global_load_dword v%d, v%d, s[%d:%d] sc1" % (vT + 1, vT, sDBG, sDBG + 1))
    e("s_waitcnt vmcnt(0)")
    e("v_readfirstlane_b32 s%d, v%d" % (sT, vT + 1))
    e("s_add_u32 s%d, s%d, 1" % (sSPIN, sSPIN))
    e("s_cmp_ge_u32 s%d, %d" % (sSPIN, SPIN))
    e("s_cbranch_scc1 %s" % done)
    e("s_cmp_lt_u32 s%d, 256" % sT)
    e("s_cbranch_scc1 %s" % top)
    g.lab(done)

e("; @launch grid=(256,1,1) block=(256,1,1) lds=163840")
e('.amdgcn_target "amdgcn-amd-amdhsa--gfx950"')
e(".text")
e(".globl %s" % KN)
e(".p2align 8")
e(".type %s,@function" % KN)
g.lab(KN)
e("s_cmp_ge_u32 s2, 256")
e("s_cbranch_scc1 L_end")
e("s_load_dwordx4 s[32:35], s[0:1], 0")
e("s_load_dwordx4 s[36:39], s[0:1], 16")
e("s_load_dwordx2 s[40:41], s[0:1], 32")
e("s_load_dwordx4 s[44:47], s[0:1], 48")
e("s_load_dwordx4 s[56:59], s[0:1], 64")
e("s_load_dwordx2 s[%d:%d], s[0:1], 80" % (sWS, sWS + 1))
e("v_lshrrev_b32 v1, 6, v0")
e("v_and_b32 v0, 63, v0")
e("v_readfirstlane_b32 s%d, v1" % sW)
e("s_and_b32 s%d, s2, 31" % sH)
e("s_lshr_b32 s%d, s2, 5" % sS)
if OPT["ts"]:
    for i in range(32):
        e("s_mov_b32 s%d, 0" % (sTS + i))
e("s_mov_b32 s%d, 0x3e0293ee" % sC)
import struct, math
cval = struct.unpack("<I", struct.pack("<f", (128 ** -0.5) * math.log2(math.e)))[0]
g.L[-1] = "s_mov_b32 s%d, 0x%08x" % (sC, cval)
e("s_mov_b32 s%d, 0x3f803f80" % sONE)
e("v_lshlrev_b32 v%d, 4, v0" % vKV)
e("s_lshl_b32 s%d, s%d, 10" % (sM0B, sW))
e("v_add_u32 v%d, s%d, v%d" % (vKV, sM0B, vKV))
e("s_lshl_b32 s%d, s%d, 14" % (sM0B, sW))
e("v_and_b32 v%d, 3, v0" % vT)
e("v_mov_b32 v%d, 0" % vM01); e("v_mov_b32 v%d, 0" % vM23)
e("v_mov_b32 v%d, 0xffff" % (vT + 1)); e("v_mov_b32 v%d, 0xffff0000" % (vT + 2))
for val, dst, src in ((0, vM01, vT + 1), (1, vM01, vT + 2), (2, vM23, vT + 1), (3, vM23, vT + 2)):
    e("v_cmp_eq_u32 vcc, %d, v%d" % (val, vT))
    e("s_nop 1")
    e("v_cndmask_b32 v%d, v%d, v%d, vcc" % (dst, dst, src))
e("s_waitcnt lgkmcnt(0)")
ts(0)
e("s_mov_b64 s[%d:%d], s[32:33]" % (sX, sX + 1))
e("s_mov_b64 s[%d:%d], s[56:57]" % (sOUT, sOUT + 1))
e("s_mov_b64 s[%d:%d], s[58:59]" % (sDBG, sDBG + 1))
e("s_lshl_b32 s42, s%d, 21" % sH)
e("s_lshl_b32 s43, s%d, 18" % sS)
e("s_add_u32 s42, s42, s43")
e("s_add_u32 s%d, s34, s42" % sK); e("s_addc_u32 s%d, s35, 0" % (sK + 1))
e("s_mov_b32 s%d, 0x4040000" % (sK + 2)); e("s_mov_b32 s%d, 0x20000" % (sK + 3))
e("s_add_u32 s%d, s36, s42" % sV); e("s_addc_u32 s%d, s37, 0" % (sV + 1))
e("s_mov_b32 s%d, 0x4040000" % (sV + 2)); e("s_mov_b32 s%d, 0x20000" % (sV + 3))
e("s_cmp_lg_u32 s%d, 0" % sW)
e("s_cbranch_scc1 L_noclear")
e("s_mul_i32 s42, s2, 3072")
e("v_lshlrev_b32 v%d, 4, v0" % vT)
e("v_add_u32 v%d, s42, v%d" % (vT, vT))
for i in range(4):
    e("v_mov_b32 v%d, -1" % (vKT + i))
for i in range(3):
    e("global_store_dwordx4 v%d, v[%d:%d], s[%d:%d] offset:%d sc1" % (vT, vKT, vKT + 3, sWS, sWS + 1, i * 1024))
g.lab("L_noclear")

e("s_mov_b32 s%d, 0" % sROLE); e("s_mov_b32 s%d, 0" % sJ)
e("s_mov_b32 s%d, 0" % sKS); e("s_mov_b32 s%d, 0" % sGRP)
e("s_mov_b64 s[%d:%d], s[38:39]" % (sWT, sWT + 1))
e("s_mov_b32 s%d, %d" % (sWT + 2, 640 * 8192)); e("s_mov_b32 s%d, 0x20000" % (sWT + 3))
def in_range(lo, n, skip):
    e("s_sub_u32 s42, s2, %d" % lo)
    e("s_cmp_lt_u32 s42, %d" % n)
    e("s_cbranch_scc0 %s" % skip)

def gemv64_consts(NL, rowb):
    KW = 8 * NL
    e("s_mul_i32 s42, s%d, %d" % (sW, NL * 1024))
    e("s_add_u32 s42, s42, %d" % LP)
    e("v_lshlrev_b32 v%d, 4, v0" % vRW)
    e("v_add_u32 v%d, s42, v%d" % (vRW, vRW))
    e("v_lshrrev_b32 v%d, 3, v0" % vT)
    e("v_mul_u32_u24 v%d, %d, v%d" % (vRP, NL * 4, vT))
    e("s_mul_i32 s42, s%d, %d" % (sW, KW * 4))
    e("s_add_u32 s42, s42, %d" % PD)
    e("v_add_u32 v%d, s42, v%d" % (vRP, vRP))
    e("v_and_b32 v%d, 7, v0" % vRR)
    e("v_lshlrev_b32 v%d, 3, v%d" % (vRR, vRR))
    e("v_lshrrev_b32 v%d, 5, v0" % (vT + 1))
    e("v_lshl_add_u32 v%d, v%d, 2, v%d" % (vRR, vT + 1, vRR))
    e("v_bfe_u32 v%d, v0, 4, 1" % (vT + 1))
    e("v_add_u32 v%d, v%d, v%d" % (vRR, vRR, vT + 1))
    e("v_bfe_u32 v%d, v0, 3, 1" % (vT + 1))
    e("v_lshl_add_u32 v%d, v%d, 1, v%d" % (vRR, vT + 1, vRR))
    e("s_lshl_b32 s42, s%d, 8" % sW)
    e("s_add_u32 s42, s42, %d" % RED)
    e("v_lshlrev_b32 v%d, 2, v%d" % (vRR, vRR))
    e("v_add_u32 v%d, s42, v%d" % (vRR, vRR))

def gemv64_wload(NL, rowb, k0_expr_sreg, cb_sreg, vT=vT):
    KW = 8 * NL
    e("v_lshrrev_b32 v%d, 3, v0" % vT)
    e("v_mul_u32_u24 v%d, %d, v%d" % (vT, NL * rowb, vT)) if NL * rowb < (1 << 24) else None
    e("v_and_b32 v%d, 7, v0" % (vT + 1))
    e("v_lshl_add_u32 v%d, v%d, 4, v%d" % (vT, vT + 1, vT))
    e("s_mul_i32 s42, s%d, %d" % (sW, KW))
    if k0_expr_sreg is not None:
        e("s_add_u32 s42, s42, s%d" % k0_expr_sreg)
    e("s_mul_i32 s42, s42, %d" % rowb)
    e("s_add_u32 s42, s42, s%d" % cb_sreg)
    e("s_mul_i32 s43, s%d, %d" % (sW, NL * 1024))
    e("s_add_u32 s43, s43, %d" % LP)
    for i in range(NL):
        e("s_mov_b32 m0, s43")
        e("s_add_u32 s43, s43, 1024")
        e("buffer_load_dwordx4 v%d, s[%d:%d], s42 offen nt lds" % (vT, sWT, sWT + 3))
        e("s_add_u32 s42, s42, %d" % rowb)

def x160_consts():
    e("v_min_u32 v%d, 39, v0" % vT)
    e("v_lshlrev_b32 v%d, 2, v%d" % (vT, vT))
    e("s_mul_i32 s42, s%d, 160" % sW)
    e("v_add_u32 v%d, s42, v%d" % (vT, vT))
    e("v_lshlrev_b32 v%d, 1, v%d" % (vRB, vT))
    e("v_lshlrev_b32 v%d, 2, v%d" % (vRA, vT))
    e("v_add_u32 v%d, %d, v%d" % (vPW, PD, vRA))
    e("v_mov_b32 v%d, 0" % vFL)
    e("v_cmp_gt_u32 vcc, 40, v0")
    e("s_nop 1")
    e("v_cndmask_b32 v%d, v%d, 1.0, vcc" % (vFL, vFL))

in_range(R4_0, R4_N, "L_nr4")
e("s_mov_b32 s%d, 4" % sROLE); e("s_mov_b32 s%d, s42" % sJ)
e("s_mov_b64 s[%d:%d], s[38:39]" % (sWT, sWT + 1)); e("s_mov_b32 s%d, %d" % (sWT + 2, 640 * 8192))
e("s_lshl_b32 s%d, s%d, 7" % (sGRP, sJ))
e("s_cmp_lg_u32 s%d, 0" % sW)
e("s_cbranch_scc1 L_noqclr")
e("v_lshrrev_b32 v%d, 3, v0" % vT); e("v_mul_u32_u24 v%d, %d, v%d" % (vT, Q_ST, vT))
e("v_and_b32 v%d, 7, v0" % (vT + 1)); e("v_lshl_add_u32 v%d, v%d, 4, v%d" % (vT, vT + 1, vT))
e("s_add_u32 s42, s%d, %d" % (sGRP, WS_Q)); e("v_add_u32 v%d, s42, v%d" % (vT, vT))
e("s_mov_b32 exec_hi, 0")
e("global_store_dwordx4 v%d, v[%d:%d], s[%d:%d] sc1" % (vT, vKT, vKT + 3, sWS, sWS + 1))
e("s_mov_b64 exec, -1")
g.lab("L_noqclr")
gemv64_wload(20, 8192, None, sGRP)
gemv64_consts(20, 8192); x160_consts()
e("global_load_dwordx2 v[4:5], v%d, s[%d:%d]" % (vRB, sX, sX + 1))
e("global_load_dwordx2 v[6:7], v%d, s[%d:%d] offset:1280" % (vRB, sX, sX + 1))
e("s_branch L_roledone")
g.lab("L_nr4")
in_range(R1_0, R1_N, "L_nr1")
e("s_mov_b32 s%d, 1" % sROLE); e("s_mov_b32 s%d, s42" % sJ)
e("s_mov_b64 s[%d:%d], s[40:41]" % (sWT, sWT + 1)); e("s_mov_b32 s%d, %d" % (sWT + 2, 4096 * 1280))
e("s_and_b32 s%d, s%d, 7" % (sKS, sJ))
e("s_lshr_b32 s%d, s%d, 3" % (sGRP, sJ))
gemv64_consts(16, 1280)
e("s_lshl_b32 s42, s%d, 2" % sKS); e("s_add_u32 s42, s42, s%d" % sW)
e("v_lshrrev_b32 v%d, 5, v0" % vT)
e("v_and_b32 v%d, 31, v0" % (vT + 1))
e("v_lshlrev_b32 v%d, 4, v%d" % (vT + 1, vT + 1))
e("v_lshl_add_u32 v%d, v%d, 9, v%d" % (vRA, vT, vT + 1))
e("s_lshl_b32 s43, s42, 12"); e("v_add_u32 v%d, s43, v%d" % (vRA, vRA))
e("v_lshlrev_b32 v%d, 5, v%d" % (vRB, vT))
e("s_lshl_b32 s43, s42, 6"); e("v_add_u32 v%d, s43, v%d" % (vRB, vRB))
e("v_lshl_add_u32 v%d, v%d, 2, v%d" % (vPW, vT, vT + 1))
e("s_lshl_b32 s43, s%d, 9" % sW); e("s_add_u32 s43, s43, %d" % PD)
e("v_add_u32 v%d, s43, v%d" % (vPW, vPW))
e("s_branch L_roledone")
g.lab("L_nr1")
in_range(R2_0, R2_N, "L_nr2")
e("s_mov_b32 s%d, 2" % sROLE); e("s_mov_b32 s%d, s42" % sJ)
e("s_mov_b64 s[%d:%d], s[44:45]" % (sWT, sWT + 1)); e("s_mov_b32 s%d, %d" % (sWT + 2, 640 * 3456))
e("s_lshl_b32 s%d, s%d, 7" % (sGRP, sJ))
gemv64_consts(20, 3456); x160_consts()
e("s_branch L_roledone")
g.lab("L_nr2")
in_range(R3_0, R3_N, "L_roledone")
e("s_mov_b32 s%d, 3" % sROLE); e("s_mov_b32 s%d, s42" % sJ)
e("s_mov_b64 s[%d:%d], s[46:47]" % (sWT, sWT + 1)); e("s_mov_b32 s%d, %d" % (sWT + 2, 1728 * 1280))
e("s_mul_i32 s42, s%d, 14336" % sW); e("s_add_u32 s42, s42, %d" % LP)
e("v_lshlrev_b32 v%d, 3, v0" % vRW); e("v_add_u32 v%d, s42, v%d" % (vRW, vRW))
e("s_mul_i32 s42, s%d, 1792" % sW); e("s_add_u32 s42, s42, %d" % PD3)
e("v_lshrrev_b32 v%d, 2, v0" % vT); e("v_lshlrev_b32 v%d, 4, v%d" % (vRP, vT)); e("v_add_u32 v%d, s42, v%d" % (vRP, vRP))
e("v_min_u32 v%d, 53, v0" % vT)
e("v_lshlrev_b32 v%d, 5, v%d" % (vPW, vT)); e("v_add_u32 v%d, s42, v%d" % (vPW, vPW))
e("v_lshlrev_b32 v%d, 4, v%d" % (vRA, vT))
e("s_mul_i32 s43, s%d, 864" % sW); e("v_add_u32 v%d, s43, v%d" % (vRA, vRA))
e("v_and_b32 v%d, 3, v0" % vT); e("v_lshlrev_b32 v%d, 2, v%d" % (vT, vT))
e("v_lshrrev_b32 v%d, 4, v0" % (vT + 1)); e("v_add_u32 v%d, v%d, v%d" % (vT, vT, vT + 1))
e("v_lshlrev_b32 v%d, 2, v%d" % (vRR, vT))
e("s_lshl_b32 s43, s%d, 6" % sW); e("s_add_u32 s43, s43, %d" % RED); e("v_add_u32 v%d, s43, v%d" % (vRR, vRR))
e("v_and_b32 v%d, 14, v0" % vT); e("v_lshlrev_b32 v%d, 1, v%d" % (vRB, vT))
e("s_lshl_b32 s43, s%d, 5" % sJ); e("v_add_u32 v%d, s43, v%d" % (vRB, vRB))
e("v_lshlrev_b32 v%d, 2, v0" % vT); e("v_add_u32 v%d, s42, v%d" % (vT, vT))
e("v_mov_b32 v%d, 0" % (vT + 1))
e("s_mov_b64 exec, 0xffff")
e("ds_write_b32 v%d, v%d offset:1728" % (vT, vT + 1))
e("s_mov_b64 exec, -1")
g.lab("L_roledone")


vP, vGA, vGAA, vGW = 16, 36, 44, 48

def signal_cleared():
    lab = g.newlab("L_nosig")
    e("s_cmp_lg_u32 s%d, 0" % sW)
    e("s_cbranch_scc1 %s" % lab)
    e("v_mov_b32 v%d, 0" % vT); e("v_mov_b32 v%d, 1" % (vT + 1))
    e("s_mov_b64 exec, 1")
    e("global_atomic_add v%d, v%d, s[%d:%d] sc1" % (vT, vT + 1, sDBG, sDBG + 1))
    e("s_mov_b64 exec, -1")
    g.lab(lab)

def reduce8_to_col(acc, out):
    g.nop(5)
    for i in range(4):
        e("v_permlane32_swap_b32 v%d, v%d" % (acc + i, acc + 4 + i))
    for i in range(4):
        e("v_add_f32 v%d, v%d, v%d" % (acc + i, acc + i, acc + 4 + i))
    g.nop(1)
    e("v_permlane16_swap_b32 v%d, v%d" % (acc, acc + 1))
    e("v_permlane16_swap_b32 v%d, v%d" % (acc + 2, acc + 3))
    e("v_add_f32 v%d, v%d, v%d" % (acc, acc, acc + 1))
    e("v_add_f32 v%d, v%d, v%d" % (acc + 2, acc + 2, acc + 3))
    g.nop(2)
    e("v_add_f32_dpp v%d, v%d, v%d row_ror:8 row_mask:0xf bank_mask:0x3" % (out, acc, acc))
    e("v_add_f32_dpp v%d, v%d, v%d row_ror:8 row_mask:0xf bank_mask:0xc" % (out, acc + 2, acc + 2))

def gemv64(NL, ones=False):
    g.lg = []
    for i in range(min(4, NL)):
        g.lds("ds_read_b128 v[%d:%d], v%d offset:%d" % (vGW + 4 * i, vGW + 4 * i + 3, vRW, i * 1024), "W%d" % i)
    if not ones:
        for j in range(NL // 4):
            g.lds("ds_read_b128 v[%d:%d], v%d offset:%d" % (vP + 4 * j, vP + 4 * j + 3, vRP, j * 16), "P%d" % j)
    for i in range(8):
        e("v_mov_b32 v%d, 0" % (vGA + i))
    def ands(i):
        b = vGAA + 2 * (i % 2)
        if ones:
            if i < 2:
                e("v_and_b32 v%d, s%d, v%d" % (b, sONE, vM01)); e("v_and_b32 v%d, s%d, v%d" % (b + 1, sONE, vM23))
        else:
            if i % 4 == 0:
                g.lwait("P%d" % (i // 4))
            e("v_and_b32 v%d, v%d, v%d" % (b, vP + i, vM01)); e("v_and_b32 v%d, v%d, v%d" % (b + 1, vP + i, vM23))
    ands(0)
    for i in range(NL):
        if i + 1 < NL:
            ands(i + 1)
        if ones and i >= 1:
            pass
        g.lwait("W%d" % i)
        if i == 0 or ones:
            g.nop(2)
        b = vGAA + 2 * (i % 2); wb = vGW + 4 * (i % 4)
        e("v_mfma_f32_4x4x4_16b_bf16 v[%d:%d], v[%d:%d], v[%d:%d], v[%d:%d]" % (vGA, vGA + 3, b, b + 1, wb, wb + 1, vGA, vGA + 3))
        e("v_mfma_f32_4x4x4_16b_bf16 v[%d:%d], v[%d:%d], v[%d:%d], v[%d:%d]" % (vGA + 4, vGA + 7, b, b + 1, wb + 2, wb + 3, vGA + 4, vGA + 7))
        if i + 4 < NL:
            g.lds("ds_read_b128 v[%d:%d], v%d offset:%d" % (wb, wb + 3, vRW, (i + 4) * 1024), "W%d" % (i + 4))
    reduce8_to_col(vGA, vGAA)
    e("ds_write_b32 v%d, v%d" % (vRR, vGAA))
    g.lg = []

def wave_sum2(a, b, t):
    for ctl in ("quad_perm:[1,0,3,2]", "quad_perm:[2,3,0,1]", "row_half_mirror", "row_mirror"):
        g.nop(1)
        e("v_add_f32_dpp v%d, v%d, v%d %s row_mask:0xf bank_mask:0xf" % (a, a, a, ctl))
        e("v_add_f32_dpp v%d, v%d, v%d %s row_mask:0xf bank_mask:0xf" % (b, b, b, ctl))
    g.nop(2)
    e("v_permlane32_swap_b32 v%d, v%d" % (a, b))
    e("v_add_f32 v%d, v%d, v%d" % (a, a, b))
    e("v_mov_b32 v%d, v%d" % (t, a))
    g.nop(2)
    e("v_permlane16_swap_b32 v%d, v%d" % (a, t))
    e("v_add_f32 v%d, v%d, v%d" % (a, a, t))

def x_to_p_and_stats(x0):
    for i in range(4):
        e("v_cvt_pk_bf16_f32 v%d, v%d, v%d" % (vGW + i, x0 + i, x0 + i))
    e("ds_write_b128 v%d, v[%d:%d]" % (vPW, vGW, vGW + 3))
    e("v_add_f32 v%d, v%d, v%d" % (vT, x0, x0 + 1))
    e("v_add_f32 v%d, v%d, v%d" % (vT + 1, x0 + 2, x0 + 3))
    e("v_mul_f32 v%d, v%d, v%d" % (vT + 2, x0, x0))
    e("v_add_f32 v%d, v%d, v%d" % (vT, vT, vT + 1))
    for i in (1, 2, 3):
        e("v_fmac_f32 v%d, v%d, v%d" % (vT + 2, x0 + i, x0 + i))
    e("v_mul_f32 v%d, v%d, v%d" % (vT, vT, vFL))
    e("v_mul_f32 v%d, v%d, v%d" % (vT + 2, vT + 2, vFL))
    wave_sum2(vT, vT + 2, vT + 1)
    e("v_lshrrev_b32 v%d, 5, v0" % (vT + 1))
    e("v_lshlrev_b32 v%d, 2, v%d" % (vT + 1, vT + 1))
    e("s_lshl_b32 s%d, s%d, 3" % (sT, sW)); e("s_add_u32 s%d, s%d, %d" % (sT, sT, ST))
    e("v_add_u32 v%d, s%d, v%d" % (vT + 1, sT, vT + 1))
    e("s_mov_b32 exec_lo, 1"); e("s_mov_b32 exec_hi, 1")
    e("ds_write_b32 v%d, v%d" % (vT + 1, vT))
    e("s_mov_b64 exec, -1")
    e("s_waitcnt lgkmcnt(0)")

def final_col_sum(y, with_ln):
    e("v_lshlrev_b32 v%d, 2, v0" % vT)
    e("v_add_u32 v%d, %d, v%d" % (vT + 1, RED, vT))
    e("ds_read2_b32 v[%d:%d], v%d offset0:0 offset1:64" % (16, 17, vT + 1))
    e("ds_read2_b32 v[%d:%d], v%d offset0:128 offset1:192" % (18, 19, vT + 1))
    if with_ln:
        e("v_mov_b32 v%d, %d" % (vT + 2, ST))
        e("ds_read_b128 v[20:23], v%d" % (vT + 2))
        e("ds_read_b128 v[24:27], v%d offset:16" % (vT + 2))
        e("v_add_u32 v%d, %d, v%d" % (vT + 1, CS, vT))
        e("ds_read_b32 v28, v%d" % (vT + 1))
    e("s_waitcnt lgkmcnt(0)")
    e("v_add_f32 v16, v16, v17"); e("v_add_f32 v18, v18, v19"); e("v_add_f32 v%d, v16, v18" % y)
    if with_ln:
        e("v_add_f32 v20, v20, v22"); e("v_add_f32 v24, v24, v26"); e("v_add_f32 v20, v20, v24")
        e("v_add_f32 v21, v21, v23"); e("v_add_f32 v25, v25, v27"); e("v_add_f32 v21, v21, v25")
        e("v_mul_f32 v20, 0x3acccccd, v20")
        e("v_mul_f32 v21, 0x3acccccd, v21")
        e("v_fma_f32 v21, -v20, v20, v21")
        e("v_add_f32 v21, 0x3727c5ac, v21")
        e("v_rsq_f32 v21, v21")
        e("v_fma_f32 v%d, -v20, v28, v%d" % (y, y))
        e("v_mul_f32 v%d, v%d, v21" % (y, y))

def round_bf16(r, t=None):
    e("v_cvt_pk_bf16_f32 v%d, v%d, v%d" % (r, r, r))
    e("v_and_b32 v%d, 0xffff0000, v%d" % (r, r))

def pack_pair_even(y, out):
    g.nop(2)
    e("v_mov_b32_dpp v%d, v%d quad_perm:[1,0,3,2] row_mask:0xf bank_mask:0xf" % (out, y))
    e("v_cvt_pk_bf16_f32 v%d, v%d, v%d" % (out, y, out))

def pack8(y, out):
    g.nop(2)
    e("v_mov_b32_dpp v%d, v%d quad_perm:[1,0,3,2] row_mask:0xf bank_mask:0xf" % (out, y))
    e("v_cvt_pk_bf16_f32 v%d, v%d, v%d" % (out, y, out))
    g.nop(2)
    e("v_mov_b32_dpp v%d, v%d quad_perm:[2,3,0,1] row_mask:0xf bank_mask:0xf" % (out + 1, out))
    e("v_mov_b32_dpp v%d, v%d row_shl:4 row_mask:0xf bank_mask:0xf" % (out + 2, out))
    g.nop(1)
    e("v_mov_b32_dpp v%d, v%d row_shl:4 row_mask:0xf bank_mask:0xf" % (out + 3, out + 1))

def exec8():
    e("s_mov_b32 exec_lo, 0x01010101"); e("s_mov_b32 exec_hi, 0x01010101")

def colsum(NL):
    gemv64(NL, ones=True)
    e("s_waitcnt lgkmcnt(0)")
    e("s_barrier")
    lab = g.newlab("L_cs")
    e("s_cmp_lg_u32 s%d, 0" % sW)
    e("s_cbranch_scc1 %s" % lab)
    final_col_sum(30, False)
    e("v_add_u32 v%d, %d, v%d" % (vT + 1, CS, vT))
    e("ds_write_b32 v%d, v30" % (vT + 1))
    e("s_waitcnt lgkmcnt(0)")
    g.lab(lab)
    e("s_barrier")

def s3_wload(vT=vT):
    e("v_bfe_u32 v%d, v0, 1, 4" % vT)
    e("v_mul_u32_u24 v%d, %d, v%d" % (vT, 4 * 1280, vT))
    e("v_lshrrev_b32 v%d, 5, v0" % (vT + 1))
    e("v_mul_u32_u24 v%d, 1280, v%d" % (vT + 1, vT + 1))
    e("v_add_u32 v%d, v%d, v%d" % (vT, vT, vT + 1))
    e("v_and_b32 v%d, 1, v0" % (vT + 1))
    e("v_lshl_add_u32 v%d, v%d, 4, v%d" % (vT, vT + 1, vT))
    e("s_mul_i32 s42, s%d, %d" % (sW, 432 * 1280))
    e("s_lshl_b32 s43, s%d, 5" % sJ)
    e("s_add_u32 s42, s42, s43")
    e("s_mul_i32 s43, s%d, 14336" % sW); e("s_add_u32 s43, s43, %d" % LP)
    for ld in range(14):
        i0 = 2 * ld
        rowoff = (64 * (i0 // 4) + (i0 % 4)) * 1280
        e("s_mov_b32 m0, s43")
        e("s_add_u32 s44, s42, %d" % rowoff)
        e("buffer_load_dwordx4 v%d, s[%d:%d], s44 offen nt lds" % (vT, sWT, sWT + 3))
        e("s_add_u32 s43, s43, 1024")

def s4_block():
    g.lab("L_s4")
    odd = g.newlab("L_s4odd"); got = g.newlab("L_s4got")
    e("s_and_b32 s%d, s%d, 1" % (sT, sTQ))
    e("s_cmp_eq_u32 s%d, 1" % sT)
    e("s_cbranch_scc1 %s" % odd)
    e("v_mov_b32 v48, v4"); e("v_mov_b32 v49, v5")
    e("s_cmp_eq_u32 s%d, 0" % sTQ)
    e("s_cbranch_scc1 %s" % got)
    e("v_mov_b32 v48, v6"); e("v_mov_b32 v49, v7")
    e("s_branch %s" % got)
    g.lab(odd)
    e("s_sub_u32 s%d, s%d, 1" % (sT, sTQ)); e("s_mul_i32 s%d, s%d, %d" % (sT, sT, X2_ST)); e("s_add_u32 s%d, s%d, %d" % (sT, sT, WS_X2))
    e("v_add_u32 v%d, s%d, v%d" % (50, sT, vRB))
    poll(lambda: e("global_load_dwordx2 v[48:49], v50, s[%d:%d] sc1" % (sWS, sWS + 1)), [48, 49], vT)
    g.lab(got)
    ts_dyn(8)
    e("v_lshlrev_b32 v16, 16, v48"); e("v_and_b32 v17, 0xffff0000, v48")
    e("v_lshlrev_b32 v18, 16, v49"); e("v_and_b32 v19, 0xffff0000, v49")
    x_to_p_and_stats(16)
    gemv64(20)
    e("s_waitcnt lgkmcnt(0)")
    e("s_barrier")
    ts_dyn(16)
    lab = g.newlab("L_s4w")
    e("s_cmp_lg_u32 s%d, 0" % sW)
    e("s_cbranch_scc1 %s" % lab)
    final_col_sum(30, True)
    pack8(30, 32)
    e("s_mul_i32 s%d, s%d, %d" % (sT, sTQ, Q_ST)); e("s_add_u32 s%d, s%d, %d" % (sT, sT, WS_Q))
    e("s_lshl_b32 s%d, s%d, 7" % (sT + 1, sJ)); e("s_add_u32 s%d, s%d, s%d" % (sT, sT, sT + 1))
    e("v_lshlrev_b32 v%d, 1, v0" % vT); e("v_add_u32 v%d, s%d, v%d" % (vT, sT, vT))
    exec8()
    e("global_store_dwordx4 v%d, v[32:35], s[%d:%d] sc1" % (vT, sWS, sWS + 1))
    e("s_mov_b64 exec, -1")
    g.lab(lab)
    e("s_barrier")
    e("s_cmp_eq_u32 s%d, 0" % sFIRST)
    e("s_cbranch_scc1 L_disp")
    e("s_cmp_eq_u32 s%d, 0" % sTQ)
    e("s_cbranch_scc0 L_s4ret")
    ts(4)
    e("s_mov_b32 s%d, 2" % sTQ)
    e("s_branch L_s4")
    g.lab("L_s4ret")
    ts(5)
    e("s_mov_b32 s%d, %d" % (sOFF, KPRE * 4096))
    e("s_branch L_lka_pre")

def kload(t, wait=None):
    if wait is not None:
        e("s_waitcnt vmcnt(%d)" % wait)
    if t < 48:
        e("buffer_load_dwordx4 v[%d:%d], v%d, s[%d:%d], s%d offen nt" % (vK0 + 4 * t, vK0 + 4 * t + 3, vKV, sK, sK + 3, sOFF))
        e("s_add_u32 s%d, s%d, 4096" % (sOFF, sOFF))
    else:
        e("s_add_u32 m0, s%d, %d" % (sM0B, LQ + (t - 48) * 1024))
        e("s_nop 0")
        e("buffer_load_dwordx4 v%d, s[%d:%d], s%d offen nt lds" % (vKV, sK, sK + 3, sOFF))
        e("s_add_u32 s%d, s%d, 4096" % (sOFF, sOFF))

def vload(t, wait=58):
    e("s_waitcnt vmcnt(%d)" % wait)
    e("buffer_load_dwordx4 a[%d:%d], v%d, s[%d:%d], s%d offen nt" % (4 * t, 4 * t + 3, vKV, sV, sV + 3, sOFF))
    e("s_add_u32 s%d, s%d, 4096" % (sOFF, sOFF))

def lka():
    g.lab("L_lka")
    ts_first(5)
    e("s_mov_b32 s%d, s%d" % (sOFF, sBO))
    for t in range(56):
        if t == KPRE:
            g.lab("L_lka_pre")
        if t == 8:
            lab = g.newlab("L_sig")
            e("s_cmp_eq_u32 s%d, 0" % sFIRST); e("s_cbranch_scc1 %s" % lab)
            e("s_cmp_eq_u32 s%d, 4" % sROLE); e("s_cbranch_scc1 %s" % lab)
            e("s_waitcnt vmcnt(8)")
            signal_cleared()
            ts_first(1)
            g.lab(lab)
        kload(t, 58 if t >= 36 else None)
    ts_first(6)
    e("s_cmp_eq_u32 s%d, 0" % sFIRST)
    e("s_cbranch_scc1 L_softmax")

def lkbv():
    g.lab("L_lkbv")
    e("s_add_u32 s%d, s%d, %d" % (sOFF, sBO, 56 * 4096))
    for t in range(56, 64):
        kload(t, 58)
    e("v_mov_b32 v%d, 0" % vT)
    e("global_load_dword v%d, v%d, s[%d:%d] sc1" % (vT + 1, vT, sDBG, sDBG + 1))
    e("s_mov_b32 s%d, s%d" % (sOFF, sBO))
    for t in range(32):
        vload(t)
    e("s_waitcnt vmcnt(32)")
    e("v_readfirstlane_b32 s%d, v%d" % (sT, vT + 1))
    ok = g.newlab("L_cok")
    e("s_cmp_ge_u32 s%d, 256" % sT)
    e("s_cbranch_scc1 %s" % ok)
    counter_spin()
    g.lab(ok)
    ts_first(7)
    e("s_cmp_eq_u32 s%d, 0" % sFIRST)
    e("s_cselect_b32 s%d, 2, 0" % sINV)
    e("s_cselect_b32 s%d, 3, 0" % sPH)
    qaddr(vT + 2)
    e("global_load_dwordx4 v[%d:%d], v%d, s[%d:%d] sc1" % (vQ, vQ + 3, vT + 2, sWS, sWS + 1))
    for t in range(32, 64):
        vload(t)
    e("s_waitcnt vmcnt(32)")
    bad = g.newlab("L_qbad"); good = g.newlab("L_qgood")
    sentinel_check([vQ, vQ + 1, vQ + 2, vQ + 3], bad, vT)
    e("s_branch %s" % good)
    g.lab(bad)
    poll(lambda: e("global_load_dwordx4 v[%d:%d], v%d, s[%d:%d] sc1" % (vQ, vQ + 3, vT + 2, sWS, sWS + 1)), [vQ, vQ + 1, vQ + 2, vQ + 3], vT)
    g.lab(good)
    e("s_mov_b32 s%d, 0" % sFIRST)
    e("s_branch L_qk")

def qaddr(dst):
    e("s_mul_i32 s%d, s%d, %d" % (sT, sINV, Q_ST)); e("s_add_u32 s%d, s%d, %d" % (sT, sT, WS_Q))
    e("s_lshl_b32 s%d, s%d, 8" % (sT + 1, sH)); e("s_add_u32 s%d, s%d, s%d" % (sT, sT, sT + 1))
    e("v_and_b32 v%d, 15, v0" % dst); e("v_lshlrev_b32 v%d, 4, v%d" % (dst, dst))
    e("v_add_u32 v%d, s%d, v%d" % (dst, sT, dst))

def att_core():
    g.lab("L_att")
    qaddr(vT + 2)
    poll(lambda: e("global_load_dwordx4 v[%d:%d], v%d, s[%d:%d] sc1" % (vQ, vQ + 3, vT + 2, sWS, sWS + 1)), [vQ, vQ + 1, vQ + 2, vQ + 3], vT)
    g.lab("L_qk")
    ts_dyn(8)
    e("v_lshlrev_b32 v%d, 4, v0" % (vT + 3)); e("v_add_u32 v%d, s%d, v%d" % (vT + 3, sM0B, vT + 3))
    order = []
    for j in range(4):
        order += [3 * j, 3 * j + 1, 3 * j + 2, 12 + j]
    def ldsread(j):
        return ["ds_read_b128 v[%d:%d], v%d offset:%d" % (vKT + 4 * u, vKT + 4 * u + 3, vT + 3, LQ + (4 * j + u) * 1024) for u in range(4)]
    def dots(T, par):
        out = []
        for jj in range(4):
            for u in range(4):
                src = (vK0 + 4 * (4 * T + u) + jj) if T < 12 else (vKT + 4 * u + jj)
                d = vD + 4 * par + u
                if jj == 0:
                    out.append("v_dot2_f32_bf16 v%d, v%d, v%d, 0" % (d, src, vQ + jj))
                else:
                    out.append("v_dot2c_f32_bf16 v%d, v%d, v%d" % (d, src, vQ + jj))
        return out
    def red(T, par):
        d = vD + 4 * par; s = vS + T
        return [
            "v_add_f32_dpp v%d, v%d, v%d row_ror:8 row_mask:0xf bank_mask:0x3" % (vE, d, d),
            "v_add_f32_dpp v%d, v%d, v%d row_ror:8 row_mask:0xf bank_mask:0x3" % (vE + 1, d + 1, d + 1),
            "v_add_f32_dpp v%d, v%d, v%d row_ror:8 row_mask:0xf bank_mask:0xc" % (vE, d + 2, d + 2),
            "v_add_f32_dpp v%d, v%d, v%d row_ror:8 row_mask:0xf bank_mask:0xc" % (vE + 1, d + 3, d + 3),
            "v_add_f32_dpp v%d, v%d, v%d row_shl:4 row_mask:0xf bank_mask:0x5" % (s, vE, vE),
            "v_add_f32_dpp v%d, v%d, v%d row_shr:4 row_mask:0xf bank_mask:0xa" % (s, vE + 1, vE + 1),
            "v_add_f32_dpp v%d, v%d, v%d quad_perm:[1,0,3,2] row_mask:0xf bank_mask:0xf" % (s, s, s),
            "v_add_f32_dpp v%d, v%d, v%d quad_perm:[2,3,0,1] row_mask:0xf bank_mask:0xf" % (s, s, s),
        ]
    for x in ldsread(0): e(x)
    prev = None
    for n, T in enumerate(order):
        par = n % 2
        if T >= 12:
            e("s_waitcnt lgkmcnt(0)")
        main = dots(T, par)
        side = red(*prev) if prev is not None else []
        for x in interleave(main, side, 2): e(x)
        if T >= 12 and T < 15:
            for x in ldsread(T - 12 + 1): e(x)
        prev = (T, par)
    r = red(*prev)
    g.nop(3)
    for i, x in enumerate(r):
        e(x)
        if i >= 3: g.nop(2)
        elif i == 1: g.nop(1)
    e("s_cmp_eq_u32 s%d, 1" % sINV)
    nl = g.newlab("L_nolk")
    e("s_cbranch_scc0 %s" % nl)
    e("s_mov_b32 s%d, 0x4000000" % sBO)
    e("s_branch L_lka")
    g.lab(nl)
    g.lab("L_softmax")
    m = vT; t1 = vT + 1
    e("v_max3_f32 v%d, v%d, v%d, v%d" % (m, vS, vS + 1, vS + 2))
    for i in range(3, 15, 2):
        e("v_max3_f32 v%d, v%d, v%d, v%d" % (m, m, vS + i, vS + i + 1))
    e("v_max_f32 v%d, v%d, v%d" % (m, m, vS + 15))
    g.nop(2)
    e("v_max_f32_dpp v%d, v%d, v%d row_ror:4 row_mask:0xf bank_mask:0xf" % (m, m, m)); g.nop(2)
    e("v_max_f32_dpp v%d, v%d, v%d row_ror:8 row_mask:0xf bank_mask:0xf" % (m, m, m))
    e("v_mov_b32 v%d, v%d" % (t1, m)); g.nop(2)
    e("v_permlane16_swap_b32 v%d, v%d" % (m, t1)); e("v_max_f32 v%d, v%d, v%d" % (m, m, t1))
    e("v_mov_b32 v%d, v%d" % (t1, m)); g.nop(2)
    e("v_permlane32_swap_b32 v%d, v%d" % (m, t1)); e("v_max_f32 v%d, v%d, v%d" % (m, m, t1))
    e("v_mul_f32 v%d, s%d, v%d" % (m, sC, m))
    for i in range(16):
        e("v_fma_f32 v%d, v%d, s%d, -v%d" % (vS + i, vS + i, sC, m))
    for i in range(16):
        e("v_exp_f32 v%d, v%d" % (vS + i, vS + i))
    l = vT + 2
    e("v_add_f32 v%d, v%d, v%d" % (l, vS, vS + 1))
    for i in range(2, 16):
        e("v_add_f32 v%d, v%d, v%d" % (l, l, vS + i))
    for i in range(16):
        e("v_cvt_pk_bf16_f32 v%d, v%d, v%d" % (vS + i, vS + i, vS + i))
    e("v_add_f32_dpp v%d, v%d, v%d row_ror:4 row_mask:0xf bank_mask:0xf" % (l, l, l)); g.nop(2)
    e("v_add_f32_dpp v%d, v%d, v%d row_ror:8 row_mask:0xf bank_mask:0xf" % (l, l, l))
    e("v_mov_b32 v%d, v%d" % (t1, l)); g.nop(2)
    e("v_permlane16_swap_b32 v%d, v%d" % (l, t1)); e("v_add_f32 v%d, v%d, v%d" % (l, l, t1))
    e("v_mov_b32 v%d, v%d" % (t1, l)); g.nop(2)
    e("v_permlane32_swap_b32 v%d, v%d" % (l, t1)); e("v_add_f32 v%d, v%d, v%d" % (l, l, t1))
    for i in range(8):
        e("v_mov_b32 v%d, 0" % (vACC + i))
    def ands(t):
        b = vA + 2 * (t % 3); T, u = t // 4, t % 4
        e("v_and_b32_dpp v%d, v%d, v%d row_newbcast:%d row_mask:0xf bank_mask:0xf" % (b, vS + T, vM01, 4 * u))
        e("v_and_b32_dpp v%d, v%d, v%d row_newbcast:%d row_mask:0xf bank_mask:0xf" % (b + 1, vS + T, vM23, 4 * u))
    e("s_cmp_eq_u32 s%d, 1" % sINV)
    ands(0)
    for t in range(64):
        if t + 1 < 64:
            ands(t + 1)
        else:
            g.nop(2)
        if t % 4 == 0 and t >= 32:
            lab = g.newlab("L_nw")
            e("s_cbranch_scc1 %s" % lab)
            e("s_waitcnt vmcnt(%d)" % (60 - t))
            g.lab(lab)
        b = vA + 2 * (t % 3)
        e("v_mfma_f32_4x4x4_16b_bf16 v[%d:%d], v[%d:%d], a[%d:%d], v[%d:%d]" % (vACC, vACC + 3, b, b + 1, 4 * t, 4 * t + 1, vACC, vACC + 3))
        e("v_mfma_f32_4x4x4_16b_bf16 v[%d:%d], v[%d:%d], a[%d:%d], v[%d:%d]" % (vACC + 4, vACC + 7, b, b + 1, 4 * t + 2, 4 * t + 3, vACC + 4, vACC + 7))
    g.nop(5)
    for i in range(4):
        e("v_permlane32_swap_b32 v%d, v%d" % (vACC + i, vACC + 4 + i))
    for i in range(4):
        e("v_add_f32 v%d, v%d, v%d" % (vACC + i, vACC + i, vACC + 4 + i))
    g.nop(1)
    e("v_permlane16_swap_b32 v%d, v%d" % (vACC, vACC + 1))
    e("v_permlane16_swap_b32 v%d, v%d" % (vACC + 2, vACC + 3))
    e("v_add_f32 v%d, v%d, v%d" % (vACC, vACC, vACC + 1))
    e("v_add_f32 v%d, v%d, v%d" % (vACC + 2, vACC + 2, vACC + 3))
    e("s_and_b32 s%d, s%d, 1" % (sT, sINV)); e("s_mul_i32 s%d, s%d, %d" % (sT, sT, COMB_ST)); e("s_add_u32 s%d, s%d, %d" % (sT, sT, COMB))
    e("s_lshl_b32 s%d, s%d, 9" % (sT + 1, sW)); e("s_add_u32 s%d, s%d, s%d" % (sT + 1, sT + 1, sT))
    e("v_and_b32 v%d, 15, v0" % t1); e("v_lshlrev_b32 v%d, 5, v%d" % (t1, t1))
    e("v_lshrrev_b32 v%d, 5, v0" % (vT + 3)); e("v_lshl_add_u32 v%d, v%d, 4, v%d" % (t1, vT + 3, t1))
    e("v_bfe_u32 v%d, v0, 4, 1" % (vT + 3)); e("v_lshl_add_u32 v%d, v%d, 2, v%d" % (t1, vT + 3, t1))
    e("v_add_u32 v%d, s%d, v%d" % (t1, sT + 1, t1))
    e("ds_write2_b32 v%d, v%d, v%d offset0:0 offset1:2" % (t1, vACC, vACC + 2))
    e("s_lshl_b32 s%d, s%d, 3" % (sT + 1, sW)); e("s_add_u32 s%d, s%d, s%d" % (sT + 1, sT + 1, sT))
    e("v_mov_b32 v%d, s%d" % (t1, sT + 1))
    e("v_mov_b32 v%d, v%d" % (vT + 4, m)); e("v_mov_b32 v%d, v%d" % (vT + 5, l))
    e("s_mov_b64 exec, 1")
    e("ds_write_b64 v%d, v[%d:%d] offset:2048" % (t1, vT + 4, vT + 5))
    e("s_mov_b64 exec, -1")
    e("s_waitcnt lgkmcnt(0)")
    e("s_barrier")
    nw = g.newlab("L_npub")
    e("s_cmp_lg_u32 s%d, 0" % sW)
    e("s_cbranch_scc1 %s" % nw)
    e("v_and_b32 v%d, 31, v0" % t1); e("v_lshlrev_b32 v%d, 4, v%d" % (t1, t1)); e("v_add_u32 v%d, s%d, v%d" % (t1, sT, t1))
    for w in range(4):
        e("ds_read_b128 v[%d:%d], v%d offset:%d" % (16 + 4 * w, 19 + 4 * w, t1, w * 512))
    e("v_mov_b32 v%d, s%d" % (vT + 3, sT))
    e("ds_read_b128 v[40:43], v%d offset:2048" % (vT + 3))
    e("ds_read_b128 v[44:47], v%d offset:2064" % (vT + 3))
    e("s_waitcnt lgkmcnt(0)")
    e("v_max_f32 v32, v40, v42"); e("v_max3_f32 v32, v32, v44, v46")
    for w, r in enumerate((40, 42, 44, 46)):
        e("v_sub_f32 v%d, v%d, v32" % (r, r))
    for r in (40, 42, 44, 46):
        e("v_exp_f32 v%d, v%d" % (r, r))
    e("s_nop 0")
    for d in range(4): e("v_mul_f32 v%d, v%d, v40" % (36 + d, 16 + d))
    e("v_mul_f32 v33, v41, v40")
    for w, r in ((1, 42), (2, 44), (3, 46)):
        for d in range(4): e("v_fmac_f32 v%d, v%d, v%d" % (36 + d, 16 + 4 * w + d, r))
        e("v_fmac_f32 v33, v%d, v%d" % (r + 1, r))
    e("s_mul_i32 s%d, s%d, %d" % (sT, sINV, OA_ST))
    e("s_lshl_b32 s%d, s%d, 12" % (sT + 1, sH)); e("s_add_u32 s%d, s%d, s%d" % (sT, sT, sT + 1))
    e("s_lshl_b32 s%d, s%d, 9" % (sT + 1, sS)); e("s_add_u32 s%d, s%d, s%d" % (sT, sT, sT + 1))
    e("v_lshlrev_b32 v%d, 4, v0" % t1); e("v_add_u32 v%d, s%d, v%d" % (t1, sT, t1))
    e("s_mov_b32 exec_hi, 0")
    e("global_store_dwordx4 v%d, v[36:39], s[%d:%d] sc1" % (t1, sWS, sWS + 1))
    e("s_mov_b64 exec, -1")
    e("s_mul_i32 s%d, s%d, %d" % (sT, sINV, ML_ST)); e("s_add_u32 s%d, s%d, %d" % (sT, sT, WS_ML))
    e("s_lshl_b32 s%d, s%d, 6" % (sT + 1, sH)); e("s_add_u32 s%d, s%d, s%d" % (sT, sT, sT + 1))
    e("s_and_b32 s%d, s%d, 1" % (sT + 1, sS)); e("s_lshl_b32 s%d, s%d, 5" % (sT + 1, sT + 1)); e("s_add_u32 s%d, s%d, s%d" % (sT, sT, sT + 1))
    e("s_lshr_b32 s%d, s%d, 1" % (sT + 1, sS)); e("s_lshl_b32 s%d, s%d, 3" % (sT + 1, sT + 1)); e("s_add_u32 s%d, s%d, s%d" % (sT, sT, sT + 1))
    e("v_mov_b32 v%d, s%d" % (t1, sT))
    e("s_mov_b64 exec, 1")
    e("global_store_dwordx2 v%d, v[32:33], s[%d:%d] sc1" % (t1, sWS, sWS + 1))
    e("s_mov_b64 exec, -1")
    g.lab(nw)
    ts_dyn(16)
    e("s_cmp_eq_u32 s%d, 1" % sINV)
    e("s_cbranch_scc1 L_lkbv")
    e("s_cmp_eq_u32 s%d, 0" % sINV)
    e("s_cbranch_scc1 L_wload")
    e("s_branch L_disp")

def s1_block():
    g.lab("L_s1")
    e("s_mul_i32 s%d, s%d, %d" % (sT, sINV, OA_ST)); e("v_add_u32 v50, s%d, v%d" % (sT, vRA))
    e("s_mul_i32 s%d, s%d, %d" % (sT, sINV, ML_ST)); e("s_add_u32 s%d, s%d, %d" % (sT, sT, WS_ML)); e("v_add_u32 v51, s%d, v%d" % (sT, vRB))
    def issue():
        for i in range(4):
            e("global_load_dwordx4 v[%d:%d], v50, s[%d:%d] offset:%d sc1" % (16 + 4 * i, 19 + 4 * i, sWS, sWS + 1, i * 1024))
        e("global_load_dwordx4 v[32:35], v51, s[%d:%d] sc1" % (sWS, sWS + 1))
        e("global_load_dwordx4 v[36:39], v51, s[%d:%d] offset:16 sc1" % (sWS, sWS + 1))
    poll(issue, list(range(16, 40)), vT)
    ts_dyn(8)
    e("v_max_f32 v40, v32, v34"); e("v_max3_f32 v40, v40, v36, v38")
    e("v_mov_b32 v41, v40"); g.nop(2)
    e("v_permlane32_swap_b32 v40, v41"); e("v_max_f32 v40, v40, v41")
    for r in (32, 34, 36, 38): e("v_sub_f32 v%d, v%d, v40" % (r, r))
    for r in (32, 34, 36, 38): e("v_exp_f32 v%d, v%d" % (r, r))
    e("s_nop 0")
    e("v_mul_f32 v42, v33, v32")
    for r in (34, 36, 38): e("v_fmac_f32 v42, v%d, v%d" % (r + 1, r))
    for d in range(4): e("v_mul_f32 v%d, v%d, v32" % (44 + d, 16 + d))
    for i, r in ((1, 34), (2, 36), (3, 38)):
        for d in range(4): e("v_fmac_f32 v%d, v%d, v%d" % (44 + d, 16 + 4 * i + d, r))
    e("v_mov_b32 v43, v42"); g.nop(2)
    e("v_permlane32_swap_b32 v42, v43")
    e("v_permlane32_swap_b32 v44, v45")
    e("v_permlane32_swap_b32 v46, v47")
    e("v_add_f32 v42, v42, v43"); e("v_add_f32 v44, v44, v45"); e("v_add_f32 v46, v46, v47")
    e("v_rcp_f32 v42, v42"); e("s_nop 0")
    e("v_mul_f32 v44, v44, v42"); e("v_mul_f32 v46, v46, v42")
    e("v_cvt_pk_bf16_f32 v44, v44, v44"); e("v_cvt_pk_bf16_f32 v46, v46, v46")
    e("ds_write2_b32 v%d, v44, v46 offset0:0 offset1:2" % vPW)
    e("s_waitcnt lgkmcnt(0)")
    gemv64(16)
    e("s_waitcnt lgkmcnt(0)")
    e("s_barrier")
    ts_dyn(16)
    lab = g.newlab("L_s1w")
    e("s_cmp_lg_u32 s%d, 0" % sW); e("s_cbranch_scc1 %s" % lab)
    final_col_sum(30, False)
    e("s_mul_i32 s%d, s%d, %d" % (sT, sINV, PB_ST)); e("s_add_u32 s%d, s%d, %d" % (sT, sT, WS_PB))
    e("s_mul_i32 s%d, s%d, 2560" % (sT + 1, sKS)); e("s_add_u32 s%d, s%d, s%d" % (sT, sT, sT + 1))
    e("s_lshl_b32 s%d, s%d, 8" % (sT + 1, sGRP)); e("s_add_u32 s%d, s%d, s%d" % (sT, sT, sT + 1))
    e("v_add_u32 v%d, s%d, v%d" % (vT, sT, vT))
    for q in range(4):
        e("v_mov_b32_dpp v%d, v30 quad_perm:[%d,%d,%d,%d] row_mask:0xf bank_mask:0xf" % (32 + q, q, q, q, q))
    e("s_mov_b32 exec_lo, 0x11111111"); e("s_mov_b32 exec_hi, 0x11111111")
    e("global_store_dwordx4 v%d, v[32:35], s[%d:%d] sc1" % (vT, sWS, sWS + 1))
    e("s_mov_b64 exec, -1")
    g.lab(lab)
    e("s_barrier")
    e("s_branch L_disp")

def s2_block():
    g.lab("L_s2")
    nc = g.newlab("L_s2nc")
    e("s_cmp_lg_u32 s%d, 1" % sPH); e("s_cbranch_scc1 %s" % nc)
    e("s_waitcnt vmcnt(0)")
    colsum(20)
    g.lab(nc)
    e("s_mul_i32 s%d, s%d, %d" % (sT, sINV, PB_ST)); e("s_add_u32 s%d, s%d, %d" % (sT, sT, WS_PB))
    e("v_add_u32 v52, s%d, v%d" % (sT, vRA))
    for k in range(1, 4): e("v_add_u32 v%d, %d, v52" % (52 + k, 5120 * k))
    odd = g.newlab("L_s2odd"); got = g.newlab("L_s2got")
    e("s_and_b32 s%d, s%d, 1" % (sT, sINV)); e("s_cmp_eq_u32 s%d, 1" % sT); e("s_cbranch_scc1 %s" % odd)
    e("s_lshr_b32 s%d, s%d, 1" % (sT, sINV)); e("s_mul_i32 s%d, s%d, 1280" % (sT, sT))
    e("v_add_u32 v50, s%d, v%d" % (sT, vRB))
    e("global_load_dwordx2 v[48:49], v50, s[%d:%d]" % (sX, sX + 1))
    e("s_branch %s" % got)
    g.lab(odd)
    e("s_sub_u32 s%d, s%d, 1" % (sT, sINV)); e("s_mul_i32 s%d, s%d, %d" % (sT, sT, X2_ST)); e("s_add_u32 s%d, s%d, %d" % (sT, sT, WS_X2))
    e("v_add_u32 v50, s%d, v%d" % (sT, vRB))
    poll(lambda: e("global_load_dwordx2 v[48:49], v50, s[%d:%d] sc1" % (sWS, sWS + 1)), [48, 49], vT)
    g.lab(got)
    def issue():
        for ks in range(8):
            e("global_load_dwordx4 v[%d:%d], v%d, s[%d:%d] offset:%d sc1" % (16 + 4 * ks, 19 + 4 * ks, 52 + ks // 2, sWS, sWS + 1, (ks % 2) * 2560))
    poll(issue, list(range(16, 48)), vT)
    ts_dyn(8)
    for d in range(4):
        e("v_add_f32 v%d, v%d, v%d" % (16 + d, 16 + d, 20 + d)); e("v_add_f32 v%d, v%d, v%d" % (24 + d, 24 + d, 28 + d))
        e("v_add_f32 v%d, v%d, v%d" % (32 + d, 32 + d, 36 + d)); e("v_add_f32 v%d, v%d, v%d" % (40 + d, 40 + d, 44 + d))
    for d in range(4):
        e("v_add_f32 v%d, v%d, v%d" % (16 + d, 16 + d, 24 + d)); e("v_add_f32 v%d, v%d, v%d" % (32 + d, 32 + d, 40 + d))
    for d in range(4):
        e("v_add_f32 v%d, v%d, v%d" % (16 + d, 16 + d, 32 + d))
    for d in range(4): round_bf16(16 + d)
    e("v_lshlrev_b32 v20, 16, v48"); e("v_and_b32 v21, 0xffff0000, v48")
    e("v_lshlrev_b32 v22, 16, v49"); e("v_and_b32 v23, 0xffff0000, v49")
    for d in range(4): e("v_add_f32 v%d, v%d, v%d" % (16 + d, 16 + d, 20 + d))
    for d in range(4): round_bf16(16 + d)
    nx = g.newlab("L_s2nx")
    e("s_cmp_lg_u32 s%d, 0" % sJ); e("s_cbranch_scc1 %s" % nx)
    e("v_cvt_pk_bf16_f32 v20, v16, v17"); e("v_cvt_pk_bf16_f32 v21, v18, v19")
    e("s_mul_i32 s%d, s%d, %d" % (sT, sINV, X1_ST)); e("s_add_u32 s%d, s%d, %d" % (sT, sT, WS_X1))
    e("v_add_u32 v50, s%d, v%d" % (sT, vRB))
    e("global_store_dwordx2 v50, v[20:21], s[%d:%d] sc1" % (sWS, sWS + 1))
    g.lab(nx)
    x_to_p_and_stats(16)
    gemv64(20)
    e("s_waitcnt lgkmcnt(0)")
    e("s_barrier")
    ts_dyn(16)
    lab = g.newlab("L_s2w")
    e("s_cmp_lg_u32 s%d, 0" % sW); e("s_cbranch_scc1 %s" % lab)
    final_col_sum(30, True)
    round_bf16(30)
    e("v_mul_f32 v31, 0xbfb8aa3b, v30")
    e("v_exp_f32 v31, v31"); e("s_nop 0")
    e("v_add_f32 v31, 1.0, v31")
    e("v_rcp_f32 v31, v31"); e("s_nop 0")
    e("v_mul_f32 v30, v30, v31")
    pack8(30, 32)
    e("s_mul_i32 s%d, s%d, %d" % (sT, sINV, H_ST)); e("s_add_u32 s%d, s%d, %d" % (sT, sT, WS_H))
    e("s_lshl_b32 s%d, s%d, 7" % (sT + 1, sJ)); e("s_add_u32 s%d, s%d, s%d" % (sT, sT, sT + 1))
    e("v_lshlrev_b32 v%d, 1, v0" % vT); e("v_add_u32 v%d, s%d, v%d" % (vT, sT, vT))
    exec8()
    e("global_store_dwordx4 v%d, v[32:35], s[%d:%d] sc1" % (vT, sWS, sWS + 1))
    e("s_mov_b64 exec, -1")
    g.lab(lab)
    e("s_barrier")
    e("s_branch L_disp")

def s3_block():
    g.lab("L_s3")
    e("s_mul_i32 s%d, s%d, %d" % (sT, sINV, H_ST)); e("s_add_u32 s%d, s%d, %d" % (sT, sT, WS_H))
    e("v_add_u32 v50, s%d, v%d" % (sT, vRA))
    e("s_mul_i32 s%d, s%d, %d" % (sT, sINV, X1_ST)); e("s_add_u32 s%d, s%d, %d" % (sT, sT, WS_X1))
    e("v_add_u32 v51, s%d, v%d" % (sT, vRB))
    def issue():
        e("global_load_dwordx4 v[16:19], v50, s[%d:%d] sc1" % (sWS, sWS + 1))
        e("global_load_dword v15, v51, s[%d:%d] sc1" % (sWS, sWS + 1))
    poll(issue, [16, 17, 18, 19, 15], vT)
    ts_dyn(8)
    for i in range(4):
        e("v_and_b32 v%d, 0xffff, v%d" % (28, 16 + i))
        e("v_lshl_or_b32 v%d, v%d, 16, v%d" % (20 + 2 * i, 28, 28))
        e("v_lshrrev_b32 v%d, 16, v%d" % (28, 16 + i))
        e("v_lshl_or_b32 v%d, v%d, 16, v%d" % (21 + 2 * i, 28, 28))
    e("ds_write_b128 v%d, v[20:23]" % vPW)
    e("ds_write_b128 v%d, v[24:27] offset:16" % vPW)
    e("s_waitcnt lgkmcnt(0)")
    g.lg = []
    NI = 28; NB = 6
    for i in range(NB):
        g.lds("ds_read_b64 v[%d:%d], v%d offset:%d" % (52 + 2 * i, 53 + 2 * i, vRW, i * 512), "W%d" % i)
    for jj in range(7):
        g.lds("ds_read_b128 v[%d:%d], v%d offset:%d" % (16 + 4 * jj, 19 + 4 * jj, vRP, jj * 256), "P%d" % jj)
    for i in range(4): e("v_mov_b32 v%d, 0" % (44 + i))
    def ands(i):
        b = 48 + 2 * (i % 2)
        if i % 4 == 0: g.lwait("P%d" % (i // 4))
        e("v_and_b32 v%d, v%d, v%d" % (b, 16 + i, vM01)); e("v_and_b32 v%d, v%d, v%d" % (b + 1, 16 + i, vM23))
    ands(0)
    for i in range(NI):
        if i + 1 < NI: ands(i + 1)
        else: g.nop(2)
        g.lwait("W%d" % i)
        if i == 0: g.nop(2)
        b = 48 + 2 * (i % 2); wb = 52 + 2 * (i % NB)
        e("v_mfma_f32_4x4x4_16b_bf16 v[44:47], v[%d:%d], v[%d:%d], v[44:47]" % (b, b + 1, wb, wb + 1))
        if i + NB < NI:
            g.lds("ds_read_b64 v[%d:%d], v%d offset:%d" % (wb, wb + 1, vRW, (i + NB) * 512), "W%d" % (i + NB))
    g.lg = []
    g.nop(5)
    e("v_permlane32_swap_b32 v44, v46"); e("v_permlane32_swap_b32 v45, v47")
    e("v_add_f32 v44, v44, v46"); e("v_add_f32 v45, v45, v47")
    g.nop(2)
    e("v_permlane16_swap_b32 v44, v45"); e("v_add_f32 v44, v44, v45")
    g.nop(2)
    e("v_add_f32_dpp v44, v44, v44 row_ror:8 row_mask:0xf bank_mask:0xf"); g.nop(2)
    e("v_add_f32_dpp v44, v44, v44 row_ror:4 row_mask:0xf bank_mask:0xf")
    e("ds_write_b32 v%d, v44" % vRR)
    e("s_waitcnt lgkmcnt(0)")
    e("s_barrier")
    ts_dyn(16)
    lab = g.newlab("L_s3w")
    e("s_cmp_lg_u32 s%d, 0" % sW); e("s_cbranch_scc1 %s" % lab)
    e("v_and_b32 v%d, 15, v0" % vT); e("v_lshlrev_b32 v%d, 2, v%d" % (vT, vT)); e("v_add_u32 v%d, %d, v%d" % (vT, RED, vT))
    e("ds_read2_b32 v[16:17], v%d offset0:0 offset1:16" % vT)
    e("ds_read2_b32 v[18:19], v%d offset0:32 offset1:48" % vT)
    e("s_waitcnt lgkmcnt(0)")
    e("v_add_f32 v16, v16, v17"); e("v_add_f32 v18, v18, v19"); e("v_add_f32 v30, v16, v18")
    round_bf16(30)
    e("v_lshlrev_b32 v16, 16, v15"); e("v_and_b32 v17, 0xffff0000, v15")
    e("v_and_b32 v18, 1, v0"); e("v_cmp_eq_u32 vcc, 1, v18"); e("s_nop 1")
    e("v_cndmask_b32 v16, v16, v17, vcc")
    e("v_add_f32 v30, v30, v16")
    pack8(30, 32)
    odd = g.newlab("L_s3odd"); fin = g.newlab("L_s3fin")
    e("s_mov_b32 exec_lo, 0x0101"); e("s_mov_b32 exec_hi, 0")
    e("s_and_b32 s%d, s%d, 1" % (sT, sINV)); e("s_cmp_eq_u32 s%d, 1" % sT); e("s_cbranch_scc1 %s" % odd)
    e("s_mul_i32 s%d, s%d, %d" % (sT, sINV, X2_ST)); e("s_add_u32 s%d, s%d, %d" % (sT, sT, WS_X2))
    e("v_add_u32 v%d, s%d, v%d" % (vT, sT, vRB))
    e("global_store_dwordx4 v%d, v[32:35], s[%d:%d] sc1" % (vT, sWS, sWS + 1))
    e("s_branch %s" % fin)
    g.lab(odd)
    e("s_lshr_b32 s%d, s%d, 1" % (sT, sINV)); e("s_mul_i32 s%d, s%d, 1280" % (sT, sT))
    e("v_add_u32 v%d, s%d, v%d" % (vT, sT, vRB))
    e("global_store_dwordx4 v%d, v[32:35], s[%d:%d]" % (vT, sOUT, sOUT + 1))
    g.lab(fin)
    e("s_mov_b64 exec, -1")
    g.lab(lab)
    e("s_barrier")
    e("s_branch L_disp")

def wload_block():
    g.lab("L_wload")
    n1 = g.newlab("L_wl"); n2 = g.newlab("L_wl")
    e("s_cmp_eq_u32 s%d, 1" % sROLE); e("s_cbranch_scc0 %s" % n1)
    e("s_lshl_b32 s44, s%d, 9" % sKS)
    e("s_lshl_b32 s45, s%d, 7" % sGRP)
    gemv64_wload(16, 1280, 44, 45, vT=16)
    e("s_branch L_disp")
    g.lab(n1)
    e("s_cmp_eq_u32 s%d, 2" % sROLE); e("s_cbranch_scc0 %s" % n2)
    gemv64_wload(20, 3456, None, sGRP, vT=16)
    e("s_branch L_disp")
    g.lab(n2)
    e("s_cmp_eq_u32 s%d, 3" % sROLE); e("s_cbranch_scc0 L_disp")
    s3_wload(vT=16)
    e("s_branch L_disp")

e("s_mov_b32 s%d, 1" % sFIRST)
e("s_mov_b32 s%d, 0" % sBO)
e("s_mov_b32 s%d, 0" % sPH); e("s_mov_b32 s%d, 0" % sINV); e("s_mov_b32 s%d, 0" % sTQ)
e("s_cmp_eq_u32 s%d, 4" % sROLE)
e("s_cbranch_scc0 L_lka")
e("s_waitcnt vmcnt(22)")
signal_cleared()
ts(1)
e("s_mov_b32 s%d, 0" % sOFF)
for t in range(KPRE):
    kload(t)
e("s_waitcnt vmcnt(%d)" % KPRE)
colsum(20)
ts(2)
s4_block()
lka()
lkbv()
att_core()
s1_block(); s2_block(); s3_block()
wload_block()

g.lab("L_disp")
ts_dyn(24)
e("s_add_u32 s%d, s%d, 1" % (sPH, sPH))
e("s_cmp_ge_u32 s%d, 8" % sPH)
e("s_cbranch_scc1 L_fin")
e("s_lshl_b32 s%d, s%d, 2" % (sT, sPH))
e("s_lshr_b32 s%d, 0x33122100, s%d" % (sINV, sT))
e("s_and_b32 s%d, s%d, 15" % (sINV, sINV))
e("s_lshr_b32 s%d, 0x4d, s%d" % (sT, sPH))
e("s_bitcmp1_b32 s%d, 0" % sT)
e("s_cbranch_scc1 L_att")
e("s_cmp_eq_u32 s%d, 1" % sROLE); e("s_cbranch_scc1 L_s1")
e("s_cmp_eq_u32 s%d, 2" % sROLE); e("s_cbranch_scc1 L_s2")
e("s_cmp_eq_u32 s%d, 3" % sROLE); e("s_cbranch_scc1 L_s3")
e("s_cmp_eq_u32 s%d, 4" % sROLE); e("s_cbranch_scc0 L_disp")
e("s_bitcmp1_b32 s%d, 0" % sINV)
e("s_cbranch_scc1 L_disp")
e("s_add_u32 s%d, s%d, 1" % (sTQ, sINV))
e("s_branch L_s4")
g.lab("L_fin")
if OPT["ts"]:
    lab = g.newlab("L_nots")
    e("s_cmp_lg_u32 s%d, 0" % sW); e("s_cbranch_scc1 %s" % lab)
    e("s_lshl_b32 s%d, s2, 7" % sT); e("s_add_u32 s%d, s%d, %d" % (sT, sT, WS_TS))
    e("v_mov_b32 v%d, s%d" % (vT, sT))
    e("s_mov_b64 exec, 1")
    for i in range(32):
        e("v_mov_b32 v%d, s%d" % (vT + 1, sTS + i))
        e("global_store_dword v%d, v%d, s[%d:%d] offset:%d" % (vT, vT + 1, sWS, sWS + 1, 4 * i))
        e("s_nop 1")
    e("s_mov_b64 exec, -1")
    g.lab(lab)
g.lab("L_end")
e("s_endpgm")
e('.section .rodata,"a"')
e(".p2align 6")
e(".amdhsa_kernel %s" % KN)
e("  .amdhsa_next_free_vgpr 512")
e("  .amdhsa_next_free_sgpr 102")
e("  .amdhsa_accum_offset 256")
e("  .amdhsa_group_segment_fixed_size 0")
e("  .amdhsa_kernarg_size 88")
e("  .amdhsa_user_sgpr_count 2")
e("  .amdhsa_user_sgpr_kernarg_segment_ptr 1")
e("  .amdhsa_system_sgpr_workgroup_id_x 1")
e(".end_amdhsa_kernel")
open(sys.argv[1], "w").write(g.text())
```

```python
import sys
from gl import *

OPT = dict(ts=False, dbgq=False)
for a in sys.argv[2:]:
    k, _, v = a.partition("=")
    OPT[k] = (int(v) if v else True)

WS_OA = 0x0;      OA_ST = 0x20000
WS_ML = 0x80000;  ML_ST = 0x800
WS_PB = 0x82000;  PB_ST = 0x5000
WS_H  = 0x96000;  H_ST  = 0x1000
WS_X1 = 0x9A000;  X1_ST = 0x800
WS_X2 = 0x9C000;  X2_ST = 0x800
WS_Q  = 0xC0000;  Q_ST  = 0x2000
WS_QP = 0xD0000;  QP_B = 0x20000
WS_FL = 0xA0000
WS_GO = 0xA1000
WS_TS = 0x180000
LQ = 0
LP = 65536
LM = 147456
COMB = LM;            COMB_ST = 0x840
PD   = LM + 0x1100
RED  = LM + 0x1C00
ST   = LM + 0x2000
CS   = LM + 0x2100
Q2S  = LM + 0x2400
PD3  = LP + 57344
SPIN = int(OPT.get("spin", 200000))
KPRE = int(OPT.get("kpre", 32))
FLAGPOS = int(OPT.get("flagpos", 63))
NWMIN = 16

R4_N = 64
R1_0, R1_N = 0, 80
R2_0, R2_N = 80, 27
R3_0, R3_N = 107, 40
NSET0 = 147
RING = LP

sW = 3
sK, sV, sWT = 4, 8, 12
sWS, sDBG, sOUT, sX = 16, 18, 20, 22
sH, sS, sPH, sINV, sROLE, sJ = 24, 25, 26, 27, 28, 29
sOFF, sSPIN = 30, 31
sT = 32
sC, sONE = 48, 49
sTQ, sLAX = 50, 51
sKS, sGRP = 52, 53
sM0B = 54
sBO = 55
sVO = 56
sLKM = 57
sHAS4, sCLS, sPAR, sRING = 58, 59, 62, 63
sWQ = 96
sPROG = 100
sCLK = 60
sTS = 64
vL, vKV, vM01, vM23, vQ = 0, 1, 2, 3, 4
vRW, vRP, vRR, vRA, vPW, vFL, vRB, vRC = 8, 9, 10, 11, 12, 13, 14, 15
vS = 16
vKT = 32
vD = 48
vE = 56
vT = 58
vACC = 32
vA = 40
vK0 = 64

g = G()
e = g.e

def ts(i):
    if not OPT["ts"]:
        return
    e("s_memrealtime s[%d:%d]" % (sCLK, sCLK + 1))
    e("s_waitcnt lgkmcnt(0)")
    e("s_mov_b32 s%d, s%d" % (sTS + i, sCLK))

def ts_dyn(base):
    if not OPT["ts"]:
        return
    e("s_memrealtime s[%d:%d]" % (sCLK, sCLK + 1))
    e("s_waitcnt lgkmcnt(0)")
    for p in range(8):
        e("s_cmp_eq_u32 s%d, %d" % (sPH, p))
        e("s_cselect_b32 s%d, s%d, s%d" % (sTS + base + p, sCLK, sTS + base + p))

def ts_first(i):
    if not OPT["ts"]:
        return
    e("s_memrealtime s[%d:%d]" % (sCLK, sCLK + 1))
    e("s_waitcnt lgkmcnt(0)")
    e("s_cmp_eq_u32 s%d, 0" % sLKM)
    e("s_cselect_b32 s%d, s%d, s%d" % (sTS + i, sCLK, sTS + i))

def sentinel_check(regs, fail_label, tmp):
    r = list(regs)
    cur = None
    if len(r) == 1:
        cur = r[0]
    else:
        e("v_max_u32 v%d, v%d, v%d" % (tmp, r[0], r[1])); r = r[2:]
        while len(r) >= 2:
            e("v_max3_u32 v%d, v%d, v%d, v%d" % (tmp, tmp, r[0], r[1])); r = r[2:]
        if r:
            e("v_max_u32 v%d, v%d, v%d" % (tmp, tmp, r[0]))
        cur = tmp
    e("v_cmp_eq_u32 vcc, -1, v%d" % cur)
    e("s_nop 1")
    e("s_cmp_lg_u64 vcc, 0")
    e("s_cbranch_scc1 %s" % fail_label)

def poll(issue, regs, tmp):
    top = g.newlab("L_poll"); again = g.newlab("L_again"); done = g.newlab("L_pdone")
    e("s_mov_b32 s%d, 0" % sSPIN)
    g.lab(top)
    issue()
    e("s_waitcnt vmcnt(0)")
    sentinel_check(regs, again, tmp)
    e("s_branch %s" % done)
    g.lab(again)
    e("s_add_u32 s%d, s%d, 1" % (sSPIN, sSPIN))
    e("s_cmp_lt_u32 s%d, %d" % (sSPIN, SPIN))
    e("s_cbranch_scc1 %s" % top)
    g.lab(done)

def counter_spin():
    top = g.newlab("L_cnt"); done = g.newlab("L_cdone")
    e("s_mov_b32 s%d, 0" % sSPIN)
    e("v_mov_b32 v%d, 0" % vT)
    g.lab(top)
    e("global_load_dword v%d, v%d, s[%d:%d] sc1" % (vT + 1, vT, sDBG, sDBG + 1))
    e("s_waitcnt vmcnt(0)")
    e("v_readfirstlane_b32 s%d, v%d" % (sT, vT + 1))
    e("s_add_u32 s%d, s%d, 1" % (sSPIN, sSPIN))
    e("s_cmp_ge_u32 s%d, %d" % (sSPIN, SPIN))
    e("s_cbranch_scc1 %s" % done)
    e("s_cmp_lt_u32 s%d, 256" % sT)
    e("s_cbranch_scc1 %s" % top)
    g.lab(done)

e("; @launch grid=(256,1,1) block=(256,1,1) lds=163840")
e('.amdgcn_target "amdgcn-amd-amdhsa--gfx950"')
e(".text")
e(".globl %s" % KN)
e(".p2align 8")
e(".type %s,@function" % KN)
g.lab(KN)
e("s_cmp_ge_u32 s2, 256")
e("s_cbranch_scc1 L_end")
e("s_load_dwordx4 s[32:35], s[0:1], 0")
e("s_load_dwordx4 s[36:39], s[0:1], 16")
e("s_load_dwordx2 s[40:41], s[0:1], 32")
e("s_load_dwordx4 s[44:47], s[0:1], 48")
e("s_load_dwordx4 s[56:59], s[0:1], 64")
e("s_load_dwordx2 s[%d:%d], s[0:1], 80" % (sWS, sWS + 1))
e("v_lshrrev_b32 v1, 6, v0")
e("v_and_b32 v0, 63, v0")
e("v_readfirstlane_b32 s%d, v1" % sW)
e("s_and_b32 s%d, s2, 31" % sH)
e("s_lshr_b32 s%d, s2, 5" % sS)
if OPT["ts"]:
    for i in range(32):
        e("s_mov_b32 s%d, 0" % (sTS + i))
e("s_mov_b32 s%d, 0x3e0293ee" % sC)
import struct, math
cval = struct.unpack("<I", struct.pack("<f", (128 ** -0.5) * math.log2(math.e)))[0]
g.L[-1] = "s_mov_b32 s%d, 0x%08x" % (sC, cval)
e("s_mov_b32 s%d, 0x3f803f80" % sONE)
e("v_lshlrev_b32 v%d, 4, v0" % vKV)
e("s_lshl_b32 s%d, s%d, 10" % (sM0B, sW))
e("v_add_u32 v%d, s%d, v%d" % (vKV, sM0B, vKV))
e("s_lshl_b32 s%d, s%d, 14" % (sM0B, sW))
e("v_and_b32 v%d, 3, v0" % vT)
e("v_mov_b32 v%d, 0" % vM01); e("v_mov_b32 v%d, 0" % vM23)
e("v_mov_b32 v%d, 0xffff" % (vT + 1)); e("v_mov_b32 v%d, 0xffff0000" % (vT + 2))
for val, dst, src in ((0, vM01, vT + 1), (1, vM01, vT + 2), (2, vM23, vT + 1), (3, vM23, vT + 2)):
    e("v_cmp_eq_u32 vcc, %d, v%d" % (val, vT))
    e("s_nop 1")
    e("v_cndmask_b32 v%d, v%d, v%d, vcc" % (dst, dst, src))
e("s_waitcnt lgkmcnt(0)")
ts(0)
e("s_mov_b64 s[%d:%d], s[32:33]" % (sX, sX + 1))
e("s_mov_b64 s[%d:%d], s[56:57]" % (sOUT, sOUT + 1))
e("s_mov_b64 s[%d:%d], s[58:59]" % (sDBG, sDBG + 1))
e("s_lshl_b32 s42, s%d, 21" % sH)
e("s_lshl_b32 s43, s%d, 18" % sS)
e("s_add_u32 s42, s42, s43")
e("s_add_u32 s%d, s34, s42" % sK); e("s_addc_u32 s%d, s35, 0" % (sK + 1))
e("s_mov_b32 s%d, 0x4040000" % (sK + 2)); e("s_mov_b32 s%d, 0x20000" % (sK + 3))
e("s_add_u32 s%d, s36, s42" % sV); e("s_addc_u32 s%d, s37, 0" % (sV + 1))
e("s_mov_b32 s%d, 0x4040000" % (sV + 2)); e("s_mov_b32 s%d, 0x20000" % (sV + 3))
e("s_mov_b64 s[%d:%d], s[38:39]" % (sWQ, sWQ + 1))
e("s_mov_b32 s%d, %d" % (sWQ + 2, 640 * 8192)); e("s_mov_b32 s%d, 0x20000" % (sWQ + 3))
e("s_cmp_lg_u32 s%d, 0" % sW)
e("s_cbranch_scc1 L_noclear")
e("s_mul_i32 s42, s2, 3072")
e("v_lshlrev_b32 v%d, 4, v0" % vT)
e("v_add_u32 v%d, s42, v%d" % (vT, vT))
for i in range(4):
    e("v_mov_b32 v%d, -1" % (vKT + i))
for i in range(3):
    e("global_store_dwordx4 v%d, v[%d:%d], s[%d:%d] offset:%d sc1" % (vT, vKT, vKT + 3, sWS, sWS + 1, i * 1024))
def qp_own_addr(dst):
    e("s_lshl_b32 s42, s%d, 3" % sH); e("s_add_u32 s42, s42, s%d" % sS); e("s_lshl_b32 s42, s42, 9")
    e("s_add_u32 s42, s42, %d" % WS_QP)
    e("v_lshrrev_b32 v%d, 5, v0" % dst); e("v_mul_u32_u24 v%d, %d, v%d" % (dst, QP_B, dst))
    e("v_and_b32 v%d, 31, v0" % (dst + 1)); e("v_lshl_add_u32 v%d, v%d, 4, v%d" % (dst, dst + 1, dst))
    e("v_add_u32 v%d, s42, v%d" % (dst, dst))
qp_own_addr(vT)
e("global_store_dwordx4 v%d, v[%d:%d], s[%d:%d] sc1" % (vT, vKT, vKT + 3, sWS, sWS + 1))
e("s_cmp_ge_u32 s2, %d" % R4_N)
e("s_cbranch_scc1 L_noclear")
e("v_lshrrev_b32 v%d, 3, v0" % vT); e("v_mul_u32_u24 v%d, %d, v%d" % (vT, Q_ST, vT))
e("v_and_b32 v%d, 7, v0" % (vT + 1)); e("v_lshl_add_u32 v%d, v%d, 4, v%d" % (vT, vT + 1, vT))
e("s_lshl_b32 s42, s2, 7"); e("s_add_u32 s42, s42, %d" % WS_Q); e("v_add_u32 v%d, s42, v%d" % (vT, vT))
e("s_mov_b32 exec_hi, 0")
e("global_store_dwordx4 v%d, v[%d:%d], s[%d:%d] sc1" % (vT, vKT, vKT + 3, sWS, sWS + 1))
e("s_mov_b64 exec, -1")
g.lab("L_noclear")
vXA = 16
vXR = 32
e("v_lshlrev_b32 v%d, 4, v0" % vT)
for b in range(2):
    for i in range(4): e("v_mov_b32 v%d, 0" % (vXA + 8 * b + 4 + i))
for b in range(2):
    e("global_load_dwordx4 v[%d:%d], v%d, s[%d:%d] offset:%d" % (vXA + 8 * b, vXA + 8 * b + 3, vT, sX, sX + 1, b * 1280))
e("s_mov_b64 exec, 0xffff")
for b in range(2):
    e("global_load_dwordx4 v[%d:%d], v%d, s[%d:%d] offset:%d" % (vXA + 8 * b + 4, vXA + 8 * b + 7, vT, sX, sX + 1, b * 1280 + 1024))
e("s_mov_b64 exec, -1")
e("s_mul_i32 s42, s%d, 80" % sS); e("s_mul_i32 s43, s%d, 20" % sW); e("s_add_u32 s42, s42, s43")
e("v_lshrrev_b32 v%d, 4, v0" % vT); e("v_add_u32 v%d, s42, v%d" % (vT, vT))
e("v_lshlrev_b32 v%d, 1, v%d" % (vT + 1, vT))
for b in range(2):
    for i in range(5):
        e("global_load_ushort v%d, v%d, s[%d:%d] offset:%d" % (vXR + 5 * b + i, vT + 1, sX, sX + 1, b * 1280 + 8 * i))
e("v_lshlrev_b32 v%d, 13, v%d" % (vT, vT))
e("v_and_b32 v%d, 15, v0" % (vT + 1)); e("v_lshl_add_u32 v%d, v%d, 4, v%d" % (vT, vT + 1, vT))
e("s_lshl_b32 s42, s%d, 8" % sH)
for i in range(5):
    e("buffer_load_dwordx4 a[%d:%d], v%d, s[%d:%d], s42 offen" % (4 * i, 4 * i + 3, vT, sWQ, sWQ + 3))
    e("s_add_u32 s42, s42, %d" % (4 * 8192))
e("s_mov_b32 s%d, 0" % sOFF)
for t in range(KPRE):
    e("buffer_load_dwordx4 v[%d:%d], v%d, s[%d:%d], s%d offen nt" % (vK0 + 4 * t, vK0 + 4 * t + 3, vKV, sK, sK + 3, sOFF))
    e("s_add_u32 s%d, s%d, 4096" % (sOFF, sOFF))

e("s_mov_b32 s%d, 0" % sROLE); e("s_mov_b32 s%d, 0" % sJ)
e("s_mov_b32 s%d, 0" % sKS); e("s_mov_b32 s%d, 0" % sGRP)
e("s_mov_b32 s%d, 0" % sHAS4); e("s_mov_b32 s%d, 0" % sCLS); e("s_mov_b32 s%d, 0" % sPAR); e("s_mov_b32 s%d, 0" % sRING)
e("s_mov_b64 s[%d:%d], s[38:39]" % (sWT, sWT + 1))
e("s_mov_b32 s%d, %d" % (sWT + 2, 640 * 8192)); e("s_mov_b32 s%d, 0x20000" % (sWT + 3))
OP_ATT, OP_S1, OP_S2, OP_S3, OP_S4, OP_RING, OP_LK = 1, 2, 3, 4, 5, 6, 7
def prog(steps):
    v = 0
    for i, (op, inv) in enumerate(steps):
        v |= (op | (inv << 4)) << (8 * i)
    e("s_mov_b32 s%d, 0x%08x" % (sPROG, v & 0xffffffff)); e("s_mov_b32 s%d, 0x%08x" % (sPROG + 1, v >> 32))
prog([(OP_RING, 2), (OP_ATT, 1), (OP_LK, 3)])
def in_range(lo, n, skip):
    e("s_sub_u32 s42, s2, %d" % lo)
    e("s_cmp_lt_u32 s42, %d" % n)
    e("s_cbranch_scc0 %s" % skip)

def gemv64_consts(NL, rowb):
    KW = 8 * NL
    e("s_mul_i32 s42, s%d, %d" % (sW, NL * 1024))
    e("s_add_u32 s42, s42, %d" % LP)
    e("v_lshlrev_b32 v%d, 4, v0" % vRW)
    e("v_add_u32 v%d, s42, v%d" % (vRW, vRW))
    e("v_lshrrev_b32 v%d, 3, v0" % vT)
    e("v_mul_u32_u24 v%d, %d, v%d" % (vRP, NL * 4, vT))
    e("s_mul_i32 s42, s%d, %d" % (sW, KW * 4))
    e("s_add_u32 s42, s42, %d" % PD)
    e("v_add_u32 v%d, s42, v%d" % (vRP, vRP))
    e("v_and_b32 v%d, 7, v0" % vRR)
    e("v_lshlrev_b32 v%d, 3, v%d" % (vRR, vRR))
    e("v_lshrrev_b32 v%d, 5, v0" % (vT + 1))
    e("v_lshl_add_u32 v%d, v%d, 2, v%d" % (vRR, vT + 1, vRR))
    e("v_bfe_u32 v%d, v0, 4, 1" % (vT + 1))
    e("v_add_u32 v%d, v%d, v%d" % (vRR, vRR, vT + 1))
    e("v_bfe_u32 v%d, v0, 3, 1" % (vT + 1))
    e("v_lshl_add_u32 v%d, v%d, 1, v%d" % (vRR, vT + 1, vRR))
    e("s_lshl_b32 s42, s%d, 8" % sW)
    e("s_add_u32 s42, s42, %d" % RED)
    e("v_lshlrev_b32 v%d, 2, v%d" % (vRR, vRR))
    e("v_add_u32 v%d, s42, v%d" % (vRR, vRR))

def gemv64_wload(NL, rowb, k0_expr_sreg, cb_sreg, vT=vT, srd=sWT):
    KW = 8 * NL
    e("v_lshrrev_b32 v%d, 3, v0" % vT)
    e("v_mul_u32_u24 v%d, %d, v%d" % (vT, NL * rowb, vT)) if NL * rowb < (1 << 24) else None
    e("v_and_b32 v%d, 7, v0" % (vT + 1))
    e("v_lshl_add_u32 v%d, v%d, 4, v%d" % (vT, vT + 1, vT))
    e("s_mul_i32 s42, s%d, %d" % (sW, KW))
    if k0_expr_sreg is not None:
        e("s_add_u32 s42, s42, s%d" % k0_expr_sreg)
    e("s_mul_i32 s42, s42, %d" % rowb)
    e("s_add_u32 s42, s42, s%d" % cb_sreg)
    e("s_mul_i32 s43, s%d, %d" % (sW, NL * 1024))
    e("s_add_u32 s43, s43, %d" % LP)
    for i in range(NL):
        e("s_mov_b32 m0, s43")
        e("s_add_u32 s43, s43, 1024")
        e("buffer_load_dwordx4 v%d, s[%d:%d], s42 offen nt lds" % (vT, srd, srd + 3))
        e("s_add_u32 s42, s42, %d" % rowb)

def x160_consts():
    e("v_min_u32 v%d, 39, v0" % vT)
    e("v_lshlrev_b32 v%d, 2, v%d" % (vT, vT))
    e("s_mul_i32 s42, s%d, 160" % sW)
    e("v_add_u32 v%d, s42, v%d" % (vT, vT))
    e("v_lshlrev_b32 v%d, 1, v%d" % (vRB, vT))
    e("v_lshlrev_b32 v%d, 2, v%d" % (vRA, vT))
    e("v_add_u32 v%d, %d, v%d" % (vPW, PD, vRA))
    e("v_mov_b32 v%d, 0" % vFL)
    e("v_cmp_gt_u32 vcc, 40, v0")
    e("s_nop 1")
    e("v_cndmask_b32 v%d, v%d, 1.0, vcc" % (vFL, vFL))

def s1_consts():
    gemv64_consts(16, 1280)
    e("s_lshl_b32 s42, s%d, 2" % sKS); e("s_add_u32 s42, s42, s%d" % sW)
    e("v_lshrrev_b32 v%d, 5, v0" % vT)
    e("v_and_b32 v%d, 31, v0" % (vT + 1))
    e("v_lshlrev_b32 v%d, 4, v%d" % (vT + 1, vT + 1))
    e("v_lshl_add_u32 v%d, v%d, 9, v%d" % (vRA, vT, vT + 1))
    e("s_lshl_b32 s43, s42, 12"); e("v_add_u32 v%d, s43, v%d" % (vRA, vRA))
    e("v_lshlrev_b32 v%d, 5, v%d" % (vRB, vT))
    e("s_lshl_b32 s43, s42, 6"); e("v_add_u32 v%d, s43, v%d" % (vRB, vRB))
    e("v_lshl_add_u32 v%d, v%d, 2, v%d" % (vPW, vT, vT + 1))
    e("s_lshl_b32 s43, s%d, 9" % sW); e("s_add_u32 s43, s43, %d" % PD)
    e("v_add_u32 v%d, s43, v%d" % (vPW, vPW))

def s4_consts():
    gemv64_consts(20, 8192); x160_consts()

in_range(R1_0, R1_N, "L_nr1")
e("s_mov_b32 s%d, 1" % sROLE); e("s_mov_b32 s%d, s42" % sJ)
e("s_mov_b64 s[%d:%d], s[40:41]" % (sWT, sWT + 1)); e("s_mov_b32 s%d, %d" % (sWT + 2, 4096 * 1280))
e("s_and_b32 s%d, s%d, 7" % (sKS, sJ))
e("s_lshr_b32 s%d, s%d, 3" % (sGRP, sJ))
prog([(OP_S1, 0), (OP_ATT, 1), (OP_S1, 2), (OP_S1, 1), (OP_ATT, 3), (OP_S1, 3)])
e("s_cmp_ge_u32 s2, %d" % R4_N)
e("s_cbranch_scc1 L_roledone")
e("s_mov_b32 s%d, 1" % sHAS4)
prog([(OP_S1, 0), (OP_S4, 1), (OP_ATT, 1), (OP_S1, 2), (OP_S1, 1), (OP_S4, 3), (OP_ATT, 3), (OP_S1, 3)])
e("s_branch L_roledone")
g.lab("L_nr1")
in_range(R2_0, R2_N, "L_nr2")
e("s_mov_b32 s%d, 2" % sROLE); e("s_mov_b32 s%d, s42" % sJ)
e("s_mov_b64 s[%d:%d], s[44:45]" % (sWT, sWT + 1)); e("s_mov_b32 s%d, %d" % (sWT + 2, 640 * 3456))
e("s_lshl_b32 s%d, s%d, 7" % (sGRP, sJ))
gemv64_consts(20, 3456); x160_consts()
prog([(OP_S2, 0), (OP_ATT, 1), (OP_S2, 2), (OP_S2, 1), (OP_ATT, 3), (OP_S2, 3)])
e("s_branch L_roledone")
g.lab("L_nr2")
in_range(R3_0, R3_N, "L_nr3")
prog([(OP_S3, 0), (OP_ATT, 1), (OP_S3, 2), (OP_S3, 1), (OP_ATT, 3), (OP_S3, 3)])
e("s_mov_b32 s%d, 3" % sROLE); e("s_mov_b32 s%d, s42" % sJ)
e("s_mov_b64 s[%d:%d], s[46:47]" % (sWT, sWT + 1)); e("s_mov_b32 s%d, %d" % (sWT + 2, 1728 * 1280))
e("s_mul_i32 s42, s%d, 14336" % sW); e("s_add_u32 s42, s42, %d" % LP)
e("v_lshlrev_b32 v%d, 3, v0" % vRW); e("v_add_u32 v%d, s42, v%d" % (vRW, vRW))
e("s_mul_i32 s42, s%d, 1792" % sW); e("s_add_u32 s42, s42, %d" % PD3)
e("v_lshrrev_b32 v%d, 2, v0" % vT); e("v_lshlrev_b32 v%d, 4, v%d" % (vRP, vT)); e("v_add_u32 v%d, s42, v%d" % (vRP, vRP))
e("v_min_u32 v%d, 53, v0" % vT)
e("v_lshlrev_b32 v%d, 5, v%d" % (vPW, vT)); e("v_add_u32 v%d, s42, v%d" % (vPW, vPW))
e("v_lshlrev_b32 v%d, 4, v%d" % (vRA, vT))
e("s_mul_i32 s43, s%d, 864" % sW); e("v_add_u32 v%d, s43, v%d" % (vRA, vRA))
e("v_and_b32 v%d, 3, v0" % vT); e("v_lshlrev_b32 v%d, 2, v%d" % (vT, vT))
e("v_lshrrev_b32 v%d, 4, v0" % (vT + 1)); e("v_add_u32 v%d, v%d, v%d" % (vT, vT, vT + 1))
e("v_lshlrev_b32 v%d, 2, v%d" % (vRR, vT))
e("s_lshl_b32 s43, s%d, 6" % sW); e("s_add_u32 s43, s43, %d" % RED); e("v_add_u32 v%d, s43, v%d" % (vRR, vRR))
e("v_and_b32 v%d, 14, v0" % vT); e("v_lshlrev_b32 v%d, 1, v%d" % (vRB, vT))
e("s_lshl_b32 s43, s%d, 5" % sJ); e("v_add_u32 v%d, s43, v%d" % (vRB, vRB))
e("v_lshlrev_b32 v%d, 2, v0" % vT); e("v_add_u32 v%d, s42, v%d" % (vT, vT))
e("v_mov_b32 v%d, 0" % (vT + 1))
e("s_mov_b64 exec, 0xffff")
e("ds_write_b32 v%d, v%d offset:1728" % (vT, vT + 1))
e("s_mov_b64 exec, -1")
e("s_branch L_roledone")
g.lab("L_nr3")
e("s_mov_b32 s%d, 1" % sCLS)
g.lab("L_roledone")


vP, vGA, vGAA, vGW = 16, 36, 44, 48

def signal_cleared():
    lab = g.newlab("L_nosig")
    e("s_cmp_lg_u32 s%d, 0" % sW)
    e("s_cbranch_scc1 %s" % lab)
    e("v_mov_b32 v%d, 0" % vT); e("v_mov_b32 v%d, 1" % (vT + 1))
    e("s_mov_b64 exec, 1")
    e("global_atomic_add v%d, v%d, s[%d:%d] sc1" % (vT, vT + 1, sDBG, sDBG + 1))
    e("s_mov_b64 exec, -1")
    g.lab(lab)

def reduce8_to_col(acc, out):
    g.nop(5)
    for i in range(4):
        e("v_permlane32_swap_b32 v%d, v%d" % (acc + i, acc + 4 + i))
    for i in range(4):
        e("v_add_f32 v%d, v%d, v%d" % (acc + i, acc + i, acc + 4 + i))
    g.nop(1)
    e("v_permlane16_swap_b32 v%d, v%d" % (acc, acc + 1))
    e("v_permlane16_swap_b32 v%d, v%d" % (acc + 2, acc + 3))
    e("v_add_f32 v%d, v%d, v%d" % (acc, acc, acc + 1))
    e("v_add_f32 v%d, v%d, v%d" % (acc + 2, acc + 2, acc + 3))
    g.nop(2)
    e("v_add_f32_dpp v%d, v%d, v%d row_ror:8 row_mask:0xf bank_mask:0x3" % (out, acc, acc))
    e("v_add_f32_dpp v%d, v%d, v%d row_ror:8 row_mask:0xf bank_mask:0xc" % (out, acc + 2, acc + 2))

def gemv64(NL, ones=False):
    g.lg = []
    for i in range(min(4, NL)):
        g.lds("ds_read_b128 v[%d:%d], v%d offset:%d" % (vGW + 4 * i, vGW + 4 * i + 3, vRW, i * 1024), "W%d" % i)
    if not ones:
        for j in range(NL // 4):
            g.lds("ds_read_b128 v[%d:%d], v%d offset:%d" % (vP + 4 * j, vP + 4 * j + 3, vRP, j * 16), "P%d" % j)
    for i in range(8):
        e("v_mov_b32 v%d, 0" % (vGA + i))
    def ands(i):
        b = vGAA + 2 * (i % 2)
        if ones:
            if i < 2:
                e("v_and_b32 v%d, s%d, v%d" % (b, sONE, vM01)); e("v_and_b32 v%d, s%d, v%d" % (b + 1, sONE, vM23))
        else:
            if i % 4 == 0:
                g.lwait("P%d" % (i // 4))
            e("v_and_b32 v%d, v%d, v%d" % (b, vP + i, vM01)); e("v_and_b32 v%d, v%d, v%d" % (b + 1, vP + i, vM23))
    ands(0)
    for i in range(NL):
        if i + 1 < NL:
            ands(i + 1)
        if ones and i >= 1:
            pass
        g.lwait("W%d" % i)
        if i == 0 or ones:
            g.nop(2)
        b = vGAA + 2 * (i % 2); wb = vGW + 4 * (i % 4)
        e("v_mfma_f32_4x4x4_16b_bf16 v[%d:%d], v[%d:%d], v[%d:%d], v[%d:%d]" % (vGA, vGA + 3, b, b + 1, wb, wb + 1, vGA, vGA + 3))
        e("v_mfma_f32_4x4x4_16b_bf16 v[%d:%d], v[%d:%d], v[%d:%d], v[%d:%d]" % (vGA + 4, vGA + 7, b, b + 1, wb + 2, wb + 3, vGA + 4, vGA + 7))
        if i + 4 < NL:
            g.lds("ds_read_b128 v[%d:%d], v%d offset:%d" % (wb, wb + 3, vRW, (i + 4) * 1024), "W%d" % (i + 4))
    reduce8_to_col(vGA, vGAA)
    e("ds_write_b32 v%d, v%d" % (vRR, vGAA))
    g.lg = []

def wave_sum2(a, b, t):
    for ctl in ("quad_perm:[1,0,3,2]", "quad_perm:[2,3,0,1]", "row_half_mirror", "row_mirror"):
        g.nop(1)
        e("v_add_f32_dpp v%d, v%d, v%d %s row_mask:0xf bank_mask:0xf" % (a, a, a, ctl))
        e("v_add_f32_dpp v%d, v%d, v%d %s row_mask:0xf bank_mask:0xf" % (b, b, b, ctl))
    g.nop(2)
    e("v_permlane32_swap_b32 v%d, v%d" % (a, b))
    e("v_add_f32 v%d, v%d, v%d" % (a, a, b))
    e("v_mov_b32 v%d, v%d" % (t, a))
    g.nop(2)
    e("v_permlane16_swap_b32 v%d, v%d" % (a, t))
    e("v_add_f32 v%d, v%d, v%d" % (a, a, t))

def x_to_p_and_stats(x0):
    for i in range(4):
        e("v_cvt_pk_bf16_f32 v%d, v%d, v%d" % (vGW + i, x0 + i, x0 + i))
    e("ds_write_b128 v%d, v[%d:%d]" % (vPW, vGW, vGW + 3))
    e("v_add_f32 v%d, v%d, v%d" % (vT, x0, x0 + 1))
    e("v_add_f32 v%d, v%d, v%d" % (vT + 1, x0 + 2, x0 + 3))
    e("v_mul_f32 v%d, v%d, v%d" % (vT + 2, x0, x0))
    e("v_add_f32 v%d, v%d, v%d" % (vT, vT, vT + 1))
    for i in (1, 2, 3):
        e("v_fmac_f32 v%d, v%d, v%d" % (vT + 2, x0 + i, x0 + i))
    e("v_mul_f32 v%d, v%d, v%d" % (vT, vT, vFL))
    e("v_mul_f32 v%d, v%d, v%d" % (vT + 2, vT + 2, vFL))
    wave_sum2(vT, vT + 2, vT + 1)
    e("v_lshrrev_b32 v%d, 5, v0" % (vT + 1))
    e("v_lshlrev_b32 v%d, 2, v%d" % (vT + 1, vT + 1))
    e("s_lshl_b32 s%d, s%d, 3" % (sT, sW)); e("s_add_u32 s%d, s%d, %d" % (sT, sT, ST))
    e("v_add_u32 v%d, s%d, v%d" % (vT + 1, sT, vT + 1))
    e("s_mov_b32 exec_lo, 1"); e("s_mov_b32 exec_hi, 1")
    e("ds_write_b32 v%d, v%d" % (vT + 1, vT))
    e("s_mov_b64 exec, -1")
    e("s_waitcnt lgkmcnt(0)")

def final_col_sum(y, with_ln):
    e("v_lshlrev_b32 v%d, 2, v0" % vT)
    e("v_add_u32 v%d, %d, v%d" % (vT + 1, RED, vT))
    e("ds_read2_b32 v[%d:%d], v%d offset0:0 offset1:64" % (16, 17, vT + 1))
    e("ds_read2_b32 v[%d:%d], v%d offset0:128 offset1:192" % (18, 19, vT + 1))
    if with_ln:
        e("v_mov_b32 v%d, %d" % (vT + 2, ST))
        e("ds_read_b128 v[20:23], v%d" % (vT + 2))
        e("ds_read_b128 v[24:27], v%d offset:16" % (vT + 2))
        e("v_add_u32 v%d, %d, v%d" % (vT + 1, CS, vT))
        e("ds_read_b32 v28, v%d" % (vT + 1))
    e("s_waitcnt lgkmcnt(0)")
    e("v_add_f32 v16, v16, v17"); e("v_add_f32 v18, v18, v19"); e("v_add_f32 v%d, v16, v18" % y)
    if with_ln:
        e("v_add_f32 v20, v20, v22"); e("v_add_f32 v24, v24, v26"); e("v_add_f32 v20, v20, v24")
        e("v_add_f32 v21, v21, v23"); e("v_add_f32 v25, v25, v27"); e("v_add_f32 v21, v21, v25")
        e("v_mul_f32 v20, 0x3acccccd, v20")
        e("v_mul_f32 v21, 0x3acccccd, v21")
        e("v_fma_f32 v21, -v20, v20, v21")
        e("v_add_f32 v21, 0x3727c5ac, v21")
        e("v_rsq_f32 v21, v21")
        e("v_fma_f32 v%d, -v20, v28, v%d" % (y, y))
        e("v_mul_f32 v%d, v%d, v21" % (y, y))

def round_bf16(r, t=None):
    e("v_cvt_pk_bf16_f32 v%d, v%d, v%d" % (r, r, r))
    e("v_and_b32 v%d, 0xffff0000, v%d" % (r, r))

def pack_pair_even(y, out):
    g.nop(2)
    e("v_mov_b32_dpp v%d, v%d quad_perm:[1,0,3,2] row_mask:0xf bank_mask:0xf" % (out, y))
    e("v_cvt_pk_bf16_f32 v%d, v%d, v%d" % (out, y, out))

def pack8(y, out):
    g.nop(2)
    e("v_mov_b32_dpp v%d, v%d quad_perm:[1,0,3,2] row_mask:0xf bank_mask:0xf" % (out, y))
    e("v_cvt_pk_bf16_f32 v%d, v%d, v%d" % (out, y, out))
    g.nop(2)
    e("v_mov_b32_dpp v%d, v%d quad_perm:[2,3,0,1] row_mask:0xf bank_mask:0xf" % (out + 1, out))
    e("v_mov_b32_dpp v%d, v%d row_shl:4 row_mask:0xf bank_mask:0xf" % (out + 2, out))
    g.nop(1)
    e("v_mov_b32_dpp v%d, v%d row_shl:4 row_mask:0xf bank_mask:0xf" % (out + 3, out + 1))

def exec8():
    e("s_mov_b32 exec_lo, 0x01010101"); e("s_mov_b32 exec_hi, 0x01010101")

def colsum(NL):
    gemv64(NL, ones=True)
    e("s_waitcnt lgkmcnt(0)")
    e("s_barrier")
    lab = g.newlab("L_cs")
    e("s_cmp_lg_u32 s%d, 0" % sW)
    e("s_cbranch_scc1 %s" % lab)
    final_col_sum(30, False)
    e("v_add_u32 v%d, %d, v%d" % (vT + 1, CS, vT))
    e("ds_write_b32 v%d, v30" % (vT + 1))
    e("s_waitcnt lgkmcnt(0)")
    g.lab(lab)
    e("s_barrier")

def s3_wload(vT=vT):
    e("v_bfe_u32 v%d, v0, 1, 4" % vT)
    e("v_mul_u32_u24 v%d, %d, v%d" % (vT, 4 * 1280, vT))
    e("v_lshrrev_b32 v%d, 5, v0" % (vT + 1))
    e("v_mul_u32_u24 v%d, 1280, v%d" % (vT + 1, vT + 1))
    e("v_add_u32 v%d, v%d, v%d" % (vT, vT, vT + 1))
    e("v_and_b32 v%d, 1, v0" % (vT + 1))
    e("v_lshl_add_u32 v%d, v%d, 4, v%d" % (vT, vT + 1, vT))
    e("s_mul_i32 s42, s%d, %d" % (sW, 432 * 1280))
    e("s_lshl_b32 s43, s%d, 5" % sJ)
    e("s_add_u32 s42, s42, s43")
    e("s_mul_i32 s43, s%d, 14336" % sW); e("s_add_u32 s43, s43, %d" % LP)
    for ld in range(14):
        i0 = 2 * ld
        rowoff = (64 * (i0 // 4) + (i0 % 4)) * 1280
        e("s_mov_b32 m0, s43")
        e("s_add_u32 s44, s42, %d" % rowoff)
        e("buffer_load_dwordx4 v%d, s[%d:%d], s44 offen nt lds" % (vT, sWT, sWT + 3))
        e("s_add_u32 s43, s43, 1024")

def s4_block():
    g.lab("L_s4")
    e("s_mov_b32 s%d, s%d" % (sTQ, sINV))
    s4_consts()
    nc = g.newlab("L_s4nc")
    e("s_cmp_lg_u32 s%d, 1" % sTQ); e("s_cbranch_scc1 %s" % nc)
    e("s_waitcnt vmcnt(0)")
    colsum(20)
    g.lab(nc)
    e("s_sub_u32 s%d, s%d, 1" % (sT, sTQ)); e("s_mul_i32 s%d, s%d, %d" % (sT, sT, X2_ST)); e("s_add_u32 s%d, s%d, %d" % (sT, sT, WS_X2))
    e("v_add_u32 v%d, s%d, v%d" % (50, sT, vRB))
    poll(lambda: e("global_load_dwordx2 v[48:49], v50, s[%d:%d] sc1" % (sWS, sWS + 1)), [48, 49], vT)
    ts_s4(0)
    e("v_lshlrev_b32 v16, 16, v48"); e("v_and_b32 v17, 0xffff0000, v48")
    e("v_lshlrev_b32 v18, 16, v49"); e("v_and_b32 v19, 0xffff0000, v49")
    x_to_p_and_stats(16)
    gemv64(20)
    e("s_waitcnt lgkmcnt(0)")
    e("s_barrier")
    lab = g.newlab("L_s4w")
    e("s_cmp_lg_u32 s%d, 0" % sW)
    e("s_cbranch_scc1 %s" % lab)
    final_col_sum(30, True)
    pack8(30, 32)
    e("s_mul_i32 s%d, s%d, %d" % (sT, sTQ, Q_ST)); e("s_add_u32 s%d, s%d, %d" % (sT, sT, WS_Q))
    e("s_lshl_b32 s%d, s%d, 7" % (sT + 1, sJ)); e("s_add_u32 s%d, s%d, s%d" % (sT, sT, sT + 1))
    e("v_lshlrev_b32 v%d, 1, v0" % vT); e("v_add_u32 v%d, s%d, v%d" % (vT, sT, vT))
    exec8()
    e("global_store_dwordx4 v%d, v[32:35], s[%d:%d] sc1" % (vT, sWS, sWS + 1))
    e("s_mov_b64 exec, -1")
    g.lab(lab)
    ts_s4(1)
    e("s_cmp_eq_u32 s%d, 3" % sTQ)
    e("s_cselect_b32 s%d, 1, 0" % sLAX)
    e("s_barrier")
    e("s_branch L_disp")

def ts_s4(which):
    if not OPT["ts"]:
        return
    e("s_memrealtime s[%d:%d]" % (sCLK, sCLK + 1))
    e("s_waitcnt lgkmcnt(0)")
    for tq, idx in ((1, 2 if which == 0 else 30), (3, 3 if which == 0 else 31)):
        e("s_cmp_eq_u32 s%d, %d" % (sTQ, tq))
        e("s_cselect_b32 s%d, s%d, s%d" % (sTS + idx, sCLK, sTS + idx))

def allreduce_rows(regs, tmps):
    for r, t in zip(regs, tmps): e("v_mov_b32 v%d, v%d" % (t, r))
    g.nop(2)
    for r, t in zip(regs, tmps): e("v_permlane16_swap_b32 v%d, v%d" % (r, t))
    for r, t in zip(regs, tmps): e("v_add_f32 v%d, v%d, v%d" % (r, r, t))
    for r, t in zip(regs, tmps): e("v_mov_b32 v%d, v%d" % (t, r))
    g.nop(2)
    for r, t in zip(regs, tmps): e("v_permlane32_swap_b32 v%d, v%d" % (r, t))
    for r, t in zip(regs, tmps): e("v_add_f32 v%d, v%d, v%d" % (r, r, t))

def q_initial():
    st = [44, 45, 46, 47]
    for b in range(2):
        for i in range(8):
            x = vXA + 8 * b + i
            if i == 0:
                e("v_dot2_f32_bf16 v%d, v%d, s%d, 0" % (st[2 * b], x, sONE))
                e("v_dot2_f32_bf16 v%d, v%d, v%d, 0" % (st[2 * b + 1], x, x))
            else:
                e("v_dot2_f32_bf16 v%d, v%d, s%d, v%d" % (st[2 * b], x, sONE, st[2 * b]))
                e("v_dot2_f32_bf16 v%d, v%d, v%d, v%d" % (st[2 * b + 1], x, x, st[2 * b + 1]))
    g.nop(3)
    for ctl in ("quad_perm:[1,0,3,2]", "quad_perm:[2,3,0,1]", "row_half_mirror", "row_mirror"):
        for r in st:
            e("v_add_f32_dpp v%d, v%d, v%d %s row_mask:0xf bank_mask:0xf" % (r, r, r, ctl))
    allreduce_rows(st, [48, 49, 50, 51])
    for b in range(2):
        m, v = st[2 * b], st[2 * b + 1]
        e("v_mul_f32 v%d, 0x3acccccd, v%d" % (m, m))
        e("v_mul_f32 v%d, 0x3acccccd, v%d" % (v, v))
        e("v_fma_f32 v%d, -v%d, v%d, v%d" % (v, m, m, v))
        e("v_add_f32 v%d, 0x3727c5ac, v%d" % (v, v))
        e("v_rsq_f32 v%d, v%d" % (v, v))
    e("s_nop 0")
    for b in range(2):
        for i in range(5):
            r = vXR + 5 * b + i
            e("v_lshlrev_b32 v%d, 16, v%d" % (r, r))
            e("v_sub_f32 v%d, v%d, v%d" % (r, r, st[2 * b]))
            e("v_mul_f32 v%d, v%d, v%d" % (r, r, st[2 * b + 1]))
            e("v_cvt_pk_bf16_f32 v%d, v%d, v%d" % (r, r, r))
    for i in range(16): e("v_mov_b32 v%d, 0" % (16 + i))
    n = 0
    for i in range(5):
        for b in range(2):
            A = 52 + 2 * (n % 2); n += 1
            e("v_and_b32 v%d, v%d, v%d" % (A, vXR + 5 * b + i, vM01)); e("v_and_b32 v%d, v%d, v%d" % (A + 1, vXR + 5 * b + i, vM23))
            g.nop(2)
            acc = 16 + 8 * b
            e("v_mfma_f32_4x4x4_16b_bf16 v[%d:%d], v[%d:%d], a[%d:%d], v[%d:%d]" % (acc, acc + 3, A, A + 1, 4 * i, 4 * i + 1, acc, acc + 3))
            e("v_mfma_f32_4x4x4_16b_bf16 v[%d:%d], v[%d:%d], a[%d:%d], v[%d:%d]" % (acc + 4, acc + 7, A, A + 1, 4 * i + 2, 4 * i + 3, acc + 4, acc + 7))
    g.nop(5)
    for b in range(2):
        acc = 16 + 8 * b
        for i in range(4):
            e("v_permlane32_swap_b32 v%d, v%d" % (acc + i, acc + 4 + i))
    for b in range(2):
        acc = 16 + 8 * b
        for i in range(4):
            e("v_add_f32 v%d, v%d, v%d" % (acc + i, acc + i, acc + 4 + i))
    g.nop(1)
    for b in range(2):
        acc = 16 + 8 * b
        e("v_permlane16_swap_b32 v%d, v%d" % (acc, acc + 1))
        e("v_permlane16_swap_b32 v%d, v%d" % (acc + 2, acc + 3))
    for b in range(2):
        acc = 16 + 8 * b
        e("v_add_f32 v%d, v%d, v%d" % (acc, acc, acc + 1))
        e("v_add_f32 v%d, v%d, v%d" % (acc + 2, acc + 2, acc + 3))
    t1 = vT + 1
    e("s_lshl_b32 s%d, s%d, 10" % (sT, sW)); e("s_add_u32 s%d, s%d, %d" % (sT, sT, LP))
    e("v_and_b32 v%d, 15, v0" % t1); e("v_lshlrev_b32 v%d, 5, v%d" % (t1, t1))
    e("v_lshrrev_b32 v%d, 5, v0" % (vT + 3)); e("v_lshl_add_u32 v%d, v%d, 4, v%d" % (t1, vT + 3, t1))
    e("v_bfe_u32 v%d, v0, 4, 1" % (vT + 3)); e("v_lshl_add_u32 v%d, v%d, 2, v%d" % (t1, vT + 3, t1))
    e("v_add_u32 v%d, s%d, v%d" % (t1, sT, t1))
    e("ds_write2_b32 v%d, v16, v18 offset0:0 offset1:2" % t1)
    e("ds_write2_b32 v%d, v24, v26 offset0:128 offset1:130" % t1)
    e("s_waitcnt lgkmcnt(0)")
    e("s_barrier")
    lab = g.newlab("L_qiw")
    e("s_cmp_lg_u32 s%d, 0" % sW); e("s_cbranch_scc1 %s" % lab)
    e("v_lshlrev_b32 v%d, 4, v0" % t1); e("v_add_u32 v%d, %d, v%d" % (t1, LP, t1))
    for w in range(4):
        e("ds_read_b128 v[%d:%d], v%d offset:%d" % (16 + 4 * w, 19 + 4 * w, t1, w * 1024))
    qp_own_addr(vT + 2)
    e("s_waitcnt lgkmcnt(0)")
    for d in range(4):
        e("v_add_f32 v%d, v%d, v%d" % (16 + d, 16 + d, 20 + d)); e("v_add_f32 v%d, v%d, v%d" % (24 + d, 24 + d, 28 + d))
    for d in range(4):
        e("v_add_f32 v%d, v%d, v%d" % (16 + d, 16 + d, 24 + d))
    e("global_store_dwordx4 v%d, v[16:19], s[%d:%d] sc1" % (vT + 2, sWS, sWS + 1))
    g.lab(lab)

def qp_addr(dst):
    e("s_mov_b32 s%d, %d" % (sT, WS_QP))
    e("s_lshl_b32 s%d, s%d, 12" % (sT + 1, sH)); e("s_add_u32 s%d, s%d, s%d" % (sT, sT, sT + 1))
    e("v_lshrrev_b32 v%d, 4, v0" % dst); e("v_lshlrev_b32 v%d, 10, v%d" % (dst, dst))
    e("v_and_b32 v%d, 15, v0" % (dst + 1)); e("v_lshl_add_u32 v%d, v%d, 5, v%d" % (dst, dst + 1, dst))
    e("v_add_u32 v%d, s%d, v%d" % (dst, sT, dst))
    e("v_add_u32 v%d, %d, v%d" % (dst + 1, QP_B, dst))

def qp_issue(addr):
    for b in range(2):
        for i, off in enumerate((0, 16, 512, 528)):
            e("global_load_dwordx4 v[%d:%d], v%d, s[%d:%d] offset:%d sc1" % (16 + 16 * b + 4 * i, 19 + 16 * b + 4 * i, addr + b, sWS, sWS + 1, off))

def qp_finish(addr):
    bad = g.newlab("L_qbad"); good = g.newlab("L_qgood")
    sentinel_check(list(range(16, 48)), bad, vT)
    e("s_branch %s" % good)
    g.lab(bad)
    poll(lambda: qp_issue(addr), list(range(16, 48)), vT)
    g.lab(good)
    for b in range(2):
        for i in range(8): e("v_add_f32 v%d, v%d, v%d" % (16 + 16 * b + i, 16 + 16 * b + i, 24 + 16 * b + i))
    allreduce_rows(list(range(16, 24)) + list(range(32, 40)), list(range(24, 32)) + list(range(40, 48)))
    for i in range(4): e("v_cvt_pk_bf16_f32 v%d, v%d, v%d" % (vQ + i, 16 + 2 * i, 17 + 2 * i))
    for i in range(4): e("v_cvt_pk_bf16_f32 v%d, v%d, v%d" % (48 + i, 32 + 2 * i, 33 + 2 * i))
    e("s_lshl_b32 s%d, s%d, 8" % (sT, sW)); e("s_add_u32 s%d, s%d, %d" % (sT, sT, Q2S))
    e("v_and_b32 v%d, 15, v0" % vT); e("v_lshlrev_b32 v%d, 4, v%d" % (vT, vT)); e("v_add_u32 v%d, s%d, v%d" % (vT, sT, vT))
    e("s_mov_b64 exec, 0xffff")
    e("ds_write_b128 v%d, v[48:51]" % vT)
    e("s_mov_b64 exec, -1")

def kload(t, wait=None):
    if wait is not None:
        e("s_waitcnt vmcnt(%d)" % wait)
    if t < 48:
        e("buffer_load_dwordx4 v[%d:%d], v%d, s[%d:%d], s%d offen nt" % (vK0 + 4 * t, vK0 + 4 * t + 3, vKV, sK, sK + 3, sOFF))
        e("s_add_u32 s%d, s%d, 4096" % (sOFF, sOFF))
    else:
        e("s_add_u32 m0, s%d, %d" % (sM0B, LQ + (t - 48) * 1024))
        e("s_nop 0")
        e("buffer_load_dwordx4 v%d, s[%d:%d], s%d offen nt lds" % (vKV, sK, sK + 3, sOFF))
        e("s_add_u32 s%d, s%d, 4096" % (sOFF, sOFF))

def vload(t, wait=58):
    e("s_waitcnt vmcnt(%d)" % wait)
    e("buffer_load_dwordx4 a[%d:%d], v%d, s[%d:%d], s%d offen nt" % (4 * t, 4 * t + 3, vKV, sV, sV + 3, sOFF))
    e("s_add_u32 s%d, s%d, 4096" % (sOFF, sOFF))

def lka():
    g.lab("L_lka")
    ts_first(5)
    e("s_mov_b32 s%d, s%d" % (sOFF, sBO))
    for t in range(56):
        if t == KPRE:
            g.lab("L_lka_pre")
        kload(t, 58 if t >= 32 else None)
    ts_first(6)
    e("s_cmp_eq_u32 s%d, 1" % sLKM)
    e("s_cbranch_scc1 L_softmax")

def lkbv():
    g.lab("L_lkbv")
    e("s_add_u32 s%d, s%d, %d" % (sOFF, sBO, 56 * 4096))
    for t in range(56, 64):
        kload(t, 58)
    e("v_mov_b32 v%d, 0" % vT)
    e("global_load_dword v%d, v%d, s[%d:%d] sc1" % (vT + 1, vT, sDBG, sDBG + 1))
    e("s_mov_b32 s%d, s%d" % (sOFF, sBO))
    for t in range(32):
        vload(t)
    e("s_waitcnt vmcnt(32)")
    e("v_readfirstlane_b32 s%d, v%d" % (sT, vT + 1))
    ok = g.newlab("L_cok")
    e("s_cmp_ge_u32 s%d, 256" % sT)
    e("s_cbranch_scc1 %s" % ok)
    counter_spin()
    g.lab(ok)
    ts_first(7)
    e("s_lshl_b32 s%d, s%d, 1" % (sINV, sLKM))
    e("s_min_u32 s%d, s%d, 3" % (sINV, sINV))
    if OPT["ts"]:
        e("s_lshl_b32 s%d, s%d, 2" % (sT, sINV))
        e("s_lshr_b32 s%d, 0x6320, s%d" % (sPH, sT)); e("s_and_b32 s%d, s%d, 15" % (sPH, sPH))
    noq = g.newlab("L_noq")
    e("s_cmp_eq_u32 s%d, 2" % sLKM)
    e("s_cbranch_scc1 %s" % noq)
    qp_addr(vT + 2)
    qp_issue(vT + 2)
    g.lab(noq)
    for t in range(32, 64):
        vload(t, 50 if t < 44 else 58)
    e("s_cmp_eq_u32 s%d, 2" % sLKM)
    e("s_cbranch_scc1 L_att")
    e("s_waitcnt vmcnt(32)")
    qp_finish(vT + 2)
    e("s_cmp_eq_u32 s%d, 1" % sROLE)
    e("s_cselect_b32 s%d, 1, 0" % sLAX)
    e("s_branch L_qk")

def mid2():
    g.lab("L_mid2")
    e("s_mov_b32 s%d, 2" % sINV)
    e("s_mov_b32 s%d, s%d" % (sLAX, sHAS4))
    if OPT["ts"]:
        e("s_mov_b32 s%d, 3" % sPH)
    q2_read()
    e("s_waitcnt vmcnt(58) lgkmcnt(0)")
    e("s_branch L_qk")

def q2_read():
    e("s_lshl_b32 s%d, s%d, 8" % (sT, sW)); e("s_add_u32 s%d, s%d, %d" % (sT, sT, Q2S))
    e("v_and_b32 v%d, 15, v0" % vT); e("v_lshlrev_b32 v%d, 4, v%d" % (vT, vT)); e("v_add_u32 v%d, s%d, v%d" % (vT, sT, vT))
    e("ds_read_b128 v[%d:%d], v%d" % (vQ, vQ + 3, vT))

def flag_store():
    nf = g.newlab("L_nofl")
    e("s_cmp_eq_u32 s%d, 0" % sW); e("s_cbranch_scc0 %s" % nf)
    e("s_lshl_b32 s%d, s%d, 7" % (sT, sH)); e("s_lshl_b32 s%d, s%d, 4" % (sT + 1, sS)); e("s_add_u32 s%d, s%d, s%d" % (sT, sT, sT + 1))
    e("s_add_u32 s%d, s%d, %d" % (sT, sT, WS_FL))
    e("v_mov_b32 v48, s%d" % sT)
    for i in range(4): e("v_mov_b32 v%d, 0" % (52 + i))
    e("s_mov_b64 exec, 1")
    e("global_store_dwordx4 v48, v[52:55], s[%d:%d] sc1" % (sWS, sWS + 1))
    e("s_mov_b64 exec, -1")
    g.lab(nf)

def pv_c():
    g.lab("L_pvc")
    e("s_mov_b32 s%d, s%d" % (sVO, sBO))
    for i in range(8):
        e("v_mov_b32 v%d, 0" % (vACC + i))
    def ands(t):
        b = vA + 2 * (t % 3); T, u = t // 4, t % 4
        e("v_and_b32_dpp v%d, v%d, v%d row_newbcast:%d row_mask:0xf bank_mask:0xf" % (b, vS + T, vM01, 4 * u))
        e("v_and_b32_dpp v%d, v%d, v%d row_newbcast:%d row_mask:0xf bank_mask:0xf" % (b + 1, vS + T, vM23, 4 * u))
    def vl(t):
        e("s_waitcnt vmcnt(58)")
        e("buffer_load_dwordx4 a[%d:%d], v%d, s[%d:%d], s%d offen nt" % (4 * t, 4 * t + 3, vKV, sV, sV + 3, sVO))
        e("s_add_u32 s%d, s%d, 4096" % (sVO, sVO))
        if t == FLAGPOS: flag_store()
    ands(0)
    for t in range(64):
        if t + 1 < 64: ands(t + 1)
        else: g.nop(2)
        b = vA + 2 * (t % 3)
        e("v_mfma_f32_4x4x4_16b_bf16 v[%d:%d], v[%d:%d], a[%d:%d], v[%d:%d]" % (vACC, vACC + 3, b, b + 1, 4 * t, 4 * t + 1, vACC, vACC + 3))
        e("v_mfma_f32_4x4x4_16b_bf16 v[%d:%d], v[%d:%d], a[%d:%d], v[%d:%d]" % (vACC + 4, vACC + 7, b, b + 1, 4 * t + 2, 4 * t + 3, vACC + 4, vACC + 7))
        if t < 8: kload(56 + t, 58)
        if t >= 2: vl(t - 2)
    vl(62); vl(63)
    e("s_branch L_pvdone")

def qaddr(dst):
    e("s_mul_i32 s%d, s%d, %d" % (sT, sINV, Q_ST)); e("s_add_u32 s%d, s%d, %d" % (sT, sT, WS_Q))
    e("s_lshl_b32 s%d, s%d, 8" % (sT + 1, sH)); e("s_add_u32 s%d, s%d, s%d" % (sT, sT, sT + 1))
    e("v_and_b32 v%d, 15, v0" % dst); e("v_lshlrev_b32 v%d, 4, v%d" % (dst, dst))
    e("v_add_u32 v%d, s%d, v%d" % (dst, sT, dst))

def dots(T, par, from_kt):
    out = []
    for jj in range(4):
        for u in range(4):
            src = (vKT + 4 * u + jj) if from_kt else (vK0 + 4 * (4 * T + u) + jj)
            d = vD + 4 * par + u
            if jj == 0:
                out.append("v_dot2_f32_bf16 v%d, v%d, v%d, 0" % (d, src, vQ + jj))
            else:
                out.append("v_dot2c_f32_bf16 v%d, v%d, v%d" % (d, src, vQ + jj))
    return out
def red(T, par):
    d = vD + 4 * par; s = vS + T
    return [
        "v_add_f32_dpp v%d, v%d, v%d row_ror:8 row_mask:0xf bank_mask:0x3" % (vE, d, d),
        "v_add_f32_dpp v%d, v%d, v%d row_ror:8 row_mask:0xf bank_mask:0x3" % (vE + 1, d + 1, d + 1),
        "v_add_f32_dpp v%d, v%d, v%d row_ror:8 row_mask:0xf bank_mask:0xc" % (vE, d + 2, d + 2),
        "v_add_f32_dpp v%d, v%d, v%d row_ror:8 row_mask:0xf bank_mask:0xc" % (vE + 1, d + 3, d + 3),
        "v_add_f32_dpp v%d, v%d, v%d row_shl:4 row_mask:0xf bank_mask:0x5" % (s, vE, vE),
        "v_add_f32_dpp v%d, v%d, v%d row_shr:4 row_mask:0xf bank_mask:0xa" % (s, vE + 1, vE + 1),
        "v_add_f32_dpp v%d, v%d, v%d quad_perm:[1,0,3,2] row_mask:0xf bank_mask:0xf" % (s, s, s),
        "v_add_f32_dpp v%d, v%d, v%d quad_perm:[2,3,0,1] row_mask:0xf bank_mask:0xf" % (s, s, s),
    ]
def red_tail(prev):
    r = red(*prev)
    g.nop(3)
    for i, x in enumerate(r):
        e(x)
        if i >= 3: g.nop(2)
        elif i == 1: g.nop(1)

sRM = 45
def ring_issue(n):
    srd = sK if n < 64 else sV
    if n == 64:
        e("s_mov_b32 s%d, 0x4000000" % sOFF)
    e("s_add_u32 m0, s%d, %d" % (sRM, (n % 20) * 1024))
    e("s_nop 0")
    e("buffer_load_dwordx4 v%d, s[%d:%d], s%d offen nt lds" % (vKV, srd, srd + 3, sOFF))
    e("s_add_u32 s%d, s%d, 4096" % (sOFF, sOFF))
def ring_wait(G):
    issued = min(128, 20 + 4 * G)
    e("s_waitcnt vmcnt(%d)" % (issued - (4 * G + 4)))

def ring_k():
    g.lab("L_ring")
    e("s_mul_i32 s%d, s%d, 20480" % (sRM, sW)); e("s_add_u32 s%d, s%d, %d" % (sRM, sRM, RING))
    if OPT.get("gate"):
        e("v_lshlrev_b32 v%d, 4, v0" % (vT + 2)); e("v_add_u32 v%d, %d, v%d" % (vT + 2, WS_GO, vT + 2))
        e("s_mov_b32 exec_hi, 0")
        poll(lambda: e("global_load_dword v%d, v%d, s[%d:%d] sc1" % (vT + 3, vT + 2, sWS, sWS + 1)), [vT + 3], vT)
        e("s_mov_b64 exec, -1")
    e("s_mov_b32 s%d, 0x4000000" % sOFF)
    for n in range(20):
        ring_issue(n)
    q2_read()
    e("s_waitcnt lgkmcnt(0)")
    ts_dyn(8)
    ra = vT + 3
    e("v_lshlrev_b32 v%d, 4, v0" % ra); e("v_add_u32 v%d, s%d, v%d" % (ra, sRM, ra))
    prev = None
    for G in range(16):
        par = G % 2
        ring_wait(G)
        for u in range(4):
            e("ds_read_b128 v[%d:%d], v%d offset:%d" % (vKT + 4 * u, vKT + 4 * u + 3, ra, ((4 * G + u) % 20) * 1024))
        if prev is not None:
            r = red(*prev)
            for i, x in enumerate(r):
                e(x)
                if i >= 3: g.nop(2)
                elif i == 1: g.nop(1)
        e("s_waitcnt lgkmcnt(0)")
        for u in range(4):
            ring_issue(4 * G + u + 20)
        for x in dots(G, par, True): e(x)
        g.nop(3)
        prev = (G, par)
    red_tail(prev)
    e("s_mov_b32 s%d, 1" % sRING)
    e("s_branch L_softmax")

def ring_pv():
    g.lab("L_pvring")
    e("s_mov_b32 s%d, 0" % sRING)
    VT = [46, 50, 54, 60]
    ra = 44
    e("v_lshlrev_b32 v%d, 4, v0" % ra); e("v_add_u32 v%d, s%d, v%d" % (ra, sRM, ra))
    for i in range(8):
        e("v_mov_b32 v%d, 0" % (vACC + i))
    def ands(t):
        b = vA + 2 * (t % 2); T, u = t // 4, t % 4
        e("v_and_b32_dpp v%d, v%d, v%d row_newbcast:%d row_mask:0xf bank_mask:0xf" % (b, vS + T, vM01, 4 * u))
        e("v_and_b32_dpp v%d, v%d, v%d row_newbcast:%d row_mask:0xf bank_mask:0xf" % (b + 1, vS + T, vM23, 4 * u))
    for G in range(16, 32):
        ring_wait(G)
        for u in range(4):
            e("ds_read_b128 v[%d:%d], v%d offset:%d" % (VT[u], VT[u] + 3, ra, ((4 * G + u) % 20) * 1024))
        t0 = 4 * (G - 16)
        ands(t0)
        e("s_waitcnt lgkmcnt(0)")
        for u in range(4):
            if 4 * G + u + 20 < 128:
                ring_issue(4 * G + u + 20)
        for u in range(4):
            t = t0 + u
            if u < 3: ands(t + 1)
            else: g.nop(2)
            b = vA + 2 * (t % 2)
            e("v_mfma_f32_4x4x4_16b_bf16 v[%d:%d], v[%d:%d], v[%d:%d], v[%d:%d]" % (vACC, vACC + 3, b, b + 1, VT[u], VT[u] + 1, vACC, vACC + 3))
            e("v_mfma_f32_4x4x4_16b_bf16 v[%d:%d], v[%d:%d], v[%d:%d], v[%d:%d]" % (vACC + 4, vACC + 7, b, b + 1, VT[u] + 2, VT[u] + 3, vACC + 4, vACC + 7))
    e("s_branch L_pvdone")

def att_core():
    g.lab("L_att")
    qaddr(vT + 2)
    poll(lambda: e("global_load_dwordx4 v[%d:%d], v%d, s[%d:%d] sc1" % (vQ, vQ + 3, vT + 2, sWS, sWS + 1)), [vQ, vQ + 1, vQ + 2, vQ + 3], vT)
    g.lab("L_qk")
    ts_dyn(8)
    e("v_lshlrev_b32 v%d, 4, v0" % (vT + 3)); e("v_add_u32 v%d, s%d, v%d" % (vT + 3, sM0B, vT + 3))
    order = []
    for j in range(4):
        order += [3 * j, 3 * j + 1, 3 * j + 2, 12 + j]
    def ldsread(j):
        return ["ds_read_b128 v[%d:%d], v%d offset:%d" % (vKT + 4 * u, vKT + 4 * u + 3, vT + 3, LQ + (4 * j + u) * 1024) for u in range(4)]
    for x in ldsread(0): e(x)
    prev = None
    for n, T in enumerate(order):
        par = n % 2
        if T >= 12:
            e("s_waitcnt lgkmcnt(0)")
        main = dots(T, par, T >= 12)
        side = red(*prev) if prev is not None else []
        for x in interleave(main, side, 2): e(x)
        if T >= 12 and T < 15:
            for x in ldsread(T - 12 + 1): e(x)
        prev = (T, par)
    red_tail(prev)
    nl = g.newlab("L_nolk")
    e("s_cmp_eq_u32 s%d, 1" % sINV)
    e("s_cbranch_scc0 %s" % nl)
    e("s_cmp_eq_u32 s%d, 0" % sCLS)
    e("s_cbranch_scc0 %s" % nl)
    e("s_mov_b32 s%d, 0x4000000" % sBO)
    e("s_mov_b32 s%d, 1" % sLKM)
    e("s_branch L_lka")
    g.lab(nl)
    g.lab("L_softmax")
    m = vT; t1 = vT + 2
    e("v_max3_f32 v%d, v%d, v%d, v%d" % (m, vS, vS + 1, vS + 2))
    for i in range(3, 15, 2):
        e("v_max3_f32 v%d, v%d, v%d, v%d" % (m, m, vS + i, vS + i + 1))
    e("v_max_f32 v%d, v%d, v%d" % (m, m, vS + 15))
    g.nop(2)
    e("v_max_f32_dpp v%d, v%d, v%d row_ror:4 row_mask:0xf bank_mask:0xf" % (m, m, m)); g.nop(2)
    e("v_max_f32_dpp v%d, v%d, v%d row_ror:8 row_mask:0xf bank_mask:0xf" % (m, m, m))
    e("v_mov_b32 v%d, v%d" % (t1, m)); g.nop(2)
    e("v_permlane16_swap_b32 v%d, v%d" % (m, t1)); e("v_max_f32 v%d, v%d, v%d" % (m, m, t1))
    e("v_mov_b32 v%d, v%d" % (t1, m)); g.nop(2)
    e("v_permlane32_swap_b32 v%d, v%d" % (m, t1)); e("v_max_f32 v%d, v%d, v%d" % (m, m, t1))
    e("v_mul_f32 v%d, s%d, v%d" % (m, sC, m))
    for i in range(16):
        e("v_fma_f32 v%d, v%d, s%d, -v%d" % (vS + i, vS + i, sC, m))
    for i in range(16):
        e("v_exp_f32 v%d, v%d" % (vS + i, vS + i))
    l = vT + 1
    e("v_add_f32 v%d, v%d, v%d" % (l, vS, vS + 1))
    for i in range(2, 16):
        e("v_add_f32 v%d, v%d, v%d" % (l, l, vS + i))
    for i in range(16):
        e("v_cvt_pk_bf16_f32 v%d, v%d, v%d" % (vS + i, vS + i, vS + i))
    e("v_add_f32_dpp v%d, v%d, v%d row_ror:4 row_mask:0xf bank_mask:0xf" % (l, l, l)); g.nop(2)
    e("v_add_f32_dpp v%d, v%d, v%d row_ror:8 row_mask:0xf bank_mask:0xf" % (l, l, l))
    e("v_mov_b32 v%d, v%d" % (t1, l)); g.nop(2)
    e("v_permlane16_swap_b32 v%d, v%d" % (l, t1)); e("v_add_f32 v%d, v%d, v%d" % (l, l, t1))
    e("v_mov_b32 v%d, v%d" % (t1, l)); g.nop(2)
    e("v_permlane32_swap_b32 v%d, v%d" % (l, t1)); e("v_add_f32 v%d, v%d, v%d" % (l, l, t1))
    e("s_cmp_eq_u32 s%d, 1" % sRING)
    e("s_cbranch_scc1 L_pvring")
    e("s_cmp_eq_u32 s%d, 1" % sLKM)
    e("s_cbranch_scc0 L_pvstd")
    e("s_cmp_eq_u32 s%d, 1" % sINV)
    e("s_cbranch_scc1 L_pvc")
    g.lab("L_pvstd")
    nwl = g.newlab("L_nowl")
    e("s_cmp_eq_u32 s%d, 1" % sLAX)
    e("s_cbranch_scc0 %s" % nwl)
    e("s_lshl_b32 s44, s%d, 9" % sKS)
    e("s_lshl_b32 s45, s%d, 7" % sGRP)
    gemv64_wload(16, 1280, 44, 45, vT=48)
    g.lab(nwl)
    e("s_cmp_eq_u32 s%d, 1" % sLAX)
    e("s_cselect_b64 vcc, -1, 0")
    e("s_mov_b32 s%d, 0" % sLAX)
    for i in range(8):
        e("v_mov_b32 v%d, 0" % (vACC + i))
    def ands(t):
        b = vA + 2 * (t % 3); T, u = t // 4, t % 4
        e("v_and_b32_dpp v%d, v%d, v%d row_newbcast:%d row_mask:0xf bank_mask:0xf" % (b, vS + T, vM01, 4 * u))
        e("v_and_b32_dpp v%d, v%d, v%d row_newbcast:%d row_mask:0xf bank_mask:0xf" % (b + 1, vS + T, vM23, 4 * u))
    e("s_bitcmp1_b32 s%d, 0" % sINV)
    ands(0)
    for t in range(64):
        if t + 1 < 64:
            ands(t + 1)
        else:
            g.nop(2)
        if t % 4 == 0:
            lab = g.newlab("L_nw")
            e("s_cbranch_scc1 %s" % lab)
            if 60 - t + NWMIN < 63:
                e("s_waitcnt vmcnt(%d)" % (60 - t + NWMIN))
            e("s_cbranch_vccnz %s" % lab)
            e("s_waitcnt vmcnt(%d)" % (60 - t))
            g.lab(lab)
        b = vA + 2 * (t % 3)
        e("v_mfma_f32_4x4x4_16b_bf16 v[%d:%d], v[%d:%d], a[%d:%d], v[%d:%d]" % (vACC, vACC + 3, b, b + 1, 4 * t, 4 * t + 1, vACC, vACC + 3))
        e("v_mfma_f32_4x4x4_16b_bf16 v[%d:%d], v[%d:%d], a[%d:%d], v[%d:%d]" % (vACC + 4, vACC + 7, b, b + 1, 4 * t + 2, 4 * t + 3, vACC + 4, vACC + 7))
    g.lab("L_pvdone")
    g.nop(5)
    for i in range(4):
        e("v_permlane32_swap_b32 v%d, v%d" % (vACC + i, vACC + 4 + i))
    for i in range(4):
        e("v_add_f32 v%d, v%d, v%d" % (vACC + i, vACC + i, vACC + 4 + i))
    g.nop(1)
    e("v_permlane16_swap_b32 v%d, v%d" % (vACC, vACC + 1))
    e("v_permlane16_swap_b32 v%d, v%d" % (vACC + 2, vACC + 3))
    e("v_add_f32 v%d, v%d, v%d" % (vACC, vACC, vACC + 1))
    e("v_add_f32 v%d, v%d, v%d" % (vACC + 2, vACC + 2, vACC + 3))
    e("s_mul_i32 s%d, s%d, %d" % (sT, sPAR, COMB_ST)); e("s_add_u32 s%d, s%d, %d" % (sT, sT, COMB))
    e("s_xor_b32 s%d, s%d, 1" % (sPAR, sPAR))
    e("s_lshl_b32 s%d, s%d, 9" % (sT + 1, sW)); e("s_add_u32 s%d, s%d, s%d" % (sT + 1, sT + 1, sT))
    e("v_and_b32 v%d, 15, v0" % t1); e("v_lshlrev_b32 v%d, 5, v%d" % (t1, t1))
    e("v_lshrrev_b32 v%d, 5, v0" % (vT + 3)); e("v_lshl_add_u32 v%d, v%d, 4, v%d" % (t1, vT + 3, t1))
    e("v_bfe_u32 v%d, v0, 4, 1" % (vT + 3)); e("v_lshl_add_u32 v%d, v%d, 2, v%d" % (t1, vT + 3, t1))
    e("v_add_u32 v%d, s%d, v%d" % (t1, sT + 1, t1))
    e("ds_write2_b32 v%d, v%d, v%d offset0:0 offset1:2" % (t1, vACC, vACC + 2))
    e("s_lshl_b32 s%d, s%d, 3" % (sT + 1, sW)); e("s_add_u32 s%d, s%d, s%d" % (sT + 1, sT + 1, sT))
    e("v_mov_b32 v%d, s%d" % (t1, sT + 1))
    e("v_mov_b32 v%d, v%d" % (vT + 4, m)); e("v_mov_b32 v%d, v%d" % (vT + 5, l))
    e("s_mov_b64 exec, 1")
    e("ds_write_b64 v%d, v[%d:%d] offset:2048" % (t1, vT + 4, vT + 5))
    e("s_mov_b64 exec, -1")
    e("s_waitcnt lgkmcnt(0)")
    e("s_barrier")
    nw = g.newlab("L_npub")
    e("s_cmp_lg_u32 s%d, 0" % sW)
    e("s_cbranch_scc1 %s" % nw)
    e("v_and_b32 v%d, 31, v0" % t1); e("v_lshlrev_b32 v%d, 4, v%d" % (t1, t1)); e("v_add_u32 v%d, s%d, v%d" % (t1, sT, t1))
    for w in range(4):
        e("ds_read_b128 v[%d:%d], v%d offset:%d" % (16 + 4 * w, 19 + 4 * w, t1, w * 512))
    e("v_mov_b32 v%d, s%d" % (vT + 3, sT))
    e("ds_read_b128 v[40:43], v%d offset:2048" % (vT + 3))
    e("ds_read_b128 v[44:47], v%d offset:2064" % (vT + 3))
    e("s_waitcnt lgkmcnt(0)")
    e("v_max_f32 v32, v40, v42"); e("v_max3_f32 v32, v32, v44, v46")
    for w, r in enumerate((40, 42, 44, 46)):
        e("v_sub_f32 v%d, v%d, v32" % (r, r))
    for r in (40, 42, 44, 46):
        e("v_exp_f32 v%d, v%d" % (r, r))
    e("s_nop 0")
    for d in range(4): e("v_mul_f32 v%d, v%d, v40" % (36 + d, 16 + d))
    e("v_mul_f32 v33, v41, v40")
    for w, r in ((1, 42), (2, 44), (3, 46)):
        for d in range(4): e("v_fmac_f32 v%d, v%d, v%d" % (36 + d, 16 + 4 * w + d, r))
        e("v_fmac_f32 v33, v%d, v%d" % (r + 1, r))
    e("s_mul_i32 s%d, s%d, %d" % (sT, sINV, OA_ST))
    e("s_lshl_b32 s%d, s%d, 12" % (sT + 1, sH)); e("s_add_u32 s%d, s%d, s%d" % (sT, sT, sT + 1))
    e("s_lshl_b32 s%d, s%d, 9" % (sT + 1, sS)); e("s_add_u32 s%d, s%d, s%d" % (sT, sT, sT + 1))
    e("v_lshlrev_b32 v%d, 4, v0" % t1); e("v_add_u32 v%d, s%d, v%d" % (t1, sT, t1))
    e("s_mov_b32 exec_hi, 0")
    e("global_store_dwordx4 v%d, v[36:39], s[%d:%d] sc1" % (t1, sWS, sWS + 1))
    e("s_mov_b64 exec, -1")
    e("s_mul_i32 s%d, s%d, %d" % (sT, sINV, ML_ST)); e("s_add_u32 s%d, s%d, %d" % (sT, sT, WS_ML))
    e("s_lshl_b32 s%d, s%d, 6" % (sT + 1, sH)); e("s_add_u32 s%d, s%d, s%d" % (sT, sT, sT + 1))
    e("s_and_b32 s%d, s%d, 1" % (sT + 1, sS)); e("s_lshl_b32 s%d, s%d, 5" % (sT + 1, sT + 1)); e("s_add_u32 s%d, s%d, s%d" % (sT, sT, sT + 1))
    e("s_lshr_b32 s%d, s%d, 1" % (sT + 1, sS)); e("s_lshl_b32 s%d, s%d, 3" % (sT + 1, sT + 1)); e("s_add_u32 s%d, s%d, s%d" % (sT, sT, sT + 1))
    e("v_mov_b32 v%d, s%d" % (t1, sT))
    e("s_mov_b64 exec, 1")
    e("global_store_dwordx2 v%d, v[32:33], s[%d:%d] sc1" % (t1, sWS, sWS + 1))
    e("s_mov_b64 exec, -1")
    g.lab(nw)
    ts_dyn(16)
    e("s_cmp_eq_u32 s%d, 0" % sCLS)
    e("s_cbranch_scc0 L_disp")
    e("s_cmp_eq_u32 s%d, 1" % sINV)
    e("s_cbranch_scc1 L_mid2")
    e("s_cmp_eq_u32 s%d, 0" % sINV)
    e("s_cbranch_scc1 L_wload")
    e("s_branch L_disp")

def s1_block():
    g.lab("L_s1")
    s1_consts()
    e("s_mul_i32 s%d, s%d, %d" % (sT, sINV, OA_ST)); e("v_add_u32 v50, s%d, v%d" % (sT, vRA))
    e("s_mul_i32 s%d, s%d, %d" % (sT, sINV, ML_ST)); e("s_add_u32 s%d, s%d, %d" % (sT, sT, WS_ML)); e("v_add_u32 v51, s%d, v%d" % (sT, vRB))
    def issue():
        for i in range(4):
            e("global_load_dwordx4 v[%d:%d], v50, s[%d:%d] offset:%d sc1" % (16 + 4 * i, 19 + 4 * i, sWS, sWS + 1, i * 1024))
        e("global_load_dwordx4 v[32:35], v51, s[%d:%d] sc1" % (sWS, sWS + 1))
        e("global_load_dwordx4 v[36:39], v51, s[%d:%d] offset:16 sc1" % (sWS, sWS + 1))
    poll(issue, list(range(16, 40)), vT)
    ts_dyn(8)
    if OPT.get("gate"):
        ng = g.newlab("L_nogo")
        e("s_cmp_eq_u32 s%d, 0" % sINV); e("s_cbranch_scc0 %s" % ng)
        e("s_cmp_eq_u32 s%d, 0" % sGRP); e("s_cbranch_scc0 %s" % ng)
        e("s_lshl_b32 s%d, s%d, 2" % (sT, sKS)); e("s_add_u32 s%d, s%d, s%d" % (sT, sT, sW)); e("s_lshl_b32 s%d, s%d, 4" % (sT, sT))
        e("s_add_u32 s%d, s%d, %d" % (sT, sT, WS_GO))
        e("v_mov_b32 v48, s%d" % sT)
        for i in range(4): e("v_mov_b32 v%d, 0" % (52 + i))
        e("s_mov_b64 exec, 1")
        e("global_store_dwordx4 v48, v[52:55], s[%d:%d] sc1" % (sWS, sWS + 1))
        e("s_mov_b64 exec, -1")
        g.lab(ng)
    e("v_max_f32 v40, v32, v34"); e("v_max3_f32 v40, v40, v36, v38")
    e("v_mov_b32 v41, v40"); g.nop(2)
    e("v_permlane32_swap_b32 v40, v41"); e("v_max_f32 v40, v40, v41")
    for r in (32, 34, 36, 38): e("v_sub_f32 v%d, v%d, v40" % (r, r))
    for r in (32, 34, 36, 38): e("v_exp_f32 v%d, v%d" % (r, r))
    e("s_nop 0")
    e("v_mul_f32 v42, v33, v32")
    for r in (34, 36, 38): e("v_fmac_f32 v42, v%d, v%d" % (r + 1, r))
    for d in range(4): e("v_mul_f32 v%d, v%d, v32" % (44 + d, 16 + d))
    for i, r in ((1, 34), (2, 36), (3, 38)):
        for d in range(4): e("v_fmac_f32 v%d, v%d, v%d" % (44 + d, 16 + 4 * i + d, r))
    e("v_mov_b32 v43, v42"); g.nop(2)
    e("v_permlane32_swap_b32 v42, v43")
    e("v_permlane32_swap_b32 v44, v45")
    e("v_permlane32_swap_b32 v46, v47")
    e("v_add_f32 v42, v42, v43"); e("v_add_f32 v44, v44, v45"); e("v_add_f32 v46, v46, v47")
    e("v_rcp_f32 v42, v42"); e("s_nop 0")
    e("v_mul_f32 v44, v44, v42"); e("v_mul_f32 v46, v46, v42")
    e("v_cvt_pk_bf16_f32 v44, v44, v44"); e("v_cvt_pk_bf16_f32 v46, v46, v46")
    e("ds_write2_b32 v%d, v44, v46 offset0:0 offset1:2" % vPW)
    e("s_waitcnt lgkmcnt(0)")
    gemv64(16)
    e("s_waitcnt lgkmcnt(0)")
    e("s_barrier")
    ts_dyn(16)
    lab = g.newlab("L_s1w")
    e("s_cmp_lg_u32 s%d, 0" % sW); e("s_cbranch_scc1 %s" % lab)
    final_col_sum(30, False)
    e("s_mul_i32 s%d, s%d, %d" % (sT, sINV, PB_ST)); e("s_add_u32 s%d, s%d, %d" % (sT, sT, WS_PB))
    e("s_mul_i32 s%d, s%d, 2560" % (sT + 1, sKS)); e("s_add_u32 s%d, s%d, s%d" % (sT, sT, sT + 1))
    e("s_lshl_b32 s%d, s%d, 8" % (sT + 1, sGRP)); e("s_add_u32 s%d, s%d, s%d" % (sT, sT, sT + 1))
    e("v_add_u32 v%d, s%d, v%d" % (vT, sT, vT))
    for q in range(4):
        e("v_mov_b32_dpp v%d, v30 quad_perm:[%d,%d,%d,%d] row_mask:0xf bank_mask:0xf" % (32 + q, q, q, q, q))
    e("s_mov_b32 exec_lo, 0x11111111"); e("s_mov_b32 exec_hi, 0x11111111")
    e("global_store_dwordx4 v%d, v[32:35], s[%d:%d] sc1" % (vT, sWS, sWS + 1))
    e("s_mov_b64 exec, -1")
    g.lab(lab)
    nr = g.newlab("L_s1nr")
    e("s_cmp_eq_u32 s%d, 1" % sHAS4); e("s_cbranch_scc0 %s" % nr)
    e("s_cmp_lt_u32 s%d, 2" % sINV); e("s_cbranch_scc0 %s" % nr)
    e("s_lshl_b32 s45, s%d, 7" % sJ)
    gemv64_wload(20, 8192, None, 45, vT=16, srd=sWQ)
    g.lab(nr)
    e("s_barrier")
    e("s_branch L_disp")

def s2_block():
    g.lab("L_s2")
    nc = g.newlab("L_s2nc")
    e("s_cmp_lg_u32 s%d, 0" % sINV); e("s_cbranch_scc1 %s" % nc)
    e("s_waitcnt vmcnt(0)")
    colsum(20)
    g.lab(nc)
    e("s_mul_i32 s%d, s%d, %d" % (sT, sINV, PB_ST)); e("s_add_u32 s%d, s%d, %d" % (sT, sT, WS_PB))
    e("v_add_u32 v52, s%d, v%d" % (sT, vRA))
    for k in range(1, 4): e("v_add_u32 v%d, %d, v52" % (52 + k, 5120 * k))
    odd = g.newlab("L_s2odd"); got = g.newlab("L_s2got")
    e("s_and_b32 s%d, s%d, 1" % (sT, sINV)); e("s_cmp_eq_u32 s%d, 1" % sT); e("s_cbranch_scc1 %s" % odd)
    e("s_lshr_b32 s%d, s%d, 1" % (sT, sINV)); e("s_mul_i32 s%d, s%d, 1280" % (sT, sT))
    e("v_add_u32 v50, s%d, v%d" % (sT, vRB))
    e("global_load_dwordx2 v[48:49], v50, s[%d:%d]" % (sX, sX + 1))
    e("s_branch %s" % got)
    g.lab(odd)
    e("s_sub_u32 s%d, s%d, 1" % (sT, sINV)); e("s_mul_i32 s%d, s%d, %d" % (sT, sT, X2_ST)); e("s_add_u32 s%d, s%d, %d" % (sT, sT, WS_X2))
    e("v_add_u32 v50, s%d, v%d" % (sT, vRB))
    poll(lambda: e("global_load_dwordx2 v[48:49], v50, s[%d:%d] sc1" % (sWS, sWS + 1)), [48, 49], vT)
    g.lab(got)
    def issue():
        for ks in range(8):
            e("global_load_dwordx4 v[%d:%d], v%d, s[%d:%d] offset:%d sc1" % (16 + 4 * ks, 19 + 4 * ks, 52 + ks // 2, sWS, sWS + 1, (ks % 2) * 2560))
    poll(issue, list(range(16, 48)), vT)
    ts_dyn(8)
    for d in range(4):
        e("v_add_f32 v%d, v%d, v%d" % (16 + d, 16 + d, 20 + d)); e("v_add_f32 v%d, v%d, v%d" % (24 + d, 24 + d, 28 + d))
        e("v_add_f32 v%d, v%d, v%d" % (32 + d, 32 + d, 36 + d)); e("v_add_f32 v%d, v%d, v%d" % (40 + d, 40 + d, 44 + d))
    for d in range(4):
        e("v_add_f32 v%d, v%d, v%d" % (16 + d, 16 + d, 24 + d)); e("v_add_f32 v%d, v%d, v%d" % (32 + d, 32 + d, 40 + d))
    for d in range(4):
        e("v_add_f32 v%d, v%d, v%d" % (16 + d, 16 + d, 32 + d))
    for d in range(4): round_bf16(16 + d)
    e("v_lshlrev_b32 v20, 16, v48"); e("v_and_b32 v21, 0xffff0000, v48")
    e("v_lshlrev_b32 v22, 16, v49"); e("v_and_b32 v23, 0xffff0000, v49")
    for d in range(4): e("v_add_f32 v%d, v%d, v%d" % (16 + d, 16 + d, 20 + d))
    for d in range(4): round_bf16(16 + d)
    nx = g.newlab("L_s2nx")
    e("s_cmp_lg_u32 s%d, 0" % sJ); e("s_cbranch_scc1 %s" % nx)
    e("v_cvt_pk_bf16_f32 v20, v16, v17"); e("v_cvt_pk_bf16_f32 v21, v18, v19")
    e("s_mul_i32 s%d, s%d, %d" % (sT, sINV, X1_ST)); e("s_add_u32 s%d, s%d, %d" % (sT, sT, WS_X1))
    e("v_add_u32 v50, s%d, v%d" % (sT, vRB))
    e("global_store_dwordx2 v50, v[20:21], s[%d:%d] sc1" % (sWS, sWS + 1))
    g.lab(nx)
    x_to_p_and_stats(16)
    gemv64(20)
    e("s_waitcnt lgkmcnt(0)")
    e("s_barrier")
    ts_dyn(16)
    lab = g.newlab("L_s2w")
    e("s_cmp_lg_u32 s%d, 0" % sW); e("s_cbranch_scc1 %s" % lab)
    final_col_sum(30, True)
    round_bf16(30)
    e("v_mul_f32 v31, 0xbfb8aa3b, v30")
    e("v_exp_f32 v31, v31"); e("s_nop 0")
    e("v_add_f32 v31, 1.0, v31")
    e("v_rcp_f32 v31, v31"); e("s_nop 0")
    e("v_mul_f32 v30, v30, v31")
    pack8(30, 32)
    e("s_mul_i32 s%d, s%d, %d" % (sT, sINV, H_ST)); e("s_add_u32 s%d, s%d, %d" % (sT, sT, WS_H))
    e("s_lshl_b32 s%d, s%d, 7" % (sT + 1, sJ)); e("s_add_u32 s%d, s%d, s%d" % (sT, sT, sT + 1))
    e("v_lshlrev_b32 v%d, 1, v0" % vT); e("v_add_u32 v%d, s%d, v%d" % (vT, sT, vT))
    exec8()
    e("global_store_dwordx4 v%d, v[32:35], s[%d:%d] sc1" % (vT, sWS, sWS + 1))
    e("s_mov_b64 exec, -1")
    g.lab(lab)
    e("s_barrier")
    e("s_branch L_disp")

def s3_block():
    g.lab("L_s3")
    e("s_mul_i32 s%d, s%d, %d" % (sT, sINV, H_ST)); e("s_add_u32 s%d, s%d, %d" % (sT, sT, WS_H))
    e("v_add_u32 v50, s%d, v%d" % (sT, vRA))
    e("s_mul_i32 s%d, s%d, %d" % (sT, sINV, X1_ST)); e("s_add_u32 s%d, s%d, %d" % (sT, sT, WS_X1))
    e("v_add_u32 v51, s%d, v%d" % (sT, vRB))
    def issue():
        e("global_load_dwordx4 v[16:19], v50, s[%d:%d] sc1" % (sWS, sWS + 1))
        e("global_load_dword v15, v51, s[%d:%d] sc1" % (sWS, sWS + 1))
    poll(issue, [16, 17, 18, 19, 15], vT)
    ts_dyn(8)
    for i in range(4):
        e("v_and_b32 v%d, 0xffff, v%d" % (28, 16 + i))
        e("v_lshl_or_b32 v%d, v%d, 16, v%d" % (20 + 2 * i, 28, 28))
        e("v_lshrrev_b32 v%d, 16, v%d" % (28, 16 + i))
        e("v_lshl_or_b32 v%d, v%d, 16, v%d" % (21 + 2 * i, 28, 28))
    e("ds_write_b128 v%d, v[20:23]" % vPW)
    e("ds_write_b128 v%d, v[24:27] offset:16" % vPW)
    e("s_waitcnt lgkmcnt(0)")
    g.lg = []
    NI = 28; NB = 6
    for i in range(NB):
        g.lds("ds_read_b64 v[%d:%d], v%d offset:%d" % (52 + 2 * i, 53 + 2 * i, vRW, i * 512), "W%d" % i)
    for jj in range(7):
        g.lds("ds_read_b128 v[%d:%d], v%d offset:%d" % (16 + 4 * jj, 19 + 4 * jj, vRP, jj * 256), "P%d" % jj)
    for i in range(4): e("v_mov_b32 v%d, 0" % (44 + i))
    def ands(i):
        b = 48 + 2 * (i % 2)
        if i % 4 == 0: g.lwait("P%d" % (i // 4))
        e("v_and_b32 v%d, v%d, v%d" % (b, 16 + i, vM01)); e("v_and_b32 v%d, v%d, v%d" % (b + 1, 16 + i, vM23))
    ands(0)
    for i in range(NI):
        if i + 1 < NI: ands(i + 1)
        else: g.nop(2)
        g.lwait("W%d" % i)
        if i == 0: g.nop(2)
        b = 48 + 2 * (i % 2); wb = 52 + 2 * (i % NB)
        e("v_mfma_f32_4x4x4_16b_bf16 v[44:47], v[%d:%d], v[%d:%d], v[44:47]" % (b, b + 1, wb, wb + 1))
        if i + NB < NI:
            g.lds("ds_read_b64 v[%d:%d], v%d offset:%d" % (wb, wb + 1, vRW, (i + NB) * 512), "W%d" % (i + NB))
    g.lg = []
    g.nop(5)
    e("v_permlane32_swap_b32 v44, v46"); e("v_permlane32_swap_b32 v45, v47")
    e("v_add_f32 v44, v44, v46"); e("v_add_f32 v45, v45, v47")
    g.nop(2)
    e("v_permlane16_swap_b32 v44, v45"); e("v_add_f32 v44, v44, v45")
    g.nop(2)
    e("v_add_f32_dpp v44, v44, v44 row_ror:8 row_mask:0xf bank_mask:0xf"); g.nop(2)
    e("v_add_f32_dpp v44, v44, v44 row_ror:4 row_mask:0xf bank_mask:0xf")
    e("ds_write_b32 v%d, v44" % vRR)
    e("s_waitcnt lgkmcnt(0)")
    e("s_barrier")
    ts_dyn(16)
    lab = g.newlab("L_s3w")
    e("s_cmp_lg_u32 s%d, 0" % sW); e("s_cbranch_scc1 %s" % lab)
    e("v_and_b32 v%d, 15, v0" % vT); e("v_lshlrev_b32 v%d, 2, v%d" % (vT, vT)); e("v_add_u32 v%d, %d, v%d" % (vT, RED, vT))
    e("ds_read2_b32 v[16:17], v%d offset0:0 offset1:16" % vT)
    e("ds_read2_b32 v[18:19], v%d offset0:32 offset1:48" % vT)
    e("s_waitcnt lgkmcnt(0)")
    e("v_add_f32 v16, v16, v17"); e("v_add_f32 v18, v18, v19"); e("v_add_f32 v30, v16, v18")
    round_bf16(30)
    e("v_lshlrev_b32 v16, 16, v15"); e("v_and_b32 v17, 0xffff0000, v15")
    e("v_and_b32 v18, 1, v0"); e("v_cmp_eq_u32 vcc, 1, v18"); e("s_nop 1")
    e("v_cndmask_b32 v16, v16, v17, vcc")
    e("v_add_f32 v30, v30, v16")
    pack8(30, 32)
    odd = g.newlab("L_s3odd"); fin = g.newlab("L_s3fin")
    e("s_mov_b32 exec_lo, 0x0101"); e("s_mov_b32 exec_hi, 0")
    e("s_and_b32 s%d, s%d, 1" % (sT, sINV)); e("s_cmp_eq_u32 s%d, 1" % sT); e("s_cbranch_scc1 %s" % odd)
    e("s_mul_i32 s%d, s%d, %d" % (sT, sINV, X2_ST)); e("s_add_u32 s%d, s%d, %d" % (sT, sT, WS_X2))
    e("v_add_u32 v%d, s%d, v%d" % (vT, sT, vRB))
    e("global_store_dwordx4 v%d, v[32:35], s[%d:%d] sc1" % (vT, sWS, sWS + 1))
    e("s_branch %s" % fin)
    g.lab(odd)
    e("s_lshr_b32 s%d, s%d, 1" % (sT, sINV)); e("s_mul_i32 s%d, s%d, 1280" % (sT, sT))
    e("v_add_u32 v%d, s%d, v%d" % (vT, sT, vRB))
    e("global_store_dwordx4 v%d, v[32:35], s[%d:%d]" % (vT, sOUT, sOUT + 1))
    g.lab(fin)
    e("s_mov_b64 exec, -1")
    g.lab(lab)
    e("s_barrier")
    e("s_branch L_disp")

def wload_block():
    g.lab("L_wload")
    n2 = g.newlab("L_wl")
    e("s_cmp_eq_u32 s%d, 2" % sROLE); e("s_cbranch_scc0 %s" % n2)
    gemv64_wload(20, 3456, None, sGRP, vT=16)
    e("s_branch L_disp")
    g.lab(n2)
    e("s_cmp_eq_u32 s%d, 3" % sROLE); e("s_cbranch_scc0 L_disp")
    s3_wload(vT=16)
    e("s_branch L_disp")

e("s_mov_b32 s%d, 0" % sLKM)
e("s_mov_b32 s%d, 0" % sBO)
e("s_mov_b32 s%d, 0" % sPH); e("s_mov_b32 s%d, 0" % sINV); e("s_mov_b32 s%d, 0" % sTQ)
e("s_waitcnt vmcnt(%d)" % KPRE)
signal_cleared()
ts(1)
q_initial()
ts(4)
e("s_mov_b32 s%d, %d" % (sOFF, KPRE * 4096))
e("s_branch L_lka_pre")
s4_block()
lka()
lkbv()
mid2()
pv_c()
ring_k()
ring_pv()
att_core()
s1_block(); s2_block(); s3_block()
wload_block()

g.lab("L_lk")
e("s_lshl_b32 s%d, s%d, 7" % (sT, sH)); e("s_add_u32 s%d, s%d, %d" % (sT, sT, WS_FL))
e("v_lshlrev_b32 v%d, 4, v0" % (vT + 2)); e("v_add_u32 v%d, s%d, v%d" % (vT + 2, sT, vT + 2))
e("s_cmp_lt_u32 s%d, %d" % (sH, NSET0 - 128))
e("s_cselect_b32 s%d, 31, 15" % (sT + 2))
e("s_mov_b32 exec_lo, s%d" % (sT + 2)); e("s_mov_b32 exec_hi, 0")
if not OPT.get("noflag"):
    poll(lambda: e("global_load_dword v%d, v%d, s[%d:%d] sc1" % (vT + 3, vT + 2, sWS, sWS + 1)), [vT + 3], vT)
e("s_mov_b64 exec, -1")
e("s_mov_b32 s%d, 0x4000000" % sBO)
e("s_mov_b32 s%d, 2" % sLKM)
if OPT["ts"]:
    e("s_memrealtime s[%d:%d]" % (sCLK, sCLK + 1)); e("s_waitcnt lgkmcnt(0)"); e("s_mov_b32 s%d, s%d" % (sTS + 29, sCLK))
e("s_branch L_lka")

g.lab("L_disp")
ts_dyn(24) if False else None
e("s_and_b32 s%d, s%d, 15" % (sT, sPROG))
e("s_bfe_u32 s%d, s%d, 0x40004" % (sINV, sPROG))
e("s_lshr_b64 s[%d:%d], s[%d:%d], 8" % (sPROG, sPROG + 1, sPROG, sPROG + 1))
if OPT["ts"]:
    e("s_lshl_b32 s%d, s%d, 2" % (sT + 1, sINV))
    e("s_lshr_b32 s%d, 0x6320, s%d" % (sT + 2, sT + 1)); e("s_lshr_b32 s%d, 0x7451, s%d" % (sT + 3, sT + 1))
    e("s_cmp_eq_u32 s%d, %d" % (sT, OP_ATT)); e("s_cselect_b32 s%d, s%d, s%d" % (sPH, sT + 2, sT + 3))
    e("s_cmp_eq_u32 s%d, %d" % (sT, OP_RING)); e("s_cselect_b32 s%d, s%d, s%d" % (sPH, sT + 2, sPH))
    e("s_and_b32 s%d, s%d, 15" % (sPH, sPH))
    e("s_cmp_eq_u32 s%d, %d" % (sT, OP_S4)); e("s_cselect_b32 s%d, 15, s%d" % (sPH, sPH))
for op, lab in ((OP_ATT, "L_att"), (OP_S1, "L_s1"), (OP_S2, "L_s2"), (OP_S3, "L_s3"), (OP_S4, "L_s4"), (OP_RING, "L_ring"), (OP_LK, "L_lk")):
    e("s_cmp_eq_u32 s%d, %d" % (sT, op)); e("s_cbranch_scc1 %s" % lab)
g.lab("L_fin")
if OPT["ts"]:
    lab = g.newlab("L_nots")
    e("s_cmp_lg_u32 s%d, 0" % sW); e("s_cbranch_scc1 %s" % lab)
    e("s_lshl_b32 s%d, s2, 7" % sT); e("s_add_u32 s%d, s%d, %d" % (sT, sT, WS_TS))
    e("v_mov_b32 v%d, s%d" % (vT, sT))
    e("s_mov_b64 exec, 1")
    for i in range(32):
        e("v_mov_b32 v%d, s%d" % (vT + 1, sTS + i))
        e("global_store_dword v%d, v%d, s[%d:%d] offset:%d" % (vT, vT + 1, sWS, sWS + 1, 4 * i))
        e("s_nop 1")
    e("s_mov_b64 exec, -1")
    g.lab(lab)
if OPT.get("dts"):
    lab = g.newlab("L_nodts")
    e("s_memrealtime s[%d:%d]" % (sCLK, sCLK + 1))
    e("s_waitcnt lgkmcnt(0)")
    e("s_cmp_lg_u32 s%d, 0" % sW); e("s_cbranch_scc1 %s" % lab)
    e("v_mov_b32 v%d, 0" % vT)
    e("s_mov_b64 exec, 1")
    e("s_not_b32 s%d, s%d" % (sT, sTS))
    lst = [sT, sTS + 0, sTS + 1, sTS + 16, sTS + 8 + 2, sTS + 16 + 2, sTS + 16 + 3, sTS + 16 + 6, sTS + 16+1, sTS + 16 + 4, sTS + 16 + 7, sCLK]
    for i, r in enumerate(lst):
        e("v_mov_b32 v%d, s%d" % (vT + 1, r))
        e("global_atomic_umax v%d, v%d, s[%d:%d] offset:%d sc1" % (vT, vT + 1, sDBG, sDBG + 1, 4 + 4 * i))
        e("s_nop 1")
    e("s_mov_b64 exec, -1")
    g.lab(lab)
g.lab("L_end")
e("s_endpgm")
e('.section .rodata,"a"')
e(".p2align 6")
e(".amdhsa_kernel %s" % KN)
e("  .amdhsa_next_free_vgpr 512")
e("  .amdhsa_next_free_sgpr 102")
e("  .amdhsa_accum_offset 256")
e("  .amdhsa_group_segment_fixed_size 0")
e("  .amdhsa_kernarg_size 88")
e("  .amdhsa_user_sgpr_count 2")
e("  .amdhsa_user_sgpr_kernarg_segment_ptr 1")
e("  .amdhsa_system_sgpr_workgroup_id_x 1")
e(".end_amdhsa_kernel")
open(sys.argv[1], "w").write(g.text())
```

```python
import sys
from gl import *

OPT = dict(ts=False, dbgq=False)
for a in sys.argv[2:]:
    k, _, v = a.partition("=")
    OPT[k] = (int(v) if v else True)

WS_OA = 0x0;      OA_ST = 0x20000
WS_ML = 0x80000;  ML_ST = 0x800
WS_PB = 0x82000;  PB_ST = 0x5000
WS_H  = 0x96000;  H_ST  = 0x1000
WS_X1 = 0x9A000;  X1_ST = 0x800
WS_X2 = 0xA8000;  X2_ST = 0x800;  X2R = 0x2000
WS_Q  = 0xC0000;  Q_ST  = 0x2000
WS_QP = 0xD0000;  QP_B = 0x20000
WS_FL = 0xA0000
WS_GO = 0xA1000
WS_TS = 0x180000
LQ = 0
LP = 65536
LM = 147456
COMB = LM;            COMB_ST = 0x840
PD   = LM + 0x1100
RED  = LM + 0x1C00
ST   = LM + 0x2000
CS   = LM + 0x2100
Q2S  = LM + 0x2400
PD3  = LP + 57344
SPIN = int(OPT.get("spin", 200000))
KPRE = int(OPT.get("kpre", 32))
FLAGPOS = int(OPT.get("flagpos", 63))
WNT = "nt " if OPT.get("wnt") else ""
QKC = not OPT.get("noqkc")
KEEPV = not OPT.get("nokeepv")
EARLY1 = OPT.get("early1")
NWMIN = 14

R4_N = 64
R1_0, R1_N = 0, 80
R2_0, R2_N = 80, 27
R3_0, R3_N = 107, 40
NSET0 = 147
RING = LP

sW = 3
sK, sV, sWT = 4, 8, 12
sWS, sDBG, sOUT, sX = 16, 18, 20, 22
sH, sS, sPH, sINV, sROLE, sJ = 24, 25, 26, 27, 28, 29
sOFF, sSPIN = 30, 31
sT = 32
sC, sONE = 48, 49
sTQ, sLAX = 50, 51
sKS, sGRP = 52, 53
sM0B = 54
sBO = 55
sVO = 56
sLKM = 57
sHAS4, sCLS, sPAR, sRING = 58, 59, 62, 63
sWQ = 96
sPROG = 100
sCLK = 60
sTS = 64
vL, vKV, vM01, vM23, vQ = 0, 1, 2, 3, 4
vRW, vRP, vRR, vRA, vPW, vFL, vRB, vRC = 8, 9, 10, 11, 12, 13, 14, 15
vS = 16
vKT = 32
vD = 48
vE = 56
vT = 58
vACC = 32
vA = 40
vK0 = 64

g = G()
e = g.e

def ts(i):
    if not OPT["ts"]:
        return
    e("s_memrealtime s[%d:%d]" % (sCLK, sCLK + 1))
    e("s_waitcnt lgkmcnt(0)")
    e("s_mov_b32 s%d, s%d" % (sTS + i, sCLK))

def ts_dyn(base):
    if not OPT["ts"]:
        return
    e("s_memrealtime s[%d:%d]" % (sCLK, sCLK + 1))
    e("s_waitcnt lgkmcnt(0)")
    for p in range(8):
        e("s_cmp_eq_u32 s%d, %d" % (sPH, p))
        e("s_cselect_b32 s%d, s%d, s%d" % (sTS + base + p, sCLK, sTS + base + p))

def ts_first(i):
    if not OPT["ts"]:
        return
    e("s_memrealtime s[%d:%d]" % (sCLK, sCLK + 1))
    e("s_waitcnt lgkmcnt(0)")
    e("s_cmp_eq_u32 s%d, 0" % sLKM)
    e("s_cselect_b32 s%d, s%d, s%d" % (sTS + i, sCLK, sTS + i))

def sentinel_check(regs, fail_label, tmp):
    r = list(regs)
    cur = None
    if len(r) == 1:
        cur = r[0]
    else:
        e("v_max_u32 v%d, v%d, v%d" % (tmp, r[0], r[1])); r = r[2:]
        while len(r) >= 2:
            e("v_max3_u32 v%d, v%d, v%d, v%d" % (tmp, tmp, r[0], r[1])); r = r[2:]
        if r:
            e("v_max_u32 v%d, v%d, v%d" % (tmp, tmp, r[0]))
        cur = tmp
    e("v_cmp_eq_u32 vcc, -1, v%d" % cur)
    e("s_nop 1")
    e("s_cmp_lg_u64 vcc, 0")
    e("s_cbranch_scc1 %s" % fail_label)

def poll(issue, regs, tmp):
    top = g.newlab("L_poll"); again = g.newlab("L_again"); done = g.newlab("L_pdone")
    e("s_mov_b32 s%d, 0" % sSPIN)
    g.lab(top)
    issue()
    e("s_waitcnt vmcnt(0)")
    sentinel_check(regs, again, tmp)
    e("s_branch %s" % done)
    g.lab(again)
    e("s_add_u32 s%d, s%d, 1" % (sSPIN, sSPIN))
    e("s_cmp_lt_u32 s%d, %d" % (sSPIN, SPIN))
    e("s_cbranch_scc1 %s" % top)
    g.lab(done)

PPR = int(OPT.get("ppr", 16))
def fpoll(issue, nld, regs, tmp):
    if PPR == 0:
        return poll(issue, regs, tmp)
    top = g.newlab("L_fp"); again = g.newlab("L_fa"); done = g.newlab("L_fd"); chk = g.newlab("L_fc")
    e("s_mov_b32 s%d, 0" % sSPIN)
    issue()
    e("s_waitcnt vmcnt(0)")
    e("s_branch %s" % chk)
    g.lab(top)
    e("s_waitcnt vmcnt(%d)" % (5 * nld))
    issue()
    g.lab(chk)
    sentinel_check(regs, again, tmp)
    e("s_branch %s" % done)
    g.lab(again)
    e("s_add_u32 s%d, s%d, 1" % (sSPIN, sSPIN))
    e("s_cmp_ge_u32 s%d, %d" % (sSPIN, SPIN * 8))
    e("s_cbranch_scc1 %s" % done)
    if PPR & (PPR - 1) == 0:
        e("s_and_b32 s%d, s%d, %d" % (sT, sSPIN, PPR - 1))
        e("s_cmp_eq_u32 s%d, 0" % sT)
    else:
        raise SystemExit("ppr must be a power of two")
    e("s_cbranch_scc1 %s" % top)
    e("s_branch %s" % chk)
    g.lab(done)

def counter_spin():
    top = g.newlab("L_cnt"); done = g.newlab("L_cdone")
    e("s_mov_b32 s%d, 0" % sSPIN)
    e("v_mov_b32 v%d, 0" % vT)
    g.lab(top)
    e("global_load_dword v%d, v%d, s[%d:%d] sc1" % (vT + 1, vT, sDBG, sDBG + 1))
    e("s_waitcnt vmcnt(0)")
    e("v_readfirstlane_b32 s%d, v%d" % (sT, vT + 1))
    e("s_add_u32 s%d, s%d, 1" % (sSPIN, sSPIN))
    e("s_cmp_ge_u32 s%d, %d" % (sSPIN, SPIN))
    e("s_cbranch_scc1 %s" % done)
    e("s_cmp_lt_u32 s%d, 256" % sT)
    e("s_cbranch_scc1 %s" % top)
    g.lab(done)

e("; @launch grid=(256,1,1) block=(256,1,1) lds=163840")
e('.amdgcn_target "amdgcn-amd-amdhsa--gfx950"')
e(".text")
e(".globl %s" % KN)
e(".p2align 8")
e(".type %s,@function" % KN)
g.lab(KN)
e("s_cmp_ge_u32 s2, 256")
e("s_cbranch_scc1 L_end")
e("s_load_dwordx4 s[32:35], s[0:1], 0")
e("s_load_dwordx4 s[36:39], s[0:1], 16")
e("s_load_dwordx2 s[40:41], s[0:1], 32")
e("s_load_dwordx4 s[44:47], s[0:1], 48")
e("s_load_dwordx4 s[56:59], s[0:1], 64")
e("s_load_dwordx2 s[%d:%d], s[0:1], 80" % (sWS, sWS + 1))
e("v_lshrrev_b32 v1, 6, v0")
e("v_and_b32 v0, 63, v0")
e("v_readfirstlane_b32 s%d, v1" % sW)
e("s_and_b32 s%d, s2, 31" % sH)
e("s_lshr_b32 s%d, s2, 5" % sS)
if OPT["ts"]:
    for i in range(32):
        e("s_mov_b32 s%d, 0" % (sTS + i))
e("s_mov_b32 s%d, 0x3e0293ee" % sC)
import struct, math
cval = struct.unpack("<I", struct.pack("<f", (128 ** -0.5) * math.log2(math.e)))[0]
g.L[-1] = "s_mov_b32 s%d, 0x%08x" % (sC, cval)
e("s_mov_b32 s%d, 0x3f803f80" % sONE)
e("v_lshlrev_b32 v%d, 4, v0" % vKV)
e("s_lshl_b32 s%d, s%d, 10" % (sM0B, sW))
e("v_add_u32 v%d, s%d, v%d" % (vKV, sM0B, vKV))
e("s_lshl_b32 s%d, s%d, 14" % (sM0B, sW))
e("v_and_b32 v%d, 3, v0" % vT)
e("v_mov_b32 v%d, 0" % vM01); e("v_mov_b32 v%d, 0" % vM23)
e("v_mov_b32 v%d, 0xffff" % (vT + 1)); e("v_mov_b32 v%d, 0xffff0000" % (vT + 2))
for val, dst, src in ((0, vM01, vT + 1), (1, vM01, vT + 2), (2, vM23, vT + 1), (3, vM23, vT + 2)):
    e("v_cmp_eq_u32 vcc, %d, v%d" % (val, vT))
    e("s_nop 1")
    e("v_cndmask_b32 v%d, v%d, v%d, vcc" % (dst, dst, src))
e("s_waitcnt lgkmcnt(0)")
ts(0)
e("s_mov_b64 s[%d:%d], s[32:33]" % (sX, sX + 1))
e("s_mov_b64 s[%d:%d], s[56:57]" % (sOUT, sOUT + 1))
e("s_mov_b64 s[%d:%d], s[58:59]" % (sDBG, sDBG + 1))
e("s_lshl_b32 s42, s%d, 21" % sH)
e("s_lshl_b32 s43, s%d, 18" % sS)
e("s_add_u32 s42, s42, s43")
e("s_add_u32 s%d, s34, s42" % sK); e("s_addc_u32 s%d, s35, 0" % (sK + 1))
e("s_mov_b32 s%d, 0x4040000" % (sK + 2)); e("s_mov_b32 s%d, 0x20000" % (sK + 3))
e("s_add_u32 s%d, s36, s42" % sV); e("s_addc_u32 s%d, s37, 0" % (sV + 1))
e("s_mov_b32 s%d, 0x4040000" % (sV + 2)); e("s_mov_b32 s%d, 0x20000" % (sV + 3))
e("s_mov_b64 s[%d:%d], s[38:39]" % (sWQ, sWQ + 1))
e("s_mov_b32 s%d, %d" % (sWQ + 2, 640 * 8192)); e("s_mov_b32 s%d, 0x20000" % (sWQ + 3))
e("s_cmp_lg_u32 s%d, 0" % sW)
e("s_cbranch_scc1 L_noclear")
e("s_mul_i32 s42, s2, 3072")
e("v_lshlrev_b32 v%d, 4, v0" % vT)
e("v_add_u32 v%d, s42, v%d" % (vT, vT))
for i in range(4):
    e("v_mov_b32 v%d, -1" % (vKT + i))
for i in range(3):
    e("global_store_dwordx4 v%d, v[%d:%d], s[%d:%d] offset:%d sc1" % (vT, vKT, vKT + 3, sWS, sWS + 1, i * 1024))
def qp_own_addr(dst):
    e("s_lshl_b32 s42, s%d, 3" % sH); e("s_add_u32 s42, s42, s%d" % sS); e("s_lshl_b32 s42, s42, 9")
    e("s_add_u32 s42, s42, %d" % WS_QP)
    e("v_lshrrev_b32 v%d, 5, v0" % dst); e("v_mul_u32_u24 v%d, %d, v%d" % (dst, QP_B, dst))
    e("v_and_b32 v%d, 31, v0" % (dst + 1)); e("v_lshl_add_u32 v%d, v%d, 4, v%d" % (dst, dst + 1, dst))
    e("v_add_u32 v%d, s42, v%d" % (dst, dst))
qp_own_addr(vT)
e("global_store_dwordx4 v%d, v[%d:%d], s[%d:%d] sc1" % (vT, vKT, vKT + 3, sWS, sWS + 1))
e("s_cmp_ge_u32 s2, %d" % R4_N)
e("s_cbranch_scc1 L_noclear")
e("v_lshrrev_b32 v%d, 3, v0" % vT); e("v_mul_u32_u24 v%d, %d, v%d" % (vT, Q_ST, vT))
e("v_and_b32 v%d, 7, v0" % (vT + 1)); e("v_lshl_add_u32 v%d, v%d, 4, v%d" % (vT, vT + 1, vT))
e("s_lshl_b32 s42, s2, 7"); e("s_add_u32 s42, s42, %d" % WS_Q); e("v_add_u32 v%d, s42, v%d" % (vT, vT))
e("s_mov_b32 exec_hi, 0")
e("global_store_dwordx4 v%d, v[%d:%d], s[%d:%d] sc1" % (vT, vKT, vKT + 3, sWS, sWS + 1))
e("s_mov_b64 exec, -1")
g.lab("L_noclear")
vXA = 16
vXR = 32
e("v_lshlrev_b32 v%d, 4, v0" % vT)
for b in range(2):
    for i in range(4): e("v_mov_b32 v%d, 0" % (vXA + 8 * b + 4 + i))
for b in range(2):
    e("global_load_dwordx4 v[%d:%d], v%d, s[%d:%d] offset:%d" % (vXA + 8 * b, vXA + 8 * b + 3, vT, sX, sX + 1, b * 1280))
e("s_mov_b64 exec, 0xffff")
for b in range(2):
    e("global_load_dwordx4 v[%d:%d], v%d, s[%d:%d] offset:%d" % (vXA + 8 * b + 4, vXA + 8 * b + 7, vT, sX, sX + 1, b * 1280 + 1024))
e("s_mov_b64 exec, -1")
e("s_mul_i32 s42, s%d, 80" % sS); e("s_mul_i32 s43, s%d, 20" % sW); e("s_add_u32 s42, s42, s43")
e("v_lshrrev_b32 v%d, 4, v0" % vT); e("v_add_u32 v%d, s42, v%d" % (vT, vT))
e("v_lshlrev_b32 v%d, 1, v%d" % (vT + 1, vT))
for b in range(2):
    for i in range(5):
        e("global_load_ushort v%d, v%d, s[%d:%d] offset:%d" % (vXR + 5 * b + i, vT + 1, sX, sX + 1, b * 1280 + 8 * i))
e("v_lshlrev_b32 v%d, 13, v%d" % (vT, vT))
e("v_and_b32 v%d, 15, v0" % (vT + 1)); e("v_lshl_add_u32 v%d, v%d, 4, v%d" % (vT, vT + 1, vT))
e("s_lshl_b32 s42, s%d, 8" % sH)
for i in range(5):
    e("buffer_load_dwordx4 a[%d:%d], v%d, s[%d:%d], s42 offen" % (4 * i, 4 * i + 3, vT, sWQ, sWQ + 3))
    e("s_add_u32 s42, s42, %d" % (4 * 8192))
e("s_mov_b32 s%d, 0" % sOFF)
for t in range(KPRE):
    e("buffer_load_dwordx4 v[%d:%d], v%d, s[%d:%d], s%d offen nt" % (vK0 + 4 * t, vK0 + 4 * t + 3, vKV, sK, sK + 3, sOFF))
    e("s_add_u32 s%d, s%d, 4096" % (sOFF, sOFF))

e("s_mov_b32 s%d, 0" % sROLE); e("s_mov_b32 s%d, 0" % sJ)
e("s_mov_b32 s%d, 0" % sKS); e("s_mov_b32 s%d, 0" % sGRP)
e("s_mov_b32 s%d, 0" % sHAS4); e("s_mov_b32 s%d, 0" % sCLS); e("s_mov_b32 s%d, 0" % sPAR); e("s_mov_b32 s%d, 0" % sRING)
e("s_mov_b64 s[%d:%d], s[38:39]" % (sWT, sWT + 1))
e("s_mov_b32 s%d, %d" % (sWT + 2, 640 * 8192)); e("s_mov_b32 s%d, 0x20000" % (sWT + 3))
OP_ATT, OP_S1, OP_S2, OP_S3, OP_S4, OP_RING, OP_LK = 1, 2, 3, 4, 5, 6, 7
def prog(steps):
    v = 0
    for i, (op, inv) in enumerate(steps):
        v |= (op | (inv << 4)) << (8 * i)
    e("s_mov_b32 s%d, 0x%08x" % (sPROG, v & 0xffffffff)); e("s_mov_b32 s%d, 0x%08x" % (sPROG + 1, v >> 32))
prog([(OP_RING, 2), (OP_ATT, 1), (OP_LK, 3), (OP_ATT, 3)])
def in_range(lo, n, skip):
    e("s_sub_u32 s42, s2, %d" % lo)
    e("s_cmp_lt_u32 s42, %d" % n)
    e("s_cbranch_scc0 %s" % skip)

def gemv64_consts(NL, rowb):
    KW = 8 * NL
    e("s_mul_i32 s42, s%d, %d" % (sW, NL * 1024))
    e("s_add_u32 s42, s42, %d" % LP)
    e("v_lshlrev_b32 v%d, 4, v0" % vRW)
    e("v_add_u32 v%d, s42, v%d" % (vRW, vRW))
    e("v_lshrrev_b32 v%d, 3, v0" % vT)
    e("v_mul_u32_u24 v%d, %d, v%d" % (vRP, NL * 4, vT))
    e("s_mul_i32 s42, s%d, %d" % (sW, KW * 4))
    e("s_add_u32 s42, s42, %d" % PD)
    e("v_add_u32 v%d, s42, v%d" % (vRP, vRP))
    e("v_and_b32 v%d, 7, v0" % vRR)
    e("v_lshlrev_b32 v%d, 3, v%d" % (vRR, vRR))
    e("v_lshrrev_b32 v%d, 5, v0" % (vT + 1))
    e("v_lshl_add_u32 v%d, v%d, 2, v%d" % (vRR, vT + 1, vRR))
    e("v_bfe_u32 v%d, v0, 4, 1" % (vT + 1))
    e("v_add_u32 v%d, v%d, v%d" % (vRR, vRR, vT + 1))
    e("v_bfe_u32 v%d, v0, 3, 1" % (vT + 1))
    e("v_lshl_add_u32 v%d, v%d, 1, v%d" % (vRR, vT + 1, vRR))
    e("s_lshl_b32 s42, s%d, 8" % sW)
    e("s_add_u32 s42, s42, %d" % RED)
    e("v_lshlrev_b32 v%d, 2, v%d" % (vRR, vRR))
    e("v_add_u32 v%d, s42, v%d" % (vRR, vRR))

def gemv64_wload(NL, rowb, k0_expr_sreg, cb_sreg, vT=vT, srd=sWT):
    KW = 8 * NL
    e("v_lshrrev_b32 v%d, 3, v0" % vT)
    e("v_mul_u32_u24 v%d, %d, v%d" % (vT, NL * rowb, vT)) if NL * rowb < (1 << 24) else None
    e("v_and_b32 v%d, 7, v0" % (vT + 1))
    e("v_lshl_add_u32 v%d, v%d, 4, v%d" % (vT, vT + 1, vT))
    e("s_mul_i32 s42, s%d, %d" % (sW, KW))
    if k0_expr_sreg is not None:
        e("s_add_u32 s42, s42, s%d" % k0_expr_sreg)
    e("s_mul_i32 s42, s42, %d" % rowb)
    e("s_add_u32 s42, s42, s%d" % cb_sreg)
    e("s_mul_i32 s43, s%d, %d" % (sW, NL * 1024))
    e("s_add_u32 s43, s43, %d" % LP)
    for i in range(NL):
        e("s_mov_b32 m0, s43")
        e("s_add_u32 s43, s43, 1024")
        e("buffer_load_dwordx4 v%d, s[%d:%d], s42 offen %slds" % (vT, srd, srd + 3, WNT))
        e("s_add_u32 s42, s42, %d" % rowb)

def x160_consts():
    e("v_min_u32 v%d, 39, v0" % vT)
    e("v_lshlrev_b32 v%d, 2, v%d" % (vT, vT))
    e("s_mul_i32 s42, s%d, 160" % sW)
    e("v_add_u32 v%d, s42, v%d" % (vT, vT))
    e("v_lshlrev_b32 v%d, 1, v%d" % (vRB, vT))
    e("v_lshlrev_b32 v%d, 2, v%d" % (vRA, vT))
    e("v_add_u32 v%d, %d, v%d" % (vPW, PD, vRA))
    e("v_mov_b32 v%d, 0" % vFL)
    e("v_cmp_gt_u32 vcc, 40, v0")
    e("s_nop 1")
    e("v_cndmask_b32 v%d, v%d, 1.0, vcc" % (vFL, vFL))

def s1_consts():
    gemv64_consts(16, 1280)
    e("s_lshl_b32 s42, s%d, 2" % sKS); e("s_add_u32 s42, s42, s%d" % sW)
    e("v_lshrrev_b32 v%d, 5, v0" % vT)
    e("v_and_b32 v%d, 31, v0" % (vT + 1))
    e("v_lshlrev_b32 v%d, 4, v%d" % (vT + 1, vT + 1))
    e("v_lshl_add_u32 v%d, v%d, 9, v%d" % (vRA, vT, vT + 1))
    e("s_lshl_b32 s43, s42, 12"); e("v_add_u32 v%d, s43, v%d" % (vRA, vRA))
    e("v_lshlrev_b32 v%d, 5, v%d" % (vRB, vT))
    e("s_lshl_b32 s43, s42, 6"); e("v_add_u32 v%d, s43, v%d" % (vRB, vRB))
    e("v_lshl_add_u32 v%d, v%d, 2, v%d" % (vPW, vT, vT + 1))
    e("s_lshl_b32 s43, s%d, 9" % sW); e("s_add_u32 s43, s43, %d" % PD)
    e("v_add_u32 v%d, s43, v%d" % (vPW, vPW))

def s4_consts():
    gemv64_consts(20, 8192); x160_consts()

in_range(R1_0, R1_N, "L_nr1")
e("s_mov_b32 s%d, 1" % sROLE); e("s_mov_b32 s%d, s42" % sJ)
e("s_mov_b64 s[%d:%d], s[40:41]" % (sWT, sWT + 1)); e("s_mov_b32 s%d, %d" % (sWT + 2, 4096 * 1280))
e("s_and_b32 s%d, s%d, 7" % (sKS, sJ))
e("s_lshr_b32 s%d, s%d, 3" % (sGRP, sJ))
SN = OPT.get("sn")
prog([(OP_S1, 0), (OP_ATT, 1), (OP_S1, 2), (OP_ATT, 3), (OP_S1, 3)] if SN else [(OP_S1, 0), (OP_ATT, 1), (OP_S1, 2), (OP_S1, 1), (OP_ATT, 3), (OP_S1, 3)])
e("s_cmp_ge_u32 s2, %d" % R4_N)
e("s_cbranch_scc1 L_roledone")
e("s_mov_b32 s%d, 1" % sHAS4)
prog([(OP_S1, 0), (OP_S4, 1), (OP_ATT, 1), (OP_S1, 2), (OP_S4, 3), (OP_ATT, 3), (OP_S1, 3)] if SN else [(OP_S1, 0), (OP_S4, 1), (OP_ATT, 1), (OP_S1, 2), (OP_S1, 1), (OP_S4, 3), (OP_ATT, 3), (OP_S1, 3)])
e("s_branch L_roledone")
g.lab("L_nr1")
in_range(R2_0, R2_N, "L_nr2")
e("s_mov_b32 s%d, 2" % sROLE); e("s_mov_b32 s%d, s42" % sJ)
e("s_mov_b64 s[%d:%d], s[44:45]" % (sWT, sWT + 1)); e("s_mov_b32 s%d, %d" % (sWT + 2, 640 * 3456))
e("s_lshl_b32 s%d, s%d, 7" % (sGRP, sJ))
gemv64_consts(20, 3456); x160_consts()
prog([(OP_S2, 0), (OP_ATT, 1), (OP_S2, 1), (OP_S2, 2), (OP_ATT, 3), (OP_S2, 3)] if SN else [(OP_S2, 0), (OP_ATT, 1), (OP_S2, 2), (OP_S2, 1), (OP_ATT, 3), (OP_S2, 3)])
e("s_branch L_roledone")
g.lab("L_nr2")
in_range(R3_0, R3_N, "L_nr3")
prog([(OP_S3, 0), (OP_ATT, 1), (OP_S3, 1), (OP_S3, 2), (OP_ATT, 3), (OP_S3, 3)] if SN else ([(OP_S3, 0), (OP_ATT, 1), (OP_S3, 2), (OP_S3, 1), (OP_ATT, 3), (OP_S3, 3)] if OPT.get("s3old") else [(OP_S3, 0), (OP_ATT, 1), (OP_S3, 2), (OP_ATT, 3), (OP_S3, 1), (OP_S3, 3)]))
e("s_mov_b32 s%d, 3" % sROLE); e("s_mov_b32 s%d, s42" % sJ)
if not OPT.get("s3lin"):
    e("s_and_b32 s43, s42, 7"); e("s_mul_i32 s43, s43, 5"); e("s_lshr_b32 s42, s42, 3"); e("s_add_u32 s%d, s43, s42" % sJ)
e("s_mov_b64 s[%d:%d], s[46:47]" % (sWT, sWT + 1)); e("s_mov_b32 s%d, %d" % (sWT + 2, 1728 * 1280))
e("s_mul_i32 s42, s%d, 14336" % sW); e("s_add_u32 s42, s42, %d" % LP)
e("v_lshlrev_b32 v%d, 3, v0" % vRW); e("v_add_u32 v%d, s42, v%d" % (vRW, vRW))
e("s_mul_i32 s42, s%d, 1792" % sW); e("s_add_u32 s42, s42, %d" % PD3)
e("v_lshrrev_b32 v%d, 2, v0" % vT); e("v_lshlrev_b32 v%d, 4, v%d" % (vRP, vT)); e("v_add_u32 v%d, s42, v%d" % (vRP, vRP))
e("v_min_u32 v%d, 53, v0" % vT)
e("v_lshlrev_b32 v%d, 5, v%d" % (vPW, vT)); e("v_add_u32 v%d, s42, v%d" % (vPW, vPW))
e("v_lshlrev_b32 v%d, 4, v%d" % (vRA, vT))
e("s_mul_i32 s43, s%d, 864" % sW); e("v_add_u32 v%d, s43, v%d" % (vRA, vRA))
e("v_and_b32 v%d, 3, v0" % vT); e("v_lshlrev_b32 v%d, 2, v%d" % (vT, vT))
e("v_lshrrev_b32 v%d, 4, v0" % (vT + 1)); e("v_add_u32 v%d, v%d, v%d" % (vT, vT, vT + 1))
e("v_lshlrev_b32 v%d, 2, v%d" % (vRR, vT))
e("s_lshl_b32 s43, s%d, 6" % sW); e("s_add_u32 s43, s43, %d" % RED); e("v_add_u32 v%d, s43, v%d" % (vRR, vRR))
e("v_and_b32 v%d, 14, v0" % vT); e("v_lshlrev_b32 v%d, 1, v%d" % (vRB, vT))
e("s_lshl_b32 s43, s%d, 5" % sJ); e("v_add_u32 v%d, s43, v%d" % (vRB, vRB))
e("v_lshlrev_b32 v%d, 2, v0" % vT); e("v_add_u32 v%d, s42, v%d" % (vT, vT))
e("v_mov_b32 v%d, 0" % (vT + 1))
e("s_mov_b64 exec, 0xffff")
e("ds_write_b32 v%d, v%d offset:1728" % (vT, vT + 1))
e("s_mov_b64 exec, -1")
e("s_branch L_roledone")
g.lab("L_nr3")
e("s_mov_b32 s%d, 1" % sCLS)
in_range(NSET0, R1_N if SN else 0, "L_roledone")
e("s_mov_b32 s%d, 2" % sCLS); e("s_mov_b32 s%d, s42" % sJ)
e("s_mov_b64 s[%d:%d], s[40:41]" % (sWT, sWT + 1)); e("s_mov_b32 s%d, %d" % (sWT + 2, 4096 * 1280))
e("s_and_b32 s%d, s%d, 7" % (sKS, sJ))
e("s_lshr_b32 s%d, s%d, 3" % (sGRP, sJ))
prog([(OP_RING, 2), (OP_ATT, 1), (OP_S1, 1), (OP_LK, 3), (OP_ATT, 3)])
g.lab("L_roledone")


vP, vGA, vGAA, vGW = 16, 36, 44, 48

def signal_cleared():
    lab = g.newlab("L_nosig")
    e("s_cmp_lg_u32 s%d, 0" % sW)
    e("s_cbranch_scc1 %s" % lab)
    e("v_mov_b32 v%d, 0" % vT); e("v_mov_b32 v%d, 1" % (vT + 1))
    e("s_mov_b64 exec, 1")
    e("global_atomic_add v%d, v%d, s[%d:%d] sc1" % (vT, vT + 1, sDBG, sDBG + 1))
    e("s_mov_b64 exec, -1")
    g.lab(lab)

def reduce8_to_col(acc, out):
    g.nop(5)
    for i in range(4):
        e("v_permlane32_swap_b32 v%d, v%d" % (acc + i, acc + 4 + i))
    for i in range(4):
        e("v_add_f32 v%d, v%d, v%d" % (acc + i, acc + i, acc + 4 + i))
    g.nop(1)
    e("v_permlane16_swap_b32 v%d, v%d" % (acc, acc + 1))
    e("v_permlane16_swap_b32 v%d, v%d" % (acc + 2, acc + 3))
    e("v_add_f32 v%d, v%d, v%d" % (acc, acc, acc + 1))
    e("v_add_f32 v%d, v%d, v%d" % (acc + 2, acc + 2, acc + 3))
    g.nop(2)
    e("v_add_f32_dpp v%d, v%d, v%d row_ror:8 row_mask:0xf bank_mask:0x3" % (out, acc, acc))
    e("v_add_f32_dpp v%d, v%d, v%d row_ror:8 row_mask:0xf bank_mask:0xc" % (out, acc + 2, acc + 2))

def gemv64(NL, ones=False):
    g.lg = []
    for i in range(min(4, NL)):
        g.lds("ds_read_b128 v[%d:%d], v%d offset:%d" % (vGW + 4 * i, vGW + 4 * i + 3, vRW, i * 1024), "W%d" % i)
    if not ones:
        for j in range(NL // 4):
            g.lds("ds_read_b128 v[%d:%d], v%d offset:%d" % (vP + 4 * j, vP + 4 * j + 3, vRP, j * 16), "P%d" % j)
    for i in range(8):
        e("v_mov_b32 v%d, 0" % (vGA + i))
    def ands(i):
        b = vGAA + 2 * (i % 2)
        if ones:
            if i < 2:
                e("v_and_b32 v%d, s%d, v%d" % (b, sONE, vM01)); e("v_and_b32 v%d, s%d, v%d" % (b + 1, sONE, vM23))
        else:
            if i % 4 == 0:
                g.lwait("P%d" % (i // 4))
            e("v_and_b32 v%d, v%d, v%d" % (b, vP + i, vM01)); e("v_and_b32 v%d, v%d, v%d" % (b + 1, vP + i, vM23))
    ands(0)
    for i in range(NL):
        if i + 1 < NL:
            ands(i + 1)
        if ones and i >= 1:
            pass
        g.lwait("W%d" % i)
        if i == 0 or ones:
            g.nop(2)
        b = vGAA + 2 * (i % 2); wb = vGW + 4 * (i % 4)
        e("v_mfma_f32_4x4x4_16b_bf16 v[%d:%d], v[%d:%d], v[%d:%d], v[%d:%d]" % (vGA, vGA + 3, b, b + 1, wb, wb + 1, vGA, vGA + 3))
        e("v_mfma_f32_4x4x4_16b_bf16 v[%d:%d], v[%d:%d], v[%d:%d], v[%d:%d]" % (vGA + 4, vGA + 7, b, b + 1, wb + 2, wb + 3, vGA + 4, vGA + 7))
        if i + 4 < NL:
            g.lds("ds_read_b128 v[%d:%d], v%d offset:%d" % (wb, wb + 3, vRW, (i + 4) * 1024), "W%d" % (i + 4))
    reduce8_to_col(vGA, vGAA)
    e("ds_write_b32 v%d, v%d" % (vRR, vGAA))
    g.lg = []

def wave_sum2(a, b, t):
    for ctl in ("quad_perm:[1,0,3,2]", "quad_perm:[2,3,0,1]", "row_half_mirror", "row_mirror"):
        g.nop(1)
        e("v_add_f32_dpp v%d, v%d, v%d %s row_mask:0xf bank_mask:0xf" % (a, a, a, ctl))
        e("v_add_f32_dpp v%d, v%d, v%d %s row_mask:0xf bank_mask:0xf" % (b, b, b, ctl))
    g.nop(2)
    e("v_permlane32_swap_b32 v%d, v%d" % (a, b))
    e("v_add_f32 v%d, v%d, v%d" % (a, a, b))
    e("v_mov_b32 v%d, v%d" % (t, a))
    g.nop(2)
    e("v_permlane16_swap_b32 v%d, v%d" % (a, t))
    e("v_add_f32 v%d, v%d, v%d" % (a, a, t))

def x_to_p_and_stats(x0):
    for i in range(4):
        e("v_cvt_pk_bf16_f32 v%d, v%d, v%d" % (vGW + i, x0 + i, x0 + i))
    e("ds_write_b128 v%d, v[%d:%d]" % (vPW, vGW, vGW + 3))
    e("v_add_f32 v%d, v%d, v%d" % (vT, x0, x0 + 1))
    e("v_add_f32 v%d, v%d, v%d" % (vT + 1, x0 + 2, x0 + 3))
    e("v_mul_f32 v%d, v%d, v%d" % (vT + 2, x0, x0))
    e("v_add_f32 v%d, v%d, v%d" % (vT, vT, vT + 1))
    for i in (1, 2, 3):
        e("v_fmac_f32 v%d, v%d, v%d" % (vT + 2, x0 + i, x0 + i))
    e("v_mul_f32 v%d, v%d, v%d" % (vT, vT, vFL))
    e("v_mul_f32 v%d, v%d, v%d" % (vT + 2, vT + 2, vFL))
    wave_sum2(vT, vT + 2, vT + 1)
    e("v_lshrrev_b32 v%d, 5, v0" % (vT + 1))
    e("v_lshlrev_b32 v%d, 2, v%d" % (vT + 1, vT + 1))
    e("s_lshl_b32 s%d, s%d, 3" % (sT, sW)); e("s_add_u32 s%d, s%d, %d" % (sT, sT, ST))
    e("v_add_u32 v%d, s%d, v%d" % (vT + 1, sT, vT + 1))
    e("s_mov_b32 exec_lo, 1"); e("s_mov_b32 exec_hi, 1")
    e("ds_write_b32 v%d, v%d" % (vT + 1, vT))
    e("s_mov_b64 exec, -1")
    e("s_waitcnt lgkmcnt(0)")

def final_col_sum(y, with_ln):
    e("v_lshlrev_b32 v%d, 2, v0" % vT)
    e("v_add_u32 v%d, %d, v%d" % (vT + 1, RED, vT))
    e("ds_read2_b32 v[%d:%d], v%d offset0:0 offset1:64" % (16, 17, vT + 1))
    e("ds_read2_b32 v[%d:%d], v%d offset0:128 offset1:192" % (18, 19, vT + 1))
    if with_ln:
        e("v_mov_b32 v%d, %d" % (vT + 2, ST))
        e("ds_read_b128 v[20:23], v%d" % (vT + 2))
        e("ds_read_b128 v[24:27], v%d offset:16" % (vT + 2))
        e("v_add_u32 v%d, %d, v%d" % (vT + 1, CS, vT))
        e("ds_read_b32 v28, v%d" % (vT + 1))
    e("s_waitcnt lgkmcnt(0)")
    e("v_add_f32 v16, v16, v17"); e("v_add_f32 v18, v18, v19"); e("v_add_f32 v%d, v16, v18" % y)
    if with_ln:
        e("v_add_f32 v20, v20, v22"); e("v_add_f32 v24, v24, v26"); e("v_add_f32 v20, v20, v24")
        e("v_add_f32 v21, v21, v23"); e("v_add_f32 v25, v25, v27"); e("v_add_f32 v21, v21, v25")
        e("v_mul_f32 v20, 0x3acccccd, v20")
        e("v_mul_f32 v21, 0x3acccccd, v21")
        e("v_fma_f32 v21, -v20, v20, v21")
        e("v_add_f32 v21, 0x3727c5ac, v21")
        e("v_rsq_f32 v21, v21")
        e("v_fma_f32 v%d, -v20, v28, v%d" % (y, y))
        e("v_mul_f32 v%d, v%d, v21" % (y, y))

def round_bf16(r, t=None):
    e("v_cvt_pk_bf16_f32 v%d, v%d, v%d" % (r, r, r))
    e("v_and_b32 v%d, 0xffff0000, v%d" % (r, r))

def pack_pair_even(y, out):
    g.nop(2)
    e("v_mov_b32_dpp v%d, v%d quad_perm:[1,0,3,2] row_mask:0xf bank_mask:0xf" % (out, y))
    e("v_cvt_pk_bf16_f32 v%d, v%d, v%d" % (out, y, out))

def pack8(y, out):
    g.nop(2)
    e("v_mov_b32_dpp v%d, v%d quad_perm:[1,0,3,2] row_mask:0xf bank_mask:0xf" % (out, y))
    e("v_cvt_pk_bf16_f32 v%d, v%d, v%d" % (out, y, out))
    g.nop(2)
    e("v_mov_b32_dpp v%d, v%d quad_perm:[2,3,0,1] row_mask:0xf bank_mask:0xf" % (out + 1, out))
    e("v_mov_b32_dpp v%d, v%d row_shl:4 row_mask:0xf bank_mask:0xf" % (out + 2, out))
    g.nop(1)
    e("v_mov_b32_dpp v%d, v%d row_shl:4 row_mask:0xf bank_mask:0xf" % (out + 3, out + 1))

def exec8():
    e("s_mov_b32 exec_lo, 0x01010101"); e("s_mov_b32 exec_hi, 0x01010101")

def colsum(NL):
    gemv64(NL, ones=True)
    e("s_waitcnt lgkmcnt(0)")
    e("s_barrier")
    lab = g.newlab("L_cs")
    e("s_cmp_lg_u32 s%d, 0" % sW)
    e("s_cbranch_scc1 %s" % lab)
    final_col_sum(30, False)
    e("v_add_u32 v%d, %d, v%d" % (vT + 1, CS, vT))
    e("ds_write_b32 v%d, v30" % (vT + 1))
    e("s_waitcnt lgkmcnt(0)")
    g.lab(lab)
    e("s_barrier")

def s3_wload(vT=vT):
    e("v_bfe_u32 v%d, v0, 1, 4" % vT)
    e("v_mul_u32_u24 v%d, %d, v%d" % (vT, 4 * 1280, vT))
    e("v_lshrrev_b32 v%d, 5, v0" % (vT + 1))
    e("v_mul_u32_u24 v%d, 1280, v%d" % (vT + 1, vT + 1))
    e("v_add_u32 v%d, v%d, v%d" % (vT, vT, vT + 1))
    e("v_and_b32 v%d, 1, v0" % (vT + 1))
    e("v_lshl_add_u32 v%d, v%d, 4, v%d" % (vT, vT + 1, vT))
    e("s_mul_i32 s42, s%d, %d" % (sW, 432 * 1280))
    e("s_lshl_b32 s43, s%d, 5" % sJ)
    e("s_add_u32 s42, s42, s43")
    e("s_mul_i32 s43, s%d, 14336" % sW); e("s_add_u32 s43, s43, %d" % LP)
    for ld in range(14):
        i0 = 2 * ld
        rowoff = (64 * (i0 // 4) + (i0 % 4)) * 1280
        e("s_mov_b32 m0, s43")
        e("s_add_u32 s44, s42, %d" % rowoff)
        e("buffer_load_dwordx4 v%d, s[%d:%d], s44 offen %slds" % (vT, sWT, sWT + 3, WNT))
        e("s_add_u32 s43, s43, 1024")

XRM = 0 if OPT.get("nox2r") else 3
def x2_replica():
    e("s_and_b32 s%d, s%d, %d" % (sT + 1, sJ, XRM)); e("s_mul_i32 s%d, s%d, %d" % (sT + 1, sT + 1, X2R)); e("s_add_u32 s%d, s%d, s%d" % (sT, sT, sT + 1))

def s4_block():
    g.lab("L_s4")
    e("s_mov_b32 s%d, s%d" % (sTQ, sINV))
    s4_consts()
    nc = g.newlab("L_s4nc")
    e("s_cmp_lg_u32 s%d, 1" % sTQ); e("s_cbranch_scc1 %s" % nc)
    ts(24)
    e("s_waitcnt vmcnt(0)")
    ts(25)
    colsum(20)
    ts(26)
    g.lab(nc)
    e("s_sub_u32 s%d, s%d, 1" % (sT, sTQ)); e("s_mul_i32 s%d, s%d, %d" % (sT, sT, X2_ST)); e("s_add_u32 s%d, s%d, %d" % (sT, sT, WS_X2))
    x2_replica()
    e("v_add_u32 v%d, s%d, v%d" % (50, sT, vRB))
    fpoll(lambda: e("global_load_dwordx2 v[4:5], v50, s[%d:%d] sc1" % (sWS, sWS + 1)), 1, [4, 5], vT)
    ts_s4(0)
    e("v_lshlrev_b32 v16, 16, v4"); e("v_and_b32 v17, 0xffff0000, v4")
    e("v_lshlrev_b32 v18, 16, v5"); e("v_and_b32 v19, 0xffff0000, v5")
    x_to_p_and_stats(16)
    gemv64(20)
    e("s_waitcnt lgkmcnt(0)")
    e("s_barrier")
    lab = g.newlab("L_s4w")
    e("s_cmp_lg_u32 s%d, 0" % sW)
    e("s_cbranch_scc1 %s" % lab)
    final_col_sum(30, True)
    pack8(30, 32)
    e("s_mul_i32 s%d, s%d, %d" % (sT, sTQ, Q_ST)); e("s_add_u32 s%d, s%d, %d" % (sT, sT, WS_Q))
    e("s_lshl_b32 s%d, s%d, 7" % (sT + 1, sJ)); e("s_add_u32 s%d, s%d, s%d" % (sT, sT, sT + 1))
    e("v_lshlrev_b32 v%d, 1, v0" % vT); e("v_add_u32 v%d, s%d, v%d" % (vT, sT, vT))
    exec8()
    e("global_store_dwordx4 v%d, v[32:35], s[%d:%d] sc1" % (vT, sWS, sWS + 1))
    e("s_mov_b64 exec, -1")
    g.lab(lab)
    ts_s4(1)
    e("s_cmp_eq_u32 s%d, 3" % sTQ)
    e("s_cselect_b32 s%d, 1, 0" % sLAX)
    e("s_barrier")
    e("s_branch L_disp")

def ts_s4(which):
    if not OPT["ts"]:
        return
    e("s_memrealtime s[%d:%d]" % (sCLK, sCLK + 1))
    e("s_waitcnt lgkmcnt(0)")
    for tq, idx in ((1, 2 if which == 0 else 30), (3, 3 if which == 0 else 31)):
        e("s_cmp_eq_u32 s%d, %d" % (sTQ, tq))
        e("s_cselect_b32 s%d, s%d, s%d" % (sTS + idx, sCLK, sTS + idx))

def allreduce_rows(regs, tmps):
    for r, t in zip(regs, tmps): e("v_mov_b32 v%d, v%d" % (t, r))
    g.nop(2)
    for r, t in zip(regs, tmps): e("v_permlane16_swap_b32 v%d, v%d" % (r, t))
    for r, t in zip(regs, tmps): e("v_add_f32 v%d, v%d, v%d" % (r, r, t))
    for r, t in zip(regs, tmps): e("v_mov_b32 v%d, v%d" % (t, r))
    g.nop(2)
    for r, t in zip(regs, tmps): e("v_permlane32_swap_b32 v%d, v%d" % (r, t))
    for r, t in zip(regs, tmps): e("v_add_f32 v%d, v%d, v%d" % (r, r, t))

def q_initial():
    st = [44, 45, 46, 47]
    for b in range(2):
        for i in range(8):
            x = vXA + 8 * b + i
            if i == 0:
                e("v_dot2_f32_bf16 v%d, v%d, s%d, 0" % (st[2 * b], x, sONE))
                e("v_dot2_f32_bf16 v%d, v%d, v%d, 0" % (st[2 * b + 1], x, x))
            else:
                e("v_dot2_f32_bf16 v%d, v%d, s%d, v%d" % (st[2 * b], x, sONE, st[2 * b]))
                e("v_dot2_f32_bf16 v%d, v%d, v%d, v%d" % (st[2 * b + 1], x, x, st[2 * b + 1]))
    g.nop(3)
    for ctl in ("quad_perm:[1,0,3,2]", "quad_perm:[2,3,0,1]", "row_half_mirror", "row_mirror"):
        for r in st:
            e("v_add_f32_dpp v%d, v%d, v%d %s row_mask:0xf bank_mask:0xf" % (r, r, r, ctl))
    allreduce_rows(st, [48, 49, 50, 51])
    for b in range(2):
        m, v = st[2 * b], st[2 * b + 1]
        e("v_mul_f32 v%d, 0x3acccccd, v%d" % (m, m))
        e("v_mul_f32 v%d, 0x3acccccd, v%d" % (v, v))
        e("v_fma_f32 v%d, -v%d, v%d, v%d" % (v, m, m, v))
        e("v_add_f32 v%d, 0x3727c5ac, v%d" % (v, v))
        e("v_rsq_f32 v%d, v%d" % (v, v))
    e("s_nop 0")
    for b in range(2):
        for i in range(5):
            r = vXR + 5 * b + i
            e("v_lshlrev_b32 v%d, 16, v%d" % (r, r))
            e("v_sub_f32 v%d, v%d, v%d" % (r, r, st[2 * b]))
            e("v_mul_f32 v%d, v%d, v%d" % (r, r, st[2 * b + 1]))
            e("v_cvt_pk_bf16_f32 v%d, v%d, v%d" % (r, r, r))
    for i in range(16): e("v_mov_b32 v%d, 0" % (16 + i))
    n = 0
    for i in range(5):
        for b in range(2):
            A = 52 + 2 * (n % 2); n += 1
            e("v_and_b32 v%d, v%d, v%d" % (A, vXR + 5 * b + i, vM01)); e("v_and_b32 v%d, v%d, v%d" % (A + 1, vXR + 5 * b + i, vM23))
            g.nop(2)
            acc = 16 + 8 * b
            e("v_mfma_f32_4x4x4_16b_bf16 v[%d:%d], v[%d:%d], a[%d:%d], v[%d:%d]" % (acc, acc + 3, A, A + 1, 4 * i, 4 * i + 1, acc, acc + 3))
            e("v_mfma_f32_4x4x4_16b_bf16 v[%d:%d], v[%d:%d], a[%d:%d], v[%d:%d]" % (acc + 4, acc + 7, A, A + 1, 4 * i + 2, 4 * i + 3, acc + 4, acc + 7))
    g.nop(5)
    for b in range(2):
        acc = 16 + 8 * b
        for i in range(4):
            e("v_permlane32_swap_b32 v%d, v%d" % (acc + i, acc + 4 + i))
    for b in range(2):
        acc = 16 + 8 * b
        for i in range(4):
            e("v_add_f32 v%d, v%d, v%d" % (acc + i, acc + i, acc + 4 + i))
    g.nop(1)
    for b in range(2):
        acc = 16 + 8 * b
        e("v_permlane16_swap_b32 v%d, v%d" % (acc, acc + 1))
        e("v_permlane16_swap_b32 v%d, v%d" % (acc + 2, acc + 3))
    for b in range(2):
        acc = 16 + 8 * b
        e("v_add_f32 v%d, v%d, v%d" % (acc, acc, acc + 1))
        e("v_add_f32 v%d, v%d, v%d" % (acc + 2, acc + 2, acc + 3))
    t1 = vT + 1
    e("s_lshl_b32 s%d, s%d, 10" % (sT, sW)); e("s_add_u32 s%d, s%d, %d" % (sT, sT, LP))
    e("v_and_b32 v%d, 15, v0" % t1); e("v_lshlrev_b32 v%d, 5, v%d" % (t1, t1))
    e("v_lshrrev_b32 v%d, 5, v0" % (vT + 3)); e("v_lshl_add_u32 v%d, v%d, 4, v%d" % (t1, vT + 3, t1))
    e("v_bfe_u32 v%d, v0, 4, 1" % (vT + 3)); e("v_lshl_add_u32 v%d, v%d, 2, v%d" % (t1, vT + 3, t1))
    e("v_add_u32 v%d, s%d, v%d" % (t1, sT, t1))
    e("ds_write2_b32 v%d, v16, v18 offset0:0 offset1:2" % t1)
    e("ds_write2_b32 v%d, v24, v26 offset0:128 offset1:130" % t1)
    e("s_waitcnt lgkmcnt(0)")
    e("s_barrier")
    lab = g.newlab("L_qiw")
    e("s_cmp_lg_u32 s%d, 0" % sW); e("s_cbranch_scc1 %s" % lab)
    e("v_lshlrev_b32 v%d, 4, v0" % t1); e("v_add_u32 v%d, %d, v%d" % (t1, LP, t1))
    for w in range(4):
        e("ds_read_b128 v[%d:%d], v%d offset:%d" % (16 + 4 * w, 19 + 4 * w, t1, w * 1024))
    qp_own_addr(vT + 2)
    e("s_waitcnt lgkmcnt(0)")
    for d in range(4):
        e("v_add_f32 v%d, v%d, v%d" % (16 + d, 16 + d, 20 + d)); e("v_add_f32 v%d, v%d, v%d" % (24 + d, 24 + d, 28 + d))
    for d in range(4):
        e("v_add_f32 v%d, v%d, v%d" % (16 + d, 16 + d, 24 + d))
    e("global_store_dwordx4 v%d, v[16:19], s[%d:%d] sc1" % (vT + 2, sWS, sWS + 1))
    g.lab(lab)

def qp_addr(dst):
    e("s_mov_b32 s%d, %d" % (sT, WS_QP))
    e("s_lshl_b32 s%d, s%d, 12" % (sT + 1, sH)); e("s_add_u32 s%d, s%d, s%d" % (sT, sT, sT + 1))
    e("v_lshrrev_b32 v%d, 4, v0" % dst); e("v_lshlrev_b32 v%d, 10, v%d" % (dst, dst))
    e("v_and_b32 v%d, 15, v0" % (dst + 1)); e("v_lshl_add_u32 v%d, v%d, 5, v%d" % (dst, dst + 1, dst))
    e("v_add_u32 v%d, s%d, v%d" % (dst, sT, dst))
    e("v_add_u32 v%d, %d, v%d" % (dst + 1, QP_B, dst))

def qp_issue(addr):
    for b in range(2):
        for i, off in enumerate((0, 16, 512, 528)):
            e("global_load_dwordx4 v[%d:%d], v%d, s[%d:%d] offset:%d sc1" % (16 + 16 * b + 4 * i, 19 + 16 * b + 4 * i, addr + b, sWS, sWS + 1, off))

def qp_finish(addr):
    bad = g.newlab("L_qbad"); good = g.newlab("L_qgood")
    sentinel_check(list(range(16, 48)), bad, vT)
    e("s_branch %s" % good)
    g.lab(bad)
    poll(lambda: qp_issue(addr), list(range(16, 48)), vT)
    g.lab(good)
    for b in range(2):
        for i in range(8): e("v_add_f32 v%d, v%d, v%d" % (16 + 16 * b + i, 16 + 16 * b + i, 24 + 16 * b + i))
    allreduce_rows(list(range(16, 24)) + list(range(32, 40)), list(range(24, 32)) + list(range(40, 48)))
    for i in range(4): e("v_cvt_pk_bf16_f32 v%d, v%d, v%d" % (vQ + i, 16 + 2 * i, 17 + 2 * i))
    for i in range(4): e("v_cvt_pk_bf16_f32 v%d, v%d, v%d" % (48 + i, 32 + 2 * i, 33 + 2 * i))
    e("s_lshl_b32 s%d, s%d, 8" % (sT, sW)); e("s_add_u32 s%d, s%d, %d" % (sT, sT, Q2S))
    e("v_and_b32 v%d, 15, v0" % vT); e("v_lshlrev_b32 v%d, 4, v%d" % (vT, vT)); e("v_add_u32 v%d, s%d, v%d" % (vT, sT, vT))
    e("s_mov_b64 exec, 0xffff")
    e("ds_write_b128 v%d, v[48:51]" % vT)
    e("s_mov_b64 exec, -1")

DEPTH = int(OPT.get("depth", 58))
def kload(t, wait=None):
    if wait is not None:
        e("s_waitcnt vmcnt(%d)" % min(wait, DEPTH))
    if t < 48:
        e("buffer_load_dwordx4 v[%d:%d], v%d, s[%d:%d], s%d offen nt" % (vK0 + 4 * t, vK0 + 4 * t + 3, vKV, sK, sK + 3, sOFF))
        e("s_add_u32 s%d, s%d, 4096" % (sOFF, sOFF))
    else:
        e("s_add_u32 m0, s%d, %d" % (sM0B, LQ + (t - 48) * 1024))
        e("s_nop 0")
        e("buffer_load_dwordx4 v%d, s[%d:%d], s%d offen nt lds" % (vKV, sK, sK + 3, sOFF))
        e("s_add_u32 s%d, s%d, 4096" % (sOFF, sOFF))

def vload(t, wait=58):
    e("s_waitcnt vmcnt(%d)" % min(wait, DEPTH))
    e("buffer_load_dwordx4 a[%d:%d], v%d, s[%d:%d], s%d offen nt" % (4 * t, 4 * t + 3, vKV, sV, sV + 3, sOFF))
    e("s_add_u32 s%d, s%d, 4096" % (sOFF, sOFF))

def lka():
    g.lab("L_lka")
    ts_first(5)
    e("s_mov_b32 s%d, s%d" % (sOFF, sBO))
    for t in range(56):
        if t == KPRE:
            g.lab("L_lka_pre")
        kload(t, 58 if t >= 32 else None)
    ts_first(6)
    e("s_cmp_eq_u32 s%d, 1" % sLKM)
    e("s_cbranch_scc1 L_softmax")

def lkbv():
    g.lab("L_lkbv")
    e("s_add_u32 s%d, s%d, %d" % (sOFF, sBO, 56 * 4096))
    for t in range(56, 64):
        kload(t, 58)
    e("v_mov_b32 v%d, 0" % vT)
    e("global_load_dword v%d, v%d, s[%d:%d] sc1" % (vT + 1, vT, sDBG, sDBG + 1))
    e("s_mov_b32 s%d, s%d" % (sOFF, sBO))
    for t in range(32):
        vload(t)
    e("s_waitcnt vmcnt(32)")
    e("v_readfirstlane_b32 s%d, v%d" % (sT, vT + 1))
    ok = g.newlab("L_cok")
    e("s_cmp_ge_u32 s%d, 256" % sT)
    e("s_cbranch_scc1 %s" % ok)
    counter_spin()
    g.lab(ok)
    ts_first(7)
    e("s_lshl_b32 s%d, s%d, 1" % (sINV, sLKM))
    e("s_min_u32 s%d, s%d, 3" % (sINV, sINV))
    if OPT["ts"]:
        e("s_lshl_b32 s%d, s%d, 2" % (sT, sINV))
        e("s_lshr_b32 s%d, 0x6320, s%d" % (sPH, sT)); e("s_and_b32 s%d, s%d, 15" % (sPH, sPH))
    noq = g.newlab("L_noq")
    e("s_cmp_eq_u32 s%d, 2" % sLKM)
    e("s_cbranch_scc1 %s" % noq)
    qp_addr(vT + 2)
    qp_issue(vT + 2)
    g.lab(noq)
    if KEEPV:
        k2 = g.newlab("L_keepv")
        e("s_cmp_eq_u32 s%d, 2" % sLKM); e("s_cbranch_scc0 %s" % k2)
        for t in range(32, 44):
            vload(t, 58)
        e("s_branch L_disp")
        g.lab(k2)
    for t in range(32, 64):
        vload(t, 50 if t < 44 else 58)
    e("s_cmp_eq_u32 s%d, 2" % sLKM)
    e("s_cbranch_scc1 L_disp")
    e("s_waitcnt vmcnt(32)")
    qp_finish(vT + 2)
    if (not OPT.get("wearly")):
        e("s_cmp_eq_u32 s%d, 1" % sROLE)
    else:
        e("s_cmp_lg_u32 s%d, 0" % sROLE)
    e("s_cselect_b32 s%d, 1, 0" % sLAX)
    e("s_branch L_qk")

def mid2():
    g.lab("L_mid2")
    if EARLY1:
        e("s_mov_b32 s%d, s%d" % (sVO, sBO))
        for t in range(64):
            e("s_waitcnt vmcnt(58)")
            e("buffer_load_dwordx4 a[%d:%d], v%d, s[%d:%d], s%d offen nt" % (4 * t, 4 * t + 3, vKV, sV, sV + 3, sVO))
            e("s_add_u32 s%d, s%d, 4096" % (sVO, sVO))
            if t == FLAGPOS: flag_store()
    e("s_mov_b32 s%d, 2" % sINV)
    e("s_mov_b32 s%d, s%d" % (sLAX, sHAS4))
    if OPT["ts"]:
        e("s_mov_b32 s%d, 3" % sPH)
    q2_read()
    e("s_waitcnt vmcnt(58) lgkmcnt(0)")
    e("s_branch L_qk")

def q2_read():
    e("s_lshl_b32 s%d, s%d, 8" % (sT, sW)); e("s_add_u32 s%d, s%d, %d" % (sT, sT, Q2S))
    e("v_and_b32 v%d, 15, v0" % vT); e("v_lshlrev_b32 v%d, 4, v%d" % (vT, vT)); e("v_add_u32 v%d, s%d, v%d" % (vT, sT, vT))
    e("ds_read_b128 v[%d:%d], v%d" % (vQ, vQ + 3, vT))

def flag_store():
    nf = g.newlab("L_nofl")
    e("s_cmp_eq_u32 s%d, 0" % sW); e("s_cbranch_scc0 %s" % nf)
    e("s_lshl_b32 s%d, s%d, 7" % (sT, sH)); e("s_lshl_b32 s%d, s%d, 4" % (sT + 1, sS)); e("s_add_u32 s%d, s%d, s%d" % (sT, sT, sT + 1))
    e("s_add_u32 s%d, s%d, %d" % (sT, sT, WS_FL))
    e("v_mov_b32 v48, s%d" % sT)
    for i in range(4): e("v_mov_b32 v%d, 0" % (52 + i))
    e("s_mov_b64 exec, 1")
    e("global_store_dwordx4 v48, v[52:55], s[%d:%d] sc1" % (sWS, sWS + 1))
    e("s_mov_b64 exec, -1")
    g.lab(nf)

def pv_c():
    g.lab("L_pvc")
    e("s_mov_b32 s%d, s%d" % (sVO, sBO))
    for i in range(8):
        e("v_mov_b32 v%d, 0" % (vACC + i))
    def ands(t):
        b = vA + 2 * (t % 3); T, u = t // 4, t % 4
        e("v_and_b32_dpp v%d, v%d, v%d row_newbcast:%d row_mask:0xf bank_mask:0xf" % (b, vS + T, vM01, 4 * u))
        e("v_and_b32_dpp v%d, v%d, v%d row_newbcast:%d row_mask:0xf bank_mask:0xf" % (b + 1, vS + T, vM23, 4 * u))
    def vl(t):
        e("s_waitcnt vmcnt(%d)" % min(58, int(OPT.get("depthc", 58))))
        e("buffer_load_dwordx4 a[%d:%d], v%d, s[%d:%d], s%d offen nt" % (4 * t, 4 * t + 3, vKV, sV, sV + 3, sVO))
        e("s_add_u32 s%d, s%d, 4096" % (sVO, sVO))
        if t == FLAGPOS: flag_store()
    ands(0)
    for t in range(64):
        if t + 1 < 64: ands(t + 1)
        else: g.nop(2)
        b = vA + 2 * (t % 3)
        e("v_mfma_f32_4x4x4_16b_bf16 v[%d:%d], v[%d:%d], a[%d:%d], v[%d:%d]" % (vACC, vACC + 3, b, b + 1, 4 * t, 4 * t + 1, vACC, vACC + 3))
        e("v_mfma_f32_4x4x4_16b_bf16 v[%d:%d], v[%d:%d], a[%d:%d], v[%d:%d]" % (vACC + 4, vACC + 7, b, b + 1, 4 * t + 2, 4 * t + 3, vACC + 4, vACC + 7))
        if t < 8 and not QKC: kload(56 + t, 58)
        if t >= 2: vl(t - 2)
    vl(62); vl(63)
    e("s_branch L_pvdone")

def pv_w():
    g.lab("L_pvw")
    e("s_mov_b32 s%d, 0" % sLAX)
    NL, rowb, tv = 16, 1280, 48
    e("v_lshrrev_b32 v%d, 3, v0" % tv)
    e("v_mul_u32_u24 v%d, %d, v%d" % (tv, NL * rowb, tv))
    e("v_and_b32 v%d, 7, v0" % (tv + 1))
    e("v_lshl_add_u32 v%d, v%d, 4, v%d" % (tv, tv + 1, tv))
    e("s_mul_i32 s42, s%d, %d" % (sW, 8 * NL))
    e("s_lshl_b32 s44, s%d, 9" % sKS); e("s_add_u32 s42, s42, s44")
    e("s_mul_i32 s42, s42, %d" % rowb)
    e("s_lshl_b32 s45, s%d, 7" % sGRP); e("s_add_u32 s42, s42, s45")
    e("s_mul_i32 s43, s%d, %d" % (sW, NL * 1024)); e("s_add_u32 s43, s43, %d" % LP)
    for i in range(8):
        e("v_mov_b32 v%d, 0" % (vACC + i))
    def ands(t):
        b = vA + 2 * (t % 3); T, u = t // 4, t % 4
        e("v_and_b32_dpp v%d, v%d, v%d row_newbcast:%d row_mask:0xf bank_mask:0xf" % (b, vS + T, vM01, 4 * u))
        e("v_and_b32_dpp v%d, v%d, v%d row_newbcast:%d row_mask:0xf bank_mask:0xf" % (b + 1, vS + T, vM23, 4 * u))
    ands(0)
    for t in range(64):
        if t + 1 < 64: ands(t + 1)
        else: g.nop(2)
        if t % 4 == 0:
            e("s_waitcnt vmcnt(%d)" % min(63, 60 - t + t // 4))
        b = vA + 2 * (t % 3)
        e("v_mfma_f32_4x4x4_16b_bf16 v[%d:%d], v[%d:%d], a[%d:%d], v[%d:%d]" % (vACC, vACC + 3, b, b + 1, 4 * t, 4 * t + 1, vACC, vACC + 3))
        e("v_mfma_f32_4x4x4_16b_bf16 v[%d:%d], v[%d:%d], a[%d:%d], v[%d:%d]" % (vACC + 4, vACC + 7, b, b + 1, 4 * t + 2, 4 * t + 3, vACC + 4, vACC + 7))
        if t % 4 == 1:
            e("s_mov_b32 m0, s43")
            e("s_add_u32 s43, s43, 1024")
            e("buffer_load_dwordx4 v%d, s[%d:%d], s42 offen %slds" % (tv, sWT, sWT + 3, WNT))
            e("s_add_u32 s42, s42, %d" % rowb)
    e("s_branch L_pvdone")

def pv_n():
    g.lab("L_pvn")
    for i in range(8):
        e("v_mov_b32 v%d, 0" % (vACC + i))
    def ands(t):
        b = vA + 2 * (t % 3); T, u = t // 4, t % 4
        e("v_and_b32_dpp v%d, v%d, v%d row_newbcast:%d row_mask:0xf bank_mask:0xf" % (b, vS + T, vM01, 4 * u))
        e("v_and_b32_dpp v%d, v%d, v%d row_newbcast:%d row_mask:0xf bank_mask:0xf" % (b + 1, vS + T, vM23, 4 * u))
    e("s_waitcnt lgkmcnt(0)")
    ands(0)
    for t in range(64):
        if t + 1 < 64: ands(t + 1)
        else: g.nop(2)
        b = vA + 2 * (t % 3)
        r, n = ("a", 4 * t) if t < 44 else ("v", vK0 + 4 * (t - 44))
        e("v_mfma_f32_4x4x4_16b_bf16 v[%d:%d], v[%d:%d], %s[%d:%d], v[%d:%d]" % (vACC, vACC + 3, b, b + 1, r, n, n + 1, vACC, vACC + 3))
        e("v_mfma_f32_4x4x4_16b_bf16 v[%d:%d], v[%d:%d], %s[%d:%d], v[%d:%d]" % (vACC + 4, vACC + 7, b, b + 1, r, n + 2, n + 3, vACC + 4, vACC + 7))
    e("s_branch L_pvdone")

def qaddr(dst):
    e("s_mul_i32 s%d, s%d, %d" % (sT, sINV, Q_ST)); e("s_add_u32 s%d, s%d, %d" % (sT, sT, WS_Q))
    e("s_lshl_b32 s%d, s%d, 8" % (sT + 1, sH)); e("s_add_u32 s%d, s%d, s%d" % (sT, sT, sT + 1))
    e("v_and_b32 v%d, 15, v0" % dst); e("v_lshlrev_b32 v%d, 4, v%d" % (dst, dst))
    e("v_add_u32 v%d, s%d, v%d" % (dst, sT, dst))

def dots(T, par, from_kt):
    out = []
    for jj in range(4):
        for u in range(4):
            src = (vKT + 4 * u + jj) if from_kt else (vK0 + 4 * (4 * T + u) + jj)
            d = vD + 4 * par + u
            if jj == 0:
                out.append("v_dot2_f32_bf16 v%d, v%d, v%d, 0" % (d, src, vQ + jj))
            else:
                out.append("v_dot2c_f32_bf16 v%d, v%d, v%d" % (d, src, vQ + jj))
    return out
def red(T, par):
    d = vD + 4 * par; s = vS + T
    return [
        "v_add_f32_dpp v%d, v%d, v%d row_ror:8 row_mask:0xf bank_mask:0x3" % (vE, d, d),
        "v_add_f32_dpp v%d, v%d, v%d row_ror:8 row_mask:0xf bank_mask:0x3" % (vE + 1, d + 1, d + 1),
        "v_add_f32_dpp v%d, v%d, v%d row_ror:8 row_mask:0xf bank_mask:0xc" % (vE, d + 2, d + 2),
        "v_add_f32_dpp v%d, v%d, v%d row_ror:8 row_mask:0xf bank_mask:0xc" % (vE + 1, d + 3, d + 3),
        "v_add_f32_dpp v%d, v%d, v%d row_shl:4 row_mask:0xf bank_mask:0x5" % (s, vE, vE),
        "v_add_f32_dpp v%d, v%d, v%d row_shr:4 row_mask:0xf bank_mask:0xa" % (s, vE + 1, vE + 1),
        "v_add_f32_dpp v%d, v%d, v%d quad_perm:[1,0,3,2] row_mask:0xf bank_mask:0xf" % (s, s, s),
        "v_add_f32_dpp v%d, v%d, v%d quad_perm:[2,3,0,1] row_mask:0xf bank_mask:0xf" % (s, s, s),
    ]
def red_tail(prev):
    r = red(*prev)
    g.nop(3)
    for i, x in enumerate(r):
        e(x)
        if i >= 3: g.nop(2)
        elif i == 1: g.nop(1)

sRM = 45
RD = int(OPT.get("ringd", 20))
RQ = RD - 20
def ring_slot(n):
    j = n % RD
    return (True, LQ + j * 1024) if j < RQ else (False, (j - RQ) * 1024)
def ring_issue(n):
    srd = sK if n < 64 else sV
    if n == 64:
        e("s_mov_b32 s%d, 0x4000000" % sOFF)
    inq, off = ring_slot(n)
    e("s_add_u32 m0, s%d, %d" % (sM0B if inq else sRM, off))
    e("s_nop 0")
    e("buffer_load_dwordx4 v%d, s[%d:%d], s%d offen nt lds" % (vKV, srd, srd + 3, sOFF))
    e("s_add_u32 s%d, s%d, 4096" % (sOFF, sOFF))
def ring_wait(G):
    issued = min(128, RD + 4 * G)
    e("s_waitcnt vmcnt(%d)" % (issued - (4 * G + 4)))

def ring_k():
    g.lab("L_ring")
    e("s_mul_i32 s%d, s%d, 20480" % (sRM, sW)); e("s_add_u32 s%d, s%d, %d" % (sRM, sRM, RING))
    if OPT.get("gate"):
        e("v_lshlrev_b32 v%d, 4, v0" % (vT + 2)); e("v_add_u32 v%d, %d, v%d" % (vT + 2, WS_GO, vT + 2))
        e("s_mov_b32 exec_hi, 0")
        poll(lambda: e("global_load_dword v%d, v%d, s[%d:%d] sc1" % (vT + 3, vT + 2, sWS, sWS + 1)), [vT + 3], vT)
        e("s_mov_b64 exec, -1")
    e("s_mov_b32 s%d, 0x4000000" % sOFF)
    for n in range(RD):
        ring_issue(n)
    q2_read()
    e("s_waitcnt lgkmcnt(0)")
    ts_dyn(8)
    ra = vT + 3
    rq = vT + 4
    e("v_lshlrev_b32 v%d, 4, v0" % ra); e("v_add_u32 v%d, s%d, v%d" % (rq, sM0B, ra)); e("v_add_u32 v%d, s%d, v%d" % (ra, sRM, ra))
    prev = None
    for G in range(16):
        par = G % 2
        ring_wait(G)
        for u in range(4):
            inq, off = ring_slot(4 * G + u)
            e("ds_read_b128 v[%d:%d], v%d offset:%d" % (vKT + 4 * u, vKT + 4 * u + 3, rq if inq else ra, off))
        if prev is not None:
            r = red(*prev)
            for i, x in enumerate(r):
                e(x)
                if i >= 3: g.nop(2)
                elif i == 1: g.nop(1)
        e("s_waitcnt lgkmcnt(0)")
        for u in range(4):
            ring_issue(4 * G + u + RD)
        for x in dots(G, par, True): e(x)
        g.nop(3)
        prev = (G, par)
    red_tail(prev)
    e("s_mov_b32 s%d, 1" % sRING)
    e("s_branch L_softmax")

def ring_pv():
    g.lab("L_pvring")
    e("s_mov_b32 s%d, 0" % sRING)
    VT = [46, 50, 54, 60]
    ra = 44; rq = 45
    e("v_lshlrev_b32 v%d, 4, v0" % ra); e("v_add_u32 v%d, s%d, v%d" % (rq, sM0B, ra)); e("v_add_u32 v%d, s%d, v%d" % (ra, sRM, ra))
    for i in range(8):
        e("v_mov_b32 v%d, 0" % (vACC + i))
    def ands(t):
        b = vA + 2 * (t % 2); T, u = t // 4, t % 4
        e("v_and_b32_dpp v%d, v%d, v%d row_newbcast:%d row_mask:0xf bank_mask:0xf" % (b, vS + T, vM01, 4 * u))
        e("v_and_b32_dpp v%d, v%d, v%d row_newbcast:%d row_mask:0xf bank_mask:0xf" % (b + 1, vS + T, vM23, 4 * u))
    for G in range(16, 32):
        ring_wait(G)
        for u in range(4):
            inq, off = ring_slot(4 * G + u)
            e("ds_read_b128 v[%d:%d], v%d offset:%d" % (VT[u], VT[u] + 3, rq if inq else ra, off))
        t0 = 4 * (G - 16)
        ands(t0)
        e("s_waitcnt lgkmcnt(0)")
        for u in range(4):
            if 4 * G + u + RD < 128:
                ring_issue(4 * G + u + RD)
        for u in range(4):
            t = t0 + u
            if u < 3: ands(t + 1)
            else: g.nop(2)
            b = vA + 2 * (t % 2)
            e("v_mfma_f32_4x4x4_16b_bf16 v[%d:%d], v[%d:%d], v[%d:%d], v[%d:%d]" % (vACC, vACC + 3, b, b + 1, VT[u], VT[u] + 1, vACC, vACC + 3))
            e("v_mfma_f32_4x4x4_16b_bf16 v[%d:%d], v[%d:%d], v[%d:%d], v[%d:%d]" % (vACC + 4, vACC + 7, b, b + 1, VT[u] + 2, VT[u] + 3, vACC + 4, vACC + 7))
    if RQ:
        e("s_mov_b32 s%d, %d" % (sOFF, 48 * 4096))
        for t in range(48, 48 + RQ):
            kload(t)
    e("s_branch L_pvdone")

def att_core():
    g.lab("L_att")
    qaddr(vT + 2)
    fpoll(lambda: e("global_load_dwordx4 v[%d:%d], v%d, s[%d:%d] sc1" % (vQ, vQ + 3, vT + 2, sWS, sWS + 1)), 1, [vQ, vQ + 1, vQ + 2, vQ + 3], vT)
    g.lab("L_qk")
    ts_dyn(8)
    e("v_lshlrev_b32 v%d, 4, v0" % (vT + 3)); e("v_add_u32 v%d, s%d, v%d" % (vT + 3, sM0B, vT + 3))
    order = []
    for j in range(4):
        order += [3 * j, 3 * j + 1, 3 * j + 2, 12 + j]
    def ldsread(j):
        return ["ds_read_b128 v[%d:%d], v%d offset:%d" % (vKT + 4 * u, vKT + 4 * u + 3, vT + 3, LQ + (4 * j + u) * 1024) for u in range(4)]
    def qk(reload):
        for x in ldsread(0): e(x)
        prev = None
        for n, T in enumerate(order):
            par = n % 2
            if T >= 12:
                e("s_waitcnt lgkmcnt(0)")
            main = dots(T, par, T >= 12)
            side = red(*prev) if prev is not None else []
            for x in interleave(main, side, 2): e(x)
            if T >= 12 and T < 15:
                for x in ldsread(T - 12 + 1): e(x)
            if reload:
                if n >= 13: e("s_waitcnt vmcnt(58)")
                for u in range(4):
                    t = 4 * T + u
                    e("s_mov_b32 s%d, 0x%x" % (sOFF, 0x4000000 + t * 4096))
                    if t < 48:
                        e("buffer_load_dwordx4 v[%d:%d], v%d, s[%d:%d], s%d offen nt" % (vK0 + 4 * t, vK0 + 4 * t + 3, vKV, sK, sK + 3, sOFF))
                    else:
                        e("s_add_u32 m0, s%d, %d" % (sM0B, LQ + (t - 48) * 1024))
                        e("s_nop 0")
                        e("buffer_load_dwordx4 v%d, s[%d:%d], s%d offen nt lds" % (vKV, sK, sK + 3, sOFF))
            prev = (T, par)
        red_tail(prev)
    if QKC:
        nqc = g.newlab("L_nqc")
        e("s_cmp_eq_u32 s%d, 1" % sINV); e("s_cbranch_scc0 %s" % nqc)
        e("s_cmp_eq_u32 s%d, 0" % sCLS); e("s_cbranch_scc0 %s" % nqc)
        qk(True)
        e("s_mov_b32 s%d, 0x4000000" % sBO)
        e("s_mov_b32 s%d, 1" % sLKM)
        e("s_branch L_softmax")
        g.lab(nqc)
    qk(False)
    if KEEPV:
        assert RD == 20 and not SN
        nk = g.newlab("L_nkv")
        e("s_cmp_eq_u32 s%d, 2" % sLKM); e("s_cbranch_scc0 %s" % nk)
        e("s_mul_i32 s%d, s%d, 20480" % (sT, sW)); e("s_add_u32 s%d, s%d, %d" % (sT, sT, RING))
        e("v_lshlrev_b32 v%d, 4, v0" % (vT + 2)); e("v_add_u32 v%d, s%d, v%d" % (vT + 2, sT, vT + 2))
        for t in range(44, 64):
            if t == 56: e("s_waitcnt lgkmcnt(0)")
            e("ds_read_b128 v[%d:%d], v%d offset:%d" % (vK0 + 4 * (t - 44), vK0 + 4 * (t - 44) + 3, vT + 2, ((64 + t) % 20) * 1024))
        e("s_branch L_softmax")
        g.lab(nk)
    nl = g.newlab("L_nolk")
    e("s_cmp_eq_u32 s%d, 1" % sINV)
    e("s_cbranch_scc0 %s" % nl)
    e("s_cmp_eq_u32 s%d, 0" % sCLS)
    e("s_cbranch_scc0 %s" % nl)
    e("s_mov_b32 s%d, 0x4000000" % sBO)
    e("s_mov_b32 s%d, 1" % sLKM)
    e("s_branch L_lka")
    g.lab(nl)
    g.lab("L_softmax")
    m = vT; t1 = vT + 2
    e("v_max3_f32 v%d, v%d, v%d, v%d" % (m, vS, vS + 1, vS + 2))
    for i in range(3, 15, 2):
        e("v_max3_f32 v%d, v%d, v%d, v%d" % (m, m, vS + i, vS + i + 1))
    e("v_max_f32 v%d, v%d, v%d" % (m, m, vS + 15))
    g.nop(2)
    e("v_max_f32_dpp v%d, v%d, v%d row_ror:4 row_mask:0xf bank_mask:0xf" % (m, m, m)); g.nop(2)
    e("v_max_f32_dpp v%d, v%d, v%d row_ror:8 row_mask:0xf bank_mask:0xf" % (m, m, m))
    e("v_mov_b32 v%d, v%d" % (t1, m)); g.nop(2)
    e("v_permlane16_swap_b32 v%d, v%d" % (m, t1)); e("v_max_f32 v%d, v%d, v%d" % (m, m, t1))
    e("v_mov_b32 v%d, v%d" % (t1, m)); g.nop(2)
    e("v_permlane32_swap_b32 v%d, v%d" % (m, t1)); e("v_max_f32 v%d, v%d, v%d" % (m, m, t1))
    e("v_mul_f32 v%d, s%d, v%d" % (m, sC, m))
    for i in range(16):
        e("v_fma_f32 v%d, v%d, s%d, -v%d" % (vS + i, vS + i, sC, m))
    for i in range(16):
        e("v_exp_f32 v%d, v%d" % (vS + i, vS + i))
    l = vT + 1
    e("v_add_f32 v%d, v%d, v%d" % (l, vS, vS + 1))
    for i in range(2, 16):
        e("v_add_f32 v%d, v%d, v%d" % (l, l, vS + i))
    for i in range(16):
        e("v_cvt_pk_bf16_f32 v%d, v%d, v%d" % (vS + i, vS + i, vS + i))
    e("v_add_f32_dpp v%d, v%d, v%d row_ror:4 row_mask:0xf bank_mask:0xf" % (l, l, l)); g.nop(2)
    e("v_add_f32_dpp v%d, v%d, v%d row_ror:8 row_mask:0xf bank_mask:0xf" % (l, l, l))
    e("v_mov_b32 v%d, v%d" % (t1, l)); g.nop(2)
    e("v_permlane16_swap_b32 v%d, v%d" % (l, t1)); e("v_add_f32 v%d, v%d, v%d" % (l, l, t1))
    e("v_mov_b32 v%d, v%d" % (t1, l)); g.nop(2)
    e("v_permlane32_swap_b32 v%d, v%d" % (l, t1)); e("v_add_f32 v%d, v%d, v%d" % (l, l, t1))
    e("s_cmp_eq_u32 s%d, 1" % sRING)
    e("s_cbranch_scc1 L_pvring")
    if KEEPV:
        e("s_cmp_eq_u32 s%d, 2" % sLKM)
        e("s_cbranch_scc1 L_pvn")
    e("s_cmp_eq_u32 s%d, 1" % sLKM)
    e("s_cbranch_scc0 L_pvstd")
    if not EARLY1:
        e("s_cmp_eq_u32 s%d, 1" % sINV)
        e("s_cbranch_scc1 L_pvc")
    g.lab("L_pvstd")
    nwl = g.newlab("L_nowl")
    e("s_cmp_eq_u32 s%d, 1" % sLAX)
    e("s_cbranch_scc0 %s" % nwl)
    w2l = g.newlab("L_w2l"); w3l = g.newlab("L_w3l")
    e("s_cmp_eq_u32 s%d, 2" % sROLE); e("s_cbranch_scc1 %s" % w2l)
    e("s_cmp_eq_u32 s%d, 3" % sROLE); e("s_cbranch_scc1 %s" % w3l)
    if not OPT.get("nopvw"):
        e("s_branch L_pvw")
    e("s_lshl_b32 s44, s%d, 9" % sKS)
    e("s_lshl_b32 s45, s%d, 7" % sGRP)
    gemv64_wload(16, 1280, 44, 45, vT=48)
    e("s_branch %s" % nwl)
    g.lab(w2l)
    gemv64_wload(20, 3456, None, sGRP, vT=48)
    e("s_branch %s" % nwl)
    g.lab(w3l)
    s3_wload(vT=48)
    g.lab(nwl)
    e("s_cmp_eq_u32 s%d, 1" % sLAX)
    e("s_cselect_b64 vcc, -1, 0")
    e("s_mov_b32 s%d, 0" % sLAX)
    for i in range(8):
        e("v_mov_b32 v%d, 0" % (vACC + i))
    def ands(t):
        b = vA + 2 * (t % 3); T, u = t // 4, t % 4
        e("v_and_b32_dpp v%d, v%d, v%d row_newbcast:%d row_mask:0xf bank_mask:0xf" % (b, vS + T, vM01, 4 * u))
        e("v_and_b32_dpp v%d, v%d, v%d row_newbcast:%d row_mask:0xf bank_mask:0xf" % (b + 1, vS + T, vM23, 4 * u))
    e("s_bitcmp1_b32 s%d, 0" % sINV)
    ands(0)
    for t in range(64):
        if t + 1 < 64:
            ands(t + 1)
        else:
            g.nop(2)
        if t % 4 == 0:
            lab = g.newlab("L_nw")
            e("s_cbranch_scc1 %s" % lab)
            if 60 - t + NWMIN < 63:
                e("s_waitcnt vmcnt(%d)" % (60 - t + NWMIN))
            e("s_cbranch_vccnz %s" % lab)
            e("s_waitcnt vmcnt(%d)" % (60 - t))
            g.lab(lab)
        b = vA + 2 * (t % 3)
        e("v_mfma_f32_4x4x4_16b_bf16 v[%d:%d], v[%d:%d], a[%d:%d], v[%d:%d]" % (vACC, vACC + 3, b, b + 1, 4 * t, 4 * t + 1, vACC, vACC + 3))
        e("v_mfma_f32_4x4x4_16b_bf16 v[%d:%d], v[%d:%d], a[%d:%d], v[%d:%d]" % (vACC + 4, vACC + 7, b, b + 1, 4 * t + 2, 4 * t + 3, vACC + 4, vACC + 7))
    g.lab("L_pvdone")
    g.nop(5)
    for i in range(4):
        e("v_permlane32_swap_b32 v%d, v%d" % (vACC + i, vACC + 4 + i))
    for i in range(4):
        e("v_add_f32 v%d, v%d, v%d" % (vACC + i, vACC + i, vACC + 4 + i))
    g.nop(1)
    e("v_permlane16_swap_b32 v%d, v%d" % (vACC, vACC + 1))
    e("v_permlane16_swap_b32 v%d, v%d" % (vACC + 2, vACC + 3))
    e("v_add_f32 v%d, v%d, v%d" % (vACC, vACC, vACC + 1))
    e("v_add_f32 v%d, v%d, v%d" % (vACC + 2, vACC + 2, vACC + 3))
    e("s_mul_i32 s%d, s%d, %d" % (sT, sPAR, COMB_ST)); e("s_add_u32 s%d, s%d, %d" % (sT, sT, COMB))
    e("s_xor_b32 s%d, s%d, 1" % (sPAR, sPAR))
    e("s_lshl_b32 s%d, s%d, 9" % (sT + 1, sW)); e("s_add_u32 s%d, s%d, s%d" % (sT + 1, sT + 1, sT))
    e("v_and_b32 v%d, 15, v0" % t1); e("v_lshlrev_b32 v%d, 5, v%d" % (t1, t1))
    e("v_lshrrev_b32 v%d, 5, v0" % (vT + 3)); e("v_lshl_add_u32 v%d, v%d, 4, v%d" % (t1, vT + 3, t1))
    e("v_bfe_u32 v%d, v0, 4, 1" % (vT + 3)); e("v_lshl_add_u32 v%d, v%d, 2, v%d" % (t1, vT + 3, t1))
    e("v_add_u32 v%d, s%d, v%d" % (t1, sT + 1, t1))
    e("ds_write2_b32 v%d, v%d, v%d offset0:0 offset1:2" % (t1, vACC, vACC + 2))
    e("s_lshl_b32 s%d, s%d, 3" % (sT + 1, sW)); e("s_add_u32 s%d, s%d, s%d" % (sT + 1, sT + 1, sT))
    e("v_mov_b32 v%d, s%d" % (t1, sT + 1))
    e("v_mov_b32 v%d, v%d" % (vT + 4, m)); e("v_mov_b32 v%d, v%d" % (vT + 5, l))
    e("s_mov_b64 exec, 1")
    e("ds_write_b64 v%d, v[%d:%d] offset:2048" % (t1, vT + 4, vT + 5))
    e("s_mov_b64 exec, -1")
    e("s_waitcnt lgkmcnt(0)")
    e("s_barrier")
    nw = g.newlab("L_npub")
    e("s_cmp_lg_u32 s%d, 0" % sW)
    e("s_cbranch_scc1 %s" % nw)
    e("v_and_b32 v%d, 31, v0" % t1); e("v_lshlrev_b32 v%d, 4, v%d" % (t1, t1)); e("v_add_u32 v%d, s%d, v%d" % (t1, sT, t1))
    for w in range(4):
        e("ds_read_b128 v[%d:%d], v%d offset:%d" % (16 + 4 * w, 19 + 4 * w, t1, w * 512))
    e("v_mov_b32 v%d, s%d" % (vT + 3, sT))
    e("ds_read_b128 v[40:43], v%d offset:2048" % (vT + 3))
    e("ds_read_b128 v[44:47], v%d offset:2064" % (vT + 3))
    e("s_waitcnt lgkmcnt(0)")
    e("v_max_f32 v32, v40, v42"); e("v_max3_f32 v32, v32, v44, v46")
    for w, r in enumerate((40, 42, 44, 46)):
        e("v_sub_f32 v%d, v%d, v32" % (r, r))
    for r in (40, 42, 44, 46):
        e("v_exp_f32 v%d, v%d" % (r, r))
    e("s_nop 0")
    for d in range(4): e("v_mul_f32 v%d, v%d, v40" % (36 + d, 16 + d))
    e("v_mul_f32 v33, v41, v40")
    for w, r in ((1, 42), (2, 44), (3, 46)):
        for d in range(4): e("v_fmac_f32 v%d, v%d, v%d" % (36 + d, 16 + 4 * w + d, r))
        e("v_fmac_f32 v33, v%d, v%d" % (r + 1, r))
    e("s_mul_i32 s%d, s%d, %d" % (sT, sINV, OA_ST))
    e("s_lshl_b32 s%d, s%d, 12" % (sT + 1, sH)); e("s_add_u32 s%d, s%d, s%d" % (sT, sT, sT + 1))
    e("s_lshl_b32 s%d, s%d, 9" % (sT + 1, sS)); e("s_add_u32 s%d, s%d, s%d" % (sT, sT, sT + 1))
    e("v_lshlrev_b32 v%d, 4, v0" % t1); e("v_add_u32 v%d, s%d, v%d" % (t1, sT, t1))
    e("s_mov_b32 exec_hi, 0")
    e("global_store_dwordx4 v%d, v[36:39], s[%d:%d] sc1" % (t1, sWS, sWS + 1))
    e("s_mov_b64 exec, -1")
    e("s_mul_i32 s%d, s%d, %d" % (sT, sINV, ML_ST)); e("s_add_u32 s%d, s%d, %d" % (sT, sT, WS_ML))
    e("s_lshl_b32 s%d, s%d, 6" % (sT + 1, sH)); e("s_add_u32 s%d, s%d, s%d" % (sT, sT, sT + 1))
    e("s_and_b32 s%d, s%d, 1" % (sT + 1, sS)); e("s_lshl_b32 s%d, s%d, 5" % (sT + 1, sT + 1)); e("s_add_u32 s%d, s%d, s%d" % (sT, sT, sT + 1))
    e("s_lshr_b32 s%d, s%d, 1" % (sT + 1, sS)); e("s_lshl_b32 s%d, s%d, 3" % (sT + 1, sT + 1)); e("s_add_u32 s%d, s%d, s%d" % (sT, sT, sT + 1))
    e("v_mov_b32 v%d, s%d" % (t1, sT))
    e("s_mov_b64 exec, 1")
    e("global_store_dwordx2 v%d, v[32:33], s[%d:%d] sc1" % (t1, sWS, sWS + 1))
    e("s_mov_b64 exec, -1")
    g.lab(nw)
    ts_dyn(16)
    e("s_cmp_eq_u32 s%d, 0" % sCLS)
    e("s_cbranch_scc0 L_disp")
    e("s_cmp_eq_u32 s%d, 1" % sINV)
    e("s_cbranch_scc1 L_mid2")
    if (not OPT.get("wearly")):
        e("s_cmp_eq_u32 s%d, 0" % sINV)
        e("s_cbranch_scc1 L_wload")
    e("s_branch L_disp")

def s1_block():
    g.lab("L_s1")
    nwo = g.newlab("L_nwo")
    e("s_cmp_eq_u32 s%d, 2" % sCLS); e("s_cbranch_scc0 %s" % nwo)
    e("s_lshl_b32 s44, s%d, 9" % sKS)
    e("s_lshl_b32 s45, s%d, 7" % sGRP)
    gemv64_wload(16, 1280, 44, 45, vT=48)
    g.lab(nwo)
    s1_consts()
    e("s_mul_i32 s%d, s%d, %d" % (sT, sINV, OA_ST)); e("v_add_u32 v50, s%d, v%d" % (sT, vRA))
    e("s_mul_i32 s%d, s%d, %d" % (sT, sINV, ML_ST)); e("s_add_u32 s%d, s%d, %d" % (sT, sT, WS_ML)); e("v_add_u32 v51, s%d, v%d" % (sT, vRB))
    def issue():
        for i in range(4):
            e("global_load_dwordx4 v[%d:%d], v50, s[%d:%d] offset:%d sc1" % (16 + 4 * i, 19 + 4 * i, sWS, sWS + 1, i * 1024))
        e("global_load_dwordx4 v[32:35], v51, s[%d:%d] sc1" % (sWS, sWS + 1))
        e("global_load_dwordx4 v[36:39], v51, s[%d:%d] offset:16 sc1" % (sWS, sWS + 1))
    poll(issue, list(range(16, 40)), vT)
    ts_dyn(8)
    if OPT.get("gate"):
        ng = g.newlab("L_nogo")
        e("s_cmp_eq_u32 s%d, 0" % sINV); e("s_cbranch_scc0 %s" % ng)
        e("s_cmp_eq_u32 s%d, 0" % sGRP); e("s_cbranch_scc0 %s" % ng)
        e("s_lshl_b32 s%d, s%d, 2" % (sT, sKS)); e("s_add_u32 s%d, s%d, s%d" % (sT, sT, sW)); e("s_lshl_b32 s%d, s%d, 4" % (sT, sT))
        e("s_add_u32 s%d, s%d, %d" % (sT, sT, WS_GO))
        e("v_mov_b32 v48, s%d" % sT)
        for i in range(4): e("v_mov_b32 v%d, 0" % (52 + i))
        e("s_mov_b64 exec, 1")
        e("global_store_dwordx4 v48, v[52:55], s[%d:%d] sc1" % (sWS, sWS + 1))
        e("s_mov_b64 exec, -1")
        g.lab(ng)
    e("v_max_f32 v40, v32, v34"); e("v_max3_f32 v40, v40, v36, v38")
    e("v_mov_b32 v41, v40"); g.nop(2)
    e("v_permlane32_swap_b32 v40, v41"); e("v_max_f32 v40, v40, v41")
    for r in (32, 34, 36, 38): e("v_sub_f32 v%d, v%d, v40" % (r, r))
    for r in (32, 34, 36, 38): e("v_exp_f32 v%d, v%d" % (r, r))
    e("s_nop 0")
    e("v_mul_f32 v42, v33, v32")
    for r in (34, 36, 38): e("v_fmac_f32 v42, v%d, v%d" % (r + 1, r))
    for d in range(4): e("v_mul_f32 v%d, v%d, v32" % (44 + d, 16 + d))
    for i, r in ((1, 34), (2, 36), (3, 38)):
        for d in range(4): e("v_fmac_f32 v%d, v%d, v%d" % (44 + d, 16 + 4 * i + d, r))
    e("v_mov_b32 v43, v42"); g.nop(2)
    e("v_permlane32_swap_b32 v42, v43")
    e("v_permlane32_swap_b32 v44, v45")
    e("v_permlane32_swap_b32 v46, v47")
    e("v_add_f32 v42, v42, v43"); e("v_add_f32 v44, v44, v45"); e("v_add_f32 v46, v46, v47")
    e("v_rcp_f32 v42, v42"); e("s_nop 0")
    e("v_mul_f32 v44, v44, v42"); e("v_mul_f32 v46, v46, v42")
    e("v_cvt_pk_bf16_f32 v44, v44, v44"); e("v_cvt_pk_bf16_f32 v46, v46, v46")
    e("ds_write2_b32 v%d, v44, v46 offset0:0 offset1:2" % vPW)
    e("s_waitcnt lgkmcnt(0)")
    gemv64(16)
    e("s_waitcnt lgkmcnt(0)")
    e("s_barrier")
    ts_dyn(16)
    lab = g.newlab("L_s1w")
    e("s_cmp_lg_u32 s%d, 0" % sW); e("s_cbranch_scc1 %s" % lab)
    final_col_sum(30, False)
    e("s_mul_i32 s%d, s%d, %d" % (sT, sINV, PB_ST)); e("s_add_u32 s%d, s%d, %d" % (sT, sT, WS_PB))
    e("s_mul_i32 s%d, s%d, 2560" % (sT + 1, sKS)); e("s_add_u32 s%d, s%d, s%d" % (sT, sT, sT + 1))
    e("s_lshl_b32 s%d, s%d, 8" % (sT + 1, sGRP)); e("s_add_u32 s%d, s%d, s%d" % (sT, sT, sT + 1))
    e("v_add_u32 v%d, s%d, v%d" % (vT, sT, vT))
    for q in range(4):
        e("v_mov_b32_dpp v%d, v30 quad_perm:[%d,%d,%d,%d] row_mask:0xf bank_mask:0xf" % (32 + q, q, q, q, q))
    e("s_mov_b32 exec_lo, 0x11111111"); e("s_mov_b32 exec_hi, 0x11111111")
    e("global_store_dwordx4 v%d, v[32:35], s[%d:%d] sc1" % (vT, sWS, sWS + 1))
    e("s_mov_b64 exec, -1")
    g.lab(lab)
    nr = g.newlab("L_s1nr")
    e("s_cmp_eq_u32 s%d, 1" % sHAS4); e("s_cbranch_scc0 %s" % nr)
    e("s_cmp_lt_u32 s%d, %d" % (sINV, 3 if SN else 2)); e("s_cbranch_scc0 %s" % nr)
    e("s_lshl_b32 s45, s%d, 7" % sJ)
    gemv64_wload(20, 8192, None, 45, vT=16, srd=sWQ)
    g.lab(nr)
    e("s_barrier")
    e("s_branch L_disp")

def s2_block():
    g.lab("L_s2")
    nc = g.newlab("L_s2nc")
    e("s_cmp_lg_u32 s%d, 0" % sINV); e("s_cbranch_scc1 %s" % nc)
    ts(24)
    e("s_waitcnt vmcnt(0)")
    ts(25)
    colsum(20)
    ts(26)
    g.lab(nc)
    e("s_mul_i32 s%d, s%d, %d" % (sT, sINV, PB_ST)); e("s_add_u32 s%d, s%d, %d" % (sT, sT, WS_PB))
    e("v_add_u32 v52, s%d, v%d" % (sT, vRA))
    for k in range(1, 4): e("v_add_u32 v%d, %d, v52" % (52 + k, 5120 * k))
    odd = g.newlab("L_s2odd"); got = g.newlab("L_s2got")
    e("s_and_b32 s%d, s%d, 1" % (sT, sINV)); e("s_cmp_eq_u32 s%d, 1" % sT); e("s_cbranch_scc1 %s" % odd)
    e("s_lshr_b32 s%d, s%d, 1" % (sT, sINV)); e("s_mul_i32 s%d, s%d, 1280" % (sT, sT))
    e("v_add_u32 v50, s%d, v%d" % (sT, vRB))
    e("global_load_dwordx2 v[48:49], v50, s[%d:%d]" % (sX, sX + 1))
    e("s_branch %s" % got)
    g.lab(odd)
    e("s_sub_u32 s%d, s%d, 1" % (sT, sINV)); e("s_mul_i32 s%d, s%d, %d" % (sT, sT, X2_ST)); e("s_add_u32 s%d, s%d, %d" % (sT, sT, WS_X2))
    x2_replica()
    e("v_add_u32 v50, s%d, v%d" % (sT, vRB))
    poll(lambda: e("global_load_dwordx2 v[48:49], v50, s[%d:%d] sc1" % (sWS, sWS + 1)), [48, 49], vT)
    g.lab(got)
    def issue():
        for ks in range(8):
            e("global_load_dwordx4 v[%d:%d], v%d, s[%d:%d] offset:%d sc1" % (16 + 4 * ks, 19 + 4 * ks, 52 + ks // 2, sWS, sWS + 1, (ks % 2) * 2560))
    poll(issue, list(range(16, 48)), vT)
    ts_dyn(8)
    for d in range(4):
        e("v_add_f32 v%d, v%d, v%d" % (16 + d, 16 + d, 20 + d)); e("v_add_f32 v%d, v%d, v%d" % (24 + d, 24 + d, 28 + d))
        e("v_add_f32 v%d, v%d, v%d" % (32 + d, 32 + d, 36 + d)); e("v_add_f32 v%d, v%d, v%d" % (40 + d, 40 + d, 44 + d))
    for d in range(4):
        e("v_add_f32 v%d, v%d, v%d" % (16 + d, 16 + d, 24 + d)); e("v_add_f32 v%d, v%d, v%d" % (32 + d, 32 + d, 40 + d))
    for d in range(4):
        e("v_add_f32 v%d, v%d, v%d" % (16 + d, 16 + d, 32 + d))
    for d in range(4): round_bf16(16 + d)
    e("v_lshlrev_b32 v20, 16, v48"); e("v_and_b32 v21, 0xffff0000, v48")
    e("v_lshlrev_b32 v22, 16, v49"); e("v_and_b32 v23, 0xffff0000, v49")
    for d in range(4): e("v_add_f32 v%d, v%d, v%d" % (16 + d, 16 + d, 20 + d))
    for d in range(4): round_bf16(16 + d)
    nx = g.newlab("L_s2nx")
    e("s_cmp_lg_u32 s%d, 0" % sJ); e("s_cbranch_scc1 %s" % nx)
    e("v_cvt_pk_bf16_f32 v20, v16, v17"); e("v_cvt_pk_bf16_f32 v21, v18, v19")
    e("s_mul_i32 s%d, s%d, %d" % (sT, sINV, X1_ST)); e("s_add_u32 s%d, s%d, %d" % (sT, sT, WS_X1))
    e("v_add_u32 v50, s%d, v%d" % (sT, vRB))
    e("global_store_dwordx2 v50, v[20:21], s[%d:%d] sc1" % (sWS, sWS + 1))
    g.lab(nx)
    x_to_p_and_stats(16)
    gemv64(20)
    e("s_waitcnt lgkmcnt(0)")
    e("s_barrier")
    ts_dyn(16)
    lab = g.newlab("L_s2w")
    e("s_cmp_lg_u32 s%d, 0" % sW); e("s_cbranch_scc1 %s" % lab)
    final_col_sum(30, True)
    round_bf16(30)
    e("v_mul_f32 v31, 0xbfb8aa3b, v30")
    e("v_exp_f32 v31, v31"); e("s_nop 0")
    e("v_add_f32 v31, 1.0, v31")
    e("v_rcp_f32 v31, v31"); e("s_nop 0")
    e("v_mul_f32 v30, v30, v31")
    pack8(30, 32)
    e("s_mul_i32 s%d, s%d, %d" % (sT, sINV, H_ST)); e("s_add_u32 s%d, s%d, %d" % (sT, sT, WS_H))
    e("s_lshl_b32 s%d, s%d, 7" % (sT + 1, sJ)); e("s_add_u32 s%d, s%d, s%d" % (sT, sT, sT + 1))
    e("v_lshlrev_b32 v%d, 1, v0" % vT); e("v_add_u32 v%d, s%d, v%d" % (vT, sT, vT))
    exec8()
    e("global_store_dwordx4 v%d, v[32:35], s[%d:%d] sc1" % (vT, sWS, sWS + 1))
    e("s_mov_b64 exec, -1")
    g.lab(lab)
    e("s_barrier")
    e("s_branch L_disp")

def s3_block():
    g.lab("L_s3")
    e("s_mul_i32 s%d, s%d, %d" % (sT, sINV, H_ST)); e("s_add_u32 s%d, s%d, %d" % (sT, sT, WS_H))
    e("v_add_u32 v50, s%d, v%d" % (sT, vRA))
    e("s_mul_i32 s%d, s%d, %d" % (sT, sINV, X1_ST)); e("s_add_u32 s%d, s%d, %d" % (sT, sT, WS_X1))
    e("v_add_u32 v51, s%d, v%d" % (sT, vRB))
    def issue():
        e("global_load_dwordx4 v[4:7], v50, s[%d:%d] sc1" % (sWS, sWS + 1))
        e("global_load_dword v15, v51, s[%d:%d] sc1" % (sWS, sWS + 1))
    fpoll(issue, 2, [4, 5, 6, 7, 15], vT)
    ts_dyn(8)
    for i in range(4):
        e("v_and_b32 v%d, 0xffff, v%d" % (28, 4 + i))
        e("v_lshl_or_b32 v%d, v%d, 16, v%d" % (20 + 2 * i, 28, 28))
        e("v_lshrrev_b32 v%d, 16, v%d" % (28, 4 + i))
        e("v_lshl_or_b32 v%d, v%d, 16, v%d" % (21 + 2 * i, 28, 28))
    e("ds_write_b128 v%d, v[20:23]" % vPW)
    e("ds_write_b128 v%d, v[24:27] offset:16" % vPW)
    e("s_waitcnt lgkmcnt(0)")
    g.lg = []
    NI = 28; NB = 6
    for i in range(NB):
        g.lds("ds_read_b64 v[%d:%d], v%d offset:%d" % (52 + 2 * i, 53 + 2 * i, vRW, i * 512), "W%d" % i)
    for jj in range(7):
        g.lds("ds_read_b128 v[%d:%d], v%d offset:%d" % (16 + 4 * jj, 19 + 4 * jj, vRP, jj * 256), "P%d" % jj)
    for i in range(4): e("v_mov_b32 v%d, 0" % (44 + i))
    def ands(i):
        b = 48 + 2 * (i % 2)
        if i % 4 == 0: g.lwait("P%d" % (i // 4))
        e("v_and_b32 v%d, v%d, v%d" % (b, 16 + i, vM01)); e("v_and_b32 v%d, v%d, v%d" % (b + 1, 16 + i, vM23))
    ands(0)
    for i in range(NI):
        if i + 1 < NI: ands(i + 1)
        else: g.nop(2)
        g.lwait("W%d" % i)
        if i == 0: g.nop(2)
        b = 48 + 2 * (i % 2); wb = 52 + 2 * (i % NB)
        e("v_mfma_f32_4x4x4_16b_bf16 v[44:47], v[%d:%d], v[%d:%d], v[44:47]" % (b, b + 1, wb, wb + 1))
        if i + NB < NI:
            g.lds("ds_read_b64 v[%d:%d], v%d offset:%d" % (wb, wb + 1, vRW, (i + NB) * 512), "W%d" % (i + NB))
    g.lg = []
    g.nop(5)
    e("v_permlane32_swap_b32 v44, v46"); e("v_permlane32_swap_b32 v45, v47")
    e("v_add_f32 v44, v44, v46"); e("v_add_f32 v45, v45, v47")
    g.nop(2)
    e("v_permlane16_swap_b32 v44, v45"); e("v_add_f32 v44, v44, v45")
    g.nop(2)
    e("v_add_f32_dpp v44, v44, v44 row_ror:8 row_mask:0xf bank_mask:0xf"); g.nop(2)
    e("v_add_f32_dpp v44, v44, v44 row_ror:4 row_mask:0xf bank_mask:0xf")
    e("ds_write_b32 v%d, v44" % vRR)
    e("s_waitcnt lgkmcnt(0)")
    e("s_barrier")
    ts_dyn(16)
    lab = g.newlab("L_s3w")
    e("s_cmp_lg_u32 s%d, 0" % sW); e("s_cbranch_scc1 %s" % lab)
    e("v_and_b32 v%d, 15, v0" % vT); e("v_lshlrev_b32 v%d, 2, v%d" % (vT, vT)); e("v_add_u32 v%d, %d, v%d" % (vT, RED, vT))
    e("ds_read2_b32 v[16:17], v%d offset0:0 offset1:16" % vT)
    e("ds_read2_b32 v[18:19], v%d offset0:32 offset1:48" % vT)
    e("s_waitcnt lgkmcnt(0)")
    e("v_add_f32 v16, v16, v17"); e("v_add_f32 v18, v18, v19"); e("v_add_f32 v30, v16, v18")
    round_bf16(30)
    e("v_lshlrev_b32 v16, 16, v15"); e("v_and_b32 v17, 0xffff0000, v15")
    e("v_and_b32 v18, 1, v0"); e("v_cmp_eq_u32 vcc, 1, v18"); e("s_nop 1")
    e("v_cndmask_b32 v16, v16, v17, vcc")
    e("v_add_f32 v30, v30, v16")
    pack8(30, 32)
    odd = g.newlab("L_s3odd"); fin = g.newlab("L_s3fin")
    e("s_mov_b32 exec_lo, 0x0101"); e("s_mov_b32 exec_hi, 0")
    e("s_and_b32 s%d, s%d, 1" % (sT, sINV)); e("s_cmp_eq_u32 s%d, 1" % sT); e("s_cbranch_scc1 %s" % odd)
    e("s_mul_i32 s%d, s%d, %d" % (sT, sINV, X2_ST)); e("s_add_u32 s%d, s%d, %d" % (sT, sT, WS_X2))
    e("v_add_u32 v%d, s%d, v%d" % (vT, sT, vRB))
    e("s_mov_b64 exec, -1")
    e("v_lshrrev_b32 v%d, 4, v0" % (vT + 1)); e("v_mul_u32_u24 v%d, %d, v%d" % (vT + 1, X2R, vT + 1)); e("v_add3_u32 v%d, v%d, s%d, v%d" % (vT, vRB, sT, vT + 1))
    exec8()
    e("global_store_dwordx4 v%d, v[32:35], s[%d:%d] sc1" % (vT, sWS, sWS + 1))
    e("s_branch %s" % fin)
    g.lab(odd)
    e("s_lshr_b32 s%d, s%d, 1" % (sT, sINV)); e("s_mul_i32 s%d, s%d, 1280" % (sT, sT))
    e("v_add_u32 v%d, s%d, v%d" % (vT, sT, vRB))
    e("global_store_dwordx4 v%d, v[32:35], s[%d:%d]" % (vT, sOUT, sOUT + 1))
    g.lab(fin)
    e("s_mov_b64 exec, -1")
    g.lab(lab)
    e("s_barrier")
    e("s_branch L_disp")

def wload_block():
    g.lab("L_wload")
    n2 = g.newlab("L_wl")
    e("s_cmp_eq_u32 s%d, 2" % sROLE); e("s_cbranch_scc0 %s" % n2)
    gemv64_wload(20, 3456, None, sGRP, vT=16)
    e("s_branch L_disp")
    g.lab(n2)
    e("s_cmp_eq_u32 s%d, 3" % sROLE); e("s_cbranch_scc0 L_disp")
    s3_wload(vT=16)
    e("s_branch L_disp")

e("s_mov_b32 s%d, 0" % sLKM)
e("s_mov_b32 s%d, 0" % sBO)
e("s_mov_b32 s%d, 0" % sPH); e("s_mov_b32 s%d, 0" % sINV); e("s_mov_b32 s%d, 0" % sTQ)
e("s_waitcnt vmcnt(%d)" % KPRE)
signal_cleared()
ts(1)
q_initial()
ts(4)
e("s_mov_b32 s%d, %d" % (sOFF, KPRE * 4096))
e("s_branch L_lka_pre")
s4_block()
lka()
lkbv()
mid2()
if not EARLY1: pv_c()
pv_w()
if KEEPV: pv_n()
ring_k()
ring_pv()
att_core()
s1_block(); s2_block(); s3_block()
wload_block()

g.lab("L_lk")
e("s_lshl_b32 s%d, s%d, 7" % (sT, sH)); e("s_add_u32 s%d, s%d, %d" % (sT, sT, WS_FL))
e("v_lshlrev_b32 v%d, 4, v0" % (vT + 2)); e("v_add_u32 v%d, s%d, v%d" % (vT + 2, sT, vT + 2))
e("s_cmp_lt_u32 s%d, %d" % (sH, NSET0 - 128))
e("s_cselect_b32 s%d, 31, 15" % (sT + 2))
e("s_mov_b32 exec_lo, s%d" % (sT + 2)); e("s_mov_b32 exec_hi, 0")
if not OPT.get("noflag"):
    poll(lambda: e("global_load_dword v%d, v%d, s[%d:%d] sc1" % (vT + 3, vT + 2, sWS, sWS + 1)), [vT + 3], vT)
e("s_mov_b64 exec, -1")
e("s_mov_b32 s%d, 0x4000000" % sBO)
e("s_mov_b32 s%d, 2" % sLKM)
if OPT["ts"]:
    e("s_memrealtime s[%d:%d]" % (sCLK, sCLK + 1)); e("s_waitcnt lgkmcnt(0)"); e("s_mov_b32 s%d, s%d" % (sTS + 29, sCLK))
e("s_branch L_lka")

g.lab("L_disp")
ts_dyn(24) if False else None
e("s_and_b32 s%d, s%d, 15" % (sT, sPROG))
e("s_bfe_u32 s%d, s%d, 0x40004" % (sINV, sPROG))
e("s_lshr_b64 s[%d:%d], s[%d:%d], 8" % (sPROG, sPROG + 1, sPROG, sPROG + 1))
if OPT["ts"]:
    e("s_lshl_b32 s%d, s%d, 2" % (sT + 1, sINV))
    e("s_lshr_b32 s%d, 0x6320, s%d" % (sT + 2, sT + 1)); e("s_lshr_b32 s%d, 0x7451, s%d" % (sT + 3, sT + 1))
    e("s_cmp_eq_u32 s%d, %d" % (sT, OP_ATT)); e("s_cselect_b32 s%d, s%d, s%d" % (sPH, sT + 2, sT + 3))
    e("s_cmp_eq_u32 s%d, %d" % (sT, OP_RING)); e("s_cselect_b32 s%d, s%d, s%d" % (sPH, sT + 2, sPH))
    e("s_and_b32 s%d, s%d, 15" % (sPH, sPH))
    e("s_cmp_eq_u32 s%d, %d" % (sT, OP_S4)); e("s_cselect_b32 s%d, 15, s%d" % (sPH, sPH))
for op, lab in ((OP_ATT, "L_att"), (OP_S1, "L_s1"), (OP_S2, "L_s2"), (OP_S3, "L_s3"), (OP_S4, "L_s4"), (OP_RING, "L_ring"), (OP_LK, "L_lk")):
    e("s_cmp_eq_u32 s%d, %d" % (sT, op)); e("s_cbranch_scc1 %s" % lab)
g.lab("L_fin")
if OPT["ts"]:
    lab = g.newlab("L_nots")
    e("s_cmp_lg_u32 s%d, 0" % sW); e("s_cbranch_scc1 %s" % lab)
    e("s_lshl_b32 s%d, s2, 7" % sT); e("s_add_u32 s%d, s%d, %d" % (sT, sT, WS_TS))
    e("v_mov_b32 v%d, s%d" % (vT, sT))
    e("s_mov_b64 exec, 1")
    for i in range(32):
        e("v_mov_b32 v%d, s%d" % (vT + 1, sTS + i))
        e("global_store_dword v%d, v%d, s[%d:%d] offset:%d" % (vT, vT + 1, sWS, sWS + 1, 4 * i))
        e("s_nop 1")
    e("s_mov_b64 exec, -1")
    g.lab(lab)
if OPT.get("dts"):
    lab = g.newlab("L_nodts")
    e("s_memrealtime s[%d:%d]" % (sCLK, sCLK + 1))
    e("s_waitcnt lgkmcnt(0)")
    e("s_cmp_lg_u32 s%d, 0" % sW); e("s_cbranch_scc1 %s" % lab)
    e("v_mov_b32 v%d, 0" % vT)
    e("s_mov_b64 exec, 1")
    e("s_not_b32 s%d, s%d" % (sT, sTS))
    lst = [sT, sTS + 0, sTS + 1, sTS + 16, sTS + 8 + 2, sTS + 16 + 2, sTS + 16 + 3, sTS + 16 + 6, sTS + 16+1, sTS + 16 + 4, sTS + 16 + 7, sCLK]
    for i, r in enumerate(lst):
        e("v_mov_b32 v%d, s%d" % (vT + 1, r))
        e("global_atomic_umax v%d, v%d, s[%d:%d] offset:%d sc1" % (vT, vT + 1, sDBG, sDBG + 1, 4 + 4 * i))
        e("s_nop 1")
    e("s_mov_b64 exec, -1")
    g.lab(lab)
g.lab("L_end")
e("s_endpgm")
e('.section .rodata,"a"')
e(".p2align 6")
e(".amdhsa_kernel %s" % KN)
e("  .amdhsa_next_free_vgpr 512")
e("  .amdhsa_next_free_sgpr 102")
e("  .amdhsa_accum_offset 256")
e("  .amdhsa_group_segment_fixed_size 0")
e("  .amdhsa_kernarg_size 88")
e("  .amdhsa_user_sgpr_count 2")
e("  .amdhsa_user_sgpr_kernarg_segment_ptr 1")
e("  .amdhsa_system_sgpr_workgroup_id_x 1")
e(".end_amdhsa_kernel")
open(sys.argv[1], "w").write(g.text())
```

```python
import sys
from gl import *

OPT = dict(ts=False, dbgq=False)
for a in sys.argv[2:]:
    k, _, v = a.partition("=")
    OPT[k] = (int(v) if v else True)

WS_OA = 0x0;      OA_ST = 0x20000
WS_ML = 0x80000;  ML_ST = 0x800
WS_PB = 0x82000;  PB_ST = 0x5000
WS_H  = 0x96000;  H_ST  = 0x1000
WS_X1 = 0x9A000;  X1_ST = 0x800
WS_X2 = 0xA8000;  X2_ST = 0x800;  X2R = 0x2000
WS_Q  = 0xC0000;  Q_ST  = 0x2000
WS_QP = 0xD0000;  QP_B = 0x20000
WS_FL = 0xA0000
WS_GO = 0xA1000
WS_TS = 0x180000
LQ = 0
LP = 65536
LM = 147456
COMB = LM;            COMB_ST = 0x840
PD   = LM + 0x1100
RED  = LM + 0x1C00
ST   = LM + 0x2000
CS   = LM + 0x2100
Q2S  = LM + 0x2400
PD3  = LP + 57344
SPIN = int(OPT.get("spin", 200000))
KPRE = int(OPT.get("kpre", 32))
FLAGPOS = int(OPT.get("flagpos", 63))
WNT = "nt " if OPT.get("wnt") else ""
QKC = not OPT.get("noqkc")
KEEPV = not OPT.get("nokeepv")
EARLY1 = OPT.get("early1")
NWMIN = 14

R4_N = 64
R1_0, R1_N = 0, 80
R2_0, R2_N = 80, 27
R3_0, R3_N = 107, 40
NSET0 = 147
RING = LP

sW = 3
sK, sV, sWT = 4, 8, 12
sWS, sDBG, sOUT, sX = 16, 18, 20, 22
sH, sS, sPH, sINV, sROLE, sJ = 24, 25, 26, 27, 28, 29
sOFF, sSPIN = 30, 31
sT = 32
sC, sONE = 48, 49
sTQ, sLAX = 50, 51
sKS, sGRP = 52, 53
sM0B = 54
sBO = 55
sVO = 56
sLKM = 57
sHAS4, sCLS, sPAR, sRING = 58, 59, 62, 63
sWQ = 96
sPROG = 100
ROT = None
sMSK = sPAR
def wrap():
    if ROT: e("s_and_b32 s%d, s%d, s%d" % (sOFF, sOFF, sMSK))
sCLK = 60
sTS = 64
vL, vKV, vM01, vM23, vQ = 0, 1, 2, 3, 4
vRW, vRP, vRR, vRA, vPW, vFL, vRB, vRC = 8, 9, 10, 11, 12, 13, 14, 15
vS = 16
vKT = 32
vD = 48
vE = 56
vT = 58
vACC = 32
vA = 40
vK0 = 64

g = G()
e = g.e

def ts(i):
    if not OPT["ts"]:
        return
    e("s_memrealtime s[%d:%d]" % (sCLK, sCLK + 1))
    e("s_waitcnt lgkmcnt(0)")
    e("s_mov_b32 s%d, s%d" % (sTS + i, sCLK))

def ts_dyn(base):
    if not OPT["ts"]:
        return
    e("s_memrealtime s[%d:%d]" % (sCLK, sCLK + 1))
    e("s_waitcnt lgkmcnt(0)")
    for p in range(8):
        e("s_cmp_eq_u32 s%d, %d" % (sPH, p))
        e("s_cselect_b32 s%d, s%d, s%d" % (sTS + base + p, sCLK, sTS + base + p))

def ts_first(i):
    if not OPT["ts"]:
        return
    e("s_memrealtime s[%d:%d]" % (sCLK, sCLK + 1))
    e("s_waitcnt lgkmcnt(0)")
    e("s_cmp_eq_u32 s%d, 0" % sLKM)
    e("s_cselect_b32 s%d, s%d, s%d" % (sTS + i, sCLK, sTS + i))

def sentinel_check(regs, fail_label, tmp):
    r = list(regs)
    cur = None
    if len(r) == 1:
        cur = r[0]
    else:
        e("v_max_u32 v%d, v%d, v%d" % (tmp, r[0], r[1])); r = r[2:]
        while len(r) >= 2:
            e("v_max3_u32 v%d, v%d, v%d, v%d" % (tmp, tmp, r[0], r[1])); r = r[2:]
        if r:
            e("v_max_u32 v%d, v%d, v%d" % (tmp, tmp, r[0]))
        cur = tmp
    e("v_cmp_eq_u32 vcc, -1, v%d" % cur)
    e("s_nop 1")
    e("s_cmp_lg_u64 vcc, 0")
    e("s_cbranch_scc1 %s" % fail_label)

def poll(issue, regs, tmp):
    top = g.newlab("L_poll"); again = g.newlab("L_again"); done = g.newlab("L_pdone")
    e("s_mov_b32 s%d, 0" % sSPIN)
    g.lab(top)
    issue()
    e("s_waitcnt vmcnt(0)")
    sentinel_check(regs, again, tmp)
    e("s_branch %s" % done)
    g.lab(again)
    e("s_add_u32 s%d, s%d, 1" % (sSPIN, sSPIN))
    e("s_cmp_lt_u32 s%d, %d" % (sSPIN, SPIN))
    e("s_cbranch_scc1 %s" % top)
    g.lab(done)

PPR = int(OPT.get("ppr", 16))
def fpoll(issue, nld, regs, tmp):
    if PPR == 0:
        return poll(issue, regs, tmp)
    top = g.newlab("L_fp"); again = g.newlab("L_fa"); done = g.newlab("L_fd"); chk = g.newlab("L_fc")
    e("s_mov_b32 s%d, 0" % sSPIN)
    issue()
    e("s_waitcnt vmcnt(0)")
    e("s_branch %s" % chk)
    g.lab(top)
    e("s_waitcnt vmcnt(%d)" % (5 * nld))
    issue()
    g.lab(chk)
    sentinel_check(regs, again, tmp)
    e("s_branch %s" % done)
    g.lab(again)
    e("s_add_u32 s%d, s%d, 1" % (sSPIN, sSPIN))
    e("s_cmp_ge_u32 s%d, %d" % (sSPIN, SPIN * 8))
    e("s_cbranch_scc1 %s" % done)
    if PPR & (PPR - 1) == 0:
        e("s_and_b32 s%d, s%d, %d" % (sT, sSPIN, PPR - 1))
        e("s_cmp_eq_u32 s%d, 0" % sT)
    else:
        raise SystemExit("ppr must be a power of two")
    e("s_cbranch_scc1 %s" % top)
    e("s_branch %s" % chk)
    g.lab(done)

def counter_spin():
    top = g.newlab("L_cnt"); done = g.newlab("L_cdone")
    e("s_mov_b32 s%d, 0" % sSPIN)
    e("v_mov_b32 v%d, 0" % vT)
    g.lab(top)
    e("global_load_dword v%d, v%d, s[%d:%d] sc1" % (vT + 1, vT, sDBG, sDBG + 1))
    e("s_waitcnt vmcnt(0)")
    e("v_readfirstlane_b32 s%d, v%d" % (sT, vT + 1))
    e("s_add_u32 s%d, s%d, 1" % (sSPIN, sSPIN))
    e("s_cmp_ge_u32 s%d, %d" % (sSPIN, SPIN))
    e("s_cbranch_scc1 %s" % done)
    e("s_cmp_lt_u32 s%d, 256" % sT)
    e("s_cbranch_scc1 %s" % top)
    g.lab(done)

e("; @launch grid=(256,1,1) block=(256,1,1) lds=163840")
e('.amdgcn_target "amdgcn-amd-amdhsa--gfx950"')
e(".text")
e(".globl %s" % KN)
e(".p2align 8")
e(".type %s,@function" % KN)
g.lab(KN)
e("s_cmp_ge_u32 s2, 256")
e("s_cbranch_scc1 L_end")
e("s_load_dwordx4 s[32:35], s[0:1], 0")
e("s_load_dwordx4 s[36:39], s[0:1], 16")
e("s_load_dwordx2 s[40:41], s[0:1], 32")
e("s_load_dwordx4 s[44:47], s[0:1], 48")
e("s_load_dwordx4 s[56:59], s[0:1], 64")
e("s_load_dwordx2 s[%d:%d], s[0:1], 80" % (sWS, sWS + 1))
e("v_lshrrev_b32 v1, 6, v0")
e("v_and_b32 v0, 63, v0")
e("v_readfirstlane_b32 s%d, v1" % sW)
e("s_and_b32 s%d, s2, 31" % sH)
e("s_lshr_b32 s%d, s2, 5" % sS)
if OPT["ts"]:
    for i in range(32):
        e("s_mov_b32 s%d, 0" % (sTS + i))
e("s_mov_b32 s%d, 0x3e0293ee" % sC)
import struct, math
cval = struct.unpack("<I", struct.pack("<f", (128 ** -0.5) * math.log2(math.e)))[0]
g.L[-1] = "s_mov_b32 s%d, 0x%08x" % (sC, cval)
e("s_mov_b32 s%d, 0x3f803f80" % sONE)
e("v_lshlrev_b32 v%d, 4, v0" % vKV)
e("s_lshl_b32 s%d, s%d, 10" % (sM0B, sW))
e("v_add_u32 v%d, s%d, v%d" % (vKV, sM0B, vKV))
e("s_lshl_b32 s%d, s%d, 14" % (sM0B, sW))
e("v_and_b32 v%d, 3, v0" % vT)
e("v_mov_b32 v%d, 0" % vM01); e("v_mov_b32 v%d, 0" % vM23)
e("v_mov_b32 v%d, 0xffff" % (vT + 1)); e("v_mov_b32 v%d, 0xffff0000" % (vT + 2))
for val, dst, src in ((0, vM01, vT + 1), (1, vM01, vT + 2), (2, vM23, vT + 1), (3, vM23, vT + 2)):
    e("v_cmp_eq_u32 vcc, %d, v%d" % (val, vT))
    e("s_nop 1")
    e("v_cndmask_b32 v%d, v%d, v%d, vcc" % (dst, dst, src))
e("s_waitcnt lgkmcnt(0)")
ts(0)
e("s_mov_b64 s[%d:%d], s[32:33]" % (sX, sX + 1))
e("s_mov_b64 s[%d:%d], s[56:57]" % (sOUT, sOUT + 1))
e("s_mov_b64 s[%d:%d], s[58:59]" % (sDBG, sDBG + 1))
e("s_lshl_b32 s42, s%d, 21" % sH)
e("s_lshl_b32 s43, s%d, 18" % sS)
e("s_add_u32 s42, s42, s43")
e("s_add_u32 s%d, s34, s42" % sK); e("s_addc_u32 s%d, s35, 0" % (sK + 1))
e("s_mov_b32 s%d, 0x4040000" % (sK + 2)); e("s_mov_b32 s%d, 0x20000" % (sK + 3))
e("s_add_u32 s%d, s36, s42" % sV); e("s_addc_u32 s%d, s37, 0" % (sV + 1))
e("s_mov_b32 s%d, 0x4040000" % (sV + 2)); e("s_mov_b32 s%d, 0x20000" % (sV + 3))
KP1 = int(OPT.get("kp1", 0))
e("s_mov_b32 s%d, 0" % sOFF)
if ROT:
    rm = int(ROT)
    if rm == 1:
        e("s_lshl_b32 s42, s%d, 3" % sS); e("s_lshr_b32 s43, s%d, 2" % sH); e("s_add_u32 s42, s42, s43")
    elif rm == 2:
        e("s_mul_i32 s42, s2, 5")
    else:
        e("s_mul_i32 s42, s2, 17"); e("s_lshr_b32 s42, s42, 1")
    e("s_and_b32 s42, s42, 63"); e("s_lshl_b32 s%d, s42, 12" % sBO)
    e("s_mov_b32 s%d, s%d" % (sOFF, sBO)); e("s_mov_b32 s%d, 0x3ffff" % sMSK)
for t in range(KP1):
    e("buffer_load_dwordx4 v[%d:%d], v%d, s[%d:%d], s%d offen nt" % (vK0 + 4 * t, vK0 + 4 * t + 3, vKV, sK, sK + 3, sOFF))
    e("s_add_u32 s%d, s%d, 4096" % (sOFF, sOFF)); wrap()
if OPT.get("tsstart"): ts(5)
if OPT.get("lat"):
    e("buffer_load_dwordx4 v[64:67], v%d, s[%d:%d], s%d offen nt" % (vKV, sK, sK + 3, sOFF))
    e("s_waitcnt vmcnt(0)"); ts(24)
    e("buffer_load_dwordx4 v[64:67], v%d, s[%d:%d], s%d offen nt" % (vKV, sV, sV + 3, sOFF))
    e("s_waitcnt vmcnt(0)"); ts(25)
    e("s_mov_b32 s42, 0x4000000")
    e("buffer_load_dwordx4 v[64:67], v%d, s[%d:%d], s42 offen nt" % (vKV, sK, sK + 3))
    e("s_waitcnt vmcnt(0)"); ts(26)
    e("s_mov_b32 s42, 0x8000")
    e("buffer_load_dwordx4 v[64:67], v%d, s[%d:%d], s42 offen nt" % (vKV, sK, sK + 3))
    e("s_waitcnt vmcnt(0)"); ts(29)
e("s_mov_b64 s[%d:%d], s[38:39]" % (sWQ, sWQ + 1))
e("s_mov_b32 s%d, %d" % (sWQ + 2, 640 * 8192)); e("s_mov_b32 s%d, 0x20000" % (sWQ + 3))
e("s_cmp_lg_u32 s%d, 0" % sW)
e("s_cbranch_scc1 L_noclear")
e("s_mul_i32 s42, s2, 3072")
e("v_lshlrev_b32 v%d, 4, v0" % vT)
e("v_add_u32 v%d, s42, v%d" % (vT, vT))
for i in range(4):
    e("v_mov_b32 v%d, -1" % (vKT + i))
for i in range(3):
    e("global_store_dwordx4 v%d, v[%d:%d], s[%d:%d] offset:%d sc1" % (vT, vKT, vKT + 3, sWS, sWS + 1, i * 1024))
def qp_own_addr(dst):
    e("s_lshl_b32 s42, s%d, 3" % sH); e("s_add_u32 s42, s42, s%d" % sS); e("s_lshl_b32 s42, s42, 9")
    e("s_add_u32 s42, s42, %d" % WS_QP)
    e("v_lshrrev_b32 v%d, 5, v0" % dst); e("v_mul_u32_u24 v%d, %d, v%d" % (dst, QP_B, dst))
    e("v_and_b32 v%d, 31, v0" % (dst + 1)); e("v_lshl_add_u32 v%d, v%d, 4, v%d" % (dst, dst + 1, dst))
    e("v_add_u32 v%d, s42, v%d" % (dst, dst))
qp_own_addr(vT)
e("global_store_dwordx4 v%d, v[%d:%d], s[%d:%d] sc1" % (vT, vKT, vKT + 3, sWS, sWS + 1))
e("s_cmp_ge_u32 s2, %d" % R4_N)
e("s_cbranch_scc1 L_noclear")
e("v_lshrrev_b32 v%d, 3, v0" % vT); e("v_mul_u32_u24 v%d, %d, v%d" % (vT, Q_ST, vT))
e("v_and_b32 v%d, 7, v0" % (vT + 1)); e("v_lshl_add_u32 v%d, v%d, 4, v%d" % (vT, vT + 1, vT))
e("s_lshl_b32 s42, s2, 7"); e("s_add_u32 s42, s42, %d" % WS_Q); e("v_add_u32 v%d, s42, v%d" % (vT, vT))
e("s_mov_b32 exec_hi, 0")
e("global_store_dwordx4 v%d, v[%d:%d], s[%d:%d] sc1" % (vT, vKT, vKT + 3, sWS, sWS + 1))
e("s_mov_b64 exec, -1")
g.lab("L_noclear")
vXA = 16
vXR = 32
e("v_lshlrev_b32 v%d, 4, v0" % vT)
for b in range(2):
    for i in range(4): e("v_mov_b32 v%d, 0" % (vXA + 8 * b + 4 + i))
for b in range(2):
    e("global_load_dwordx4 v[%d:%d], v%d, s[%d:%d] offset:%d" % (vXA + 8 * b, vXA + 8 * b + 3, vT, sX, sX + 1, b * 1280))
e("s_mov_b64 exec, 0xffff")
for b in range(2):
    e("global_load_dwordx4 v[%d:%d], v%d, s[%d:%d] offset:%d" % (vXA + 8 * b + 4, vXA + 8 * b + 7, vT, sX, sX + 1, b * 1280 + 1024))
e("s_mov_b64 exec, -1")
e("s_mul_i32 s42, s%d, 80" % sS); e("s_mul_i32 s43, s%d, 20" % sW); e("s_add_u32 s42, s42, s43")
e("v_lshrrev_b32 v%d, 4, v0" % vT); e("v_add_u32 v%d, s42, v%d" % (vT, vT))
e("v_lshlrev_b32 v%d, 1, v%d" % (vT + 1, vT))
for b in range(2):
    for i in range(5):
        e("global_load_ushort v%d, v%d, s[%d:%d] offset:%d" % (vXR + 5 * b + i, vT + 1, sX, sX + 1, b * 1280 + 8 * i))
e("v_lshlrev_b32 v%d, 13, v%d" % (vT, vT))
e("v_and_b32 v%d, 15, v0" % (vT + 1)); e("v_lshl_add_u32 v%d, v%d, 4, v%d" % (vT, vT + 1, vT))
e("s_lshl_b32 s42, s%d, 8" % sH)
for i in range(5):
    e("buffer_load_dwordx4 a[%d:%d], v%d, s[%d:%d], s42 offen" % (4 * i, 4 * i + 3, vT, sWQ, sWQ + 3))
    e("s_add_u32 s42, s42, %d" % (4 * 8192))
if OPT.get("touch"):
    e("s_mov_b32 s43, 0x4000000")
    e("buffer_load_dword v44, off, s[%d:%d], 0 nt" % (sV, sV + 3))
    e("buffer_load_dword v45, off, s[%d:%d], s43 nt" % (sK, sK + 3))
    e("buffer_load_dword v46, off, s[%d:%d], s43 nt" % (sV, sV + 3))
for t in range(KP1, KPRE):
    e("buffer_load_dwordx4 v[%d:%d], v%d, s[%d:%d], s%d offen nt" % (vK0 + 4 * t, vK0 + 4 * t + 3, vKV, sK, sK + 3, sOFF))
    e("s_add_u32 s%d, s%d, 4096" % (sOFF, sOFF)); wrap()
if OPT.get("tsstart"): ts(27)

e("s_mov_b32 s%d, 0" % sROLE); e("s_mov_b32 s%d, 0" % sJ)
e("s_mov_b32 s%d, 0" % sKS); e("s_mov_b32 s%d, 0" % sGRP)
e("s_mov_b32 s%d, 0" % sHAS4); e("s_mov_b32 s%d, 0" % sCLS); e("s_mov_b32 s%d, 0" % sPAR); e("s_mov_b32 s%d, 0" % sRING)
e("s_mov_b64 s[%d:%d], s[38:39]" % (sWT, sWT + 1))
e("s_mov_b32 s%d, %d" % (sWT + 2, 640 * 8192)); e("s_mov_b32 s%d, 0x20000" % (sWT + 3))
OP_ATT, OP_S1, OP_S2, OP_S3, OP_S4, OP_RING, OP_LK = 1, 2, 3, 4, 5, 6, 7
def prog(steps):
    v = 0
    for i, (op, inv) in enumerate(steps):
        v |= (op | (inv << 4)) << (8 * i)
    e("s_mov_b32 s%d, 0x%08x" % (sPROG, v & 0xffffffff)); e("s_mov_b32 s%d, 0x%08x" % (sPROG + 1, v >> 32))
prog([(OP_RING, 2), (OP_ATT, 1), (OP_LK, 3), (OP_ATT, 3)])
def in_range(lo, n, skip):
    e("s_sub_u32 s42, s2, %d" % lo)
    e("s_cmp_lt_u32 s42, %d" % n)
    e("s_cbranch_scc0 %s" % skip)

def gemv64_consts(NL, rowb):
    KW = 8 * NL
    e("s_mul_i32 s42, s%d, %d" % (sW, NL * 1024))
    e("s_add_u32 s42, s42, %d" % LP)
    e("v_lshlrev_b32 v%d, 4, v0" % vRW)
    e("v_add_u32 v%d, s42, v%d" % (vRW, vRW))
    e("v_lshrrev_b32 v%d, 3, v0" % vT)
    e("v_mul_u32_u24 v%d, %d, v%d" % (vRP, NL * 4, vT))
    e("s_mul_i32 s42, s%d, %d" % (sW, KW * 4))
    e("s_add_u32 s42, s42, %d" % PD)
    e("v_add_u32 v%d, s42, v%d" % (vRP, vRP))
    e("v_and_b32 v%d, 7, v0" % vRR)
    e("v_lshlrev_b32 v%d, 3, v%d" % (vRR, vRR))
    e("v_lshrrev_b32 v%d, 5, v0" % (vT + 1))
    e("v_lshl_add_u32 v%d, v%d, 2, v%d" % (vRR, vT + 1, vRR))
    e("v_bfe_u32 v%d, v0, 4, 1" % (vT + 1))
    e("v_add_u32 v%d, v%d, v%d" % (vRR, vRR, vT + 1))
    e("v_bfe_u32 v%d, v0, 3, 1" % (vT + 1))
    e("v_lshl_add_u32 v%d, v%d, 1, v%d" % (vRR, vT + 1, vRR))
    e("s_lshl_b32 s42, s%d, 8" % sW)
    e("s_add_u32 s42, s42, %d" % RED)
    e("v_lshlrev_b32 v%d, 2, v%d" % (vRR, vRR))
    e("v_add_u32 v%d, s42, v%d" % (vRR, vRR))

def gemv64_wload(NL, rowb, k0_expr_sreg, cb_sreg, vT=vT, srd=sWT):
    KW = 8 * NL
    e("v_lshrrev_b32 v%d, 3, v0" % vT)
    e("v_mul_u32_u24 v%d, %d, v%d" % (vT, NL * rowb, vT)) if NL * rowb < (1 << 24) else None
    e("v_and_b32 v%d, 7, v0" % (vT + 1))
    e("v_lshl_add_u32 v%d, v%d, 4, v%d" % (vT, vT + 1, vT))
    e("s_mul_i32 s42, s%d, %d" % (sW, KW))
    if k0_expr_sreg is not None:
        e("s_add_u32 s42, s42, s%d" % k0_expr_sreg)
    e("s_mul_i32 s42, s42, %d" % rowb)
    e("s_add_u32 s42, s42, s%d" % cb_sreg)
    e("s_mul_i32 s43, s%d, %d" % (sW, NL * 1024))
    e("s_add_u32 s43, s43, %d" % LP)
    for i in range(NL):
        e("s_mov_b32 m0, s43")
        e("s_add_u32 s43, s43, 1024")
        e("buffer_load_dwordx4 v%d, s[%d:%d], s42 offen %slds" % (vT, srd, srd + 3, WNT))
        e("s_add_u32 s42, s42, %d" % rowb)

def x160_consts():
    e("v_min_u32 v%d, 39, v0" % vT)
    e("v_lshlrev_b32 v%d, 2, v%d" % (vT, vT))
    e("s_mul_i32 s42, s%d, 160" % sW)
    e("v_add_u32 v%d, s42, v%d" % (vT, vT))
    e("v_lshlrev_b32 v%d, 1, v%d" % (vRB, vT))
    e("v_lshlrev_b32 v%d, 2, v%d" % (vRA, vT))
    e("v_add_u32 v%d, %d, v%d" % (vPW, PD, vRA))
    e("v_mov_b32 v%d, 0" % vFL)
    e("v_cmp_gt_u32 vcc, 40, v0")
    e("s_nop 1")
    e("v_cndmask_b32 v%d, v%d, 1.0, vcc" % (vFL, vFL))

def s1_consts():
    gemv64_consts(16, 1280)
    e("s_lshl_b32 s42, s%d, 2" % sKS); e("s_add_u32 s42, s42, s%d" % sW)
    e("v_lshrrev_b32 v%d, 5, v0" % vT)
    e("v_and_b32 v%d, 31, v0" % (vT + 1))
    e("v_lshlrev_b32 v%d, 4, v%d" % (vT + 1, vT + 1))
    e("v_lshl_add_u32 v%d, v%d, 9, v%d" % (vRA, vT, vT + 1))
    e("s_lshl_b32 s43, s42, 12"); e("v_add_u32 v%d, s43, v%d" % (vRA, vRA))
    e("v_lshlrev_b32 v%d, 5, v%d" % (vRB, vT))
    e("s_lshl_b32 s43, s42, 6"); e("v_add_u32 v%d, s43, v%d" % (vRB, vRB))
    e("v_lshl_add_u32 v%d, v%d, 2, v%d" % (vPW, vT, vT + 1))
    e("s_lshl_b32 s43, s%d, 9" % sW); e("s_add_u32 s43, s43, %d" % PD)
    e("v_add_u32 v%d, s43, v%d" % (vPW, vPW))

def s4_consts():
    gemv64_consts(20, 8192); x160_consts()

in_range(R1_0, R1_N, "L_nr1")
e("s_mov_b32 s%d, 1" % sROLE); e("s_mov_b32 s%d, s42" % sJ)
e("s_mov_b64 s[%d:%d], s[40:41]" % (sWT, sWT + 1)); e("s_mov_b32 s%d, %d" % (sWT + 2, 4096 * 1280))
e("s_and_b32 s%d, s%d, 7" % (sKS, sJ))
e("s_lshr_b32 s%d, s%d, 3" % (sGRP, sJ))
SN = OPT.get("sn")
prog([(OP_S1, 0), (OP_ATT, 1), (OP_S1, 2), (OP_ATT, 3), (OP_S1, 3)] if SN else [(OP_S1, 0), (OP_ATT, 1), (OP_S1, 2), (OP_S1, 1), (OP_ATT, 3), (OP_S1, 3)])
e("s_cmp_ge_u32 s2, %d" % R4_N)
e("s_cbranch_scc1 L_roledone")
e("s_mov_b32 s%d, 1" % sHAS4)
prog([(OP_S1, 0), (OP_S4, 1), (OP_ATT, 1), (OP_S1, 2), (OP_S4, 3), (OP_ATT, 3), (OP_S1, 3)] if SN else [(OP_S1, 0), (OP_S4, 1), (OP_ATT, 1), (OP_S1, 2), (OP_S1, 1), (OP_S4, 3), (OP_ATT, 3), (OP_S1, 3)])
e("s_branch L_roledone")
g.lab("L_nr1")
in_range(R2_0, R2_N, "L_nr2")
e("s_mov_b32 s%d, 2" % sROLE); e("s_mov_b32 s%d, s42" % sJ)
e("s_mov_b64 s[%d:%d], s[44:45]" % (sWT, sWT + 1)); e("s_mov_b32 s%d, %d" % (sWT + 2, 640 * 3456))
e("s_lshl_b32 s%d, s%d, 7" % (sGRP, sJ))
gemv64_consts(20, 3456); x160_consts()
prog([(OP_S2, 0), (OP_ATT, 1), (OP_S2, 1), (OP_S2, 2), (OP_ATT, 3), (OP_S2, 3)] if SN else [(OP_S2, 0), (OP_ATT, 1), (OP_S2, 2), (OP_S2, 1), (OP_ATT, 3), (OP_S2, 3)])
e("s_branch L_roledone")
g.lab("L_nr2")
in_range(R3_0, R3_N, "L_nr3")
prog([(OP_S3, 0), (OP_ATT, 1), (OP_S3, 1), (OP_S3, 2), (OP_ATT, 3), (OP_S3, 3)] if SN else ([(OP_S3, 0), (OP_ATT, 1), (OP_S3, 2), (OP_S3, 1), (OP_ATT, 3), (OP_S3, 3)] if OPT.get("s3old") else [(OP_S3, 0), (OP_ATT, 1), (OP_S3, 2), (OP_ATT, 3), (OP_S3, 1), (OP_S3, 3)]))
e("s_mov_b32 s%d, 3" % sROLE); e("s_mov_b32 s%d, s42" % sJ)
if not OPT.get("s3lin"):
    e("s_and_b32 s43, s42, 7"); e("s_mul_i32 s43, s43, 5"); e("s_lshr_b32 s42, s42, 3"); e("s_add_u32 s%d, s43, s42" % sJ)
e("s_mov_b64 s[%d:%d], s[46:47]" % (sWT, sWT + 1)); e("s_mov_b32 s%d, %d" % (sWT + 2, 1728 * 1280))
e("s_mul_i32 s42, s%d, 14336" % sW); e("s_add_u32 s42, s42, %d" % LP)
e("v_lshlrev_b32 v%d, 3, v0" % vRW); e("v_add_u32 v%d, s42, v%d" % (vRW, vRW))
e("s_mul_i32 s42, s%d, 1792" % sW); e("s_add_u32 s42, s42, %d" % PD3)
e("v_lshrrev_b32 v%d, 2, v0" % vT); e("v_lshlrev_b32 v%d, 4, v%d" % (vRP, vT)); e("v_add_u32 v%d, s42, v%d" % (vRP, vRP))
e("v_min_u32 v%d, 53, v0" % vT)
e("v_lshlrev_b32 v%d, 5, v%d" % (vPW, vT)); e("v_add_u32 v%d, s42, v%d" % (vPW, vPW))
e("v_lshlrev_b32 v%d, 4, v%d" % (vRA, vT))
e("s_mul_i32 s43, s%d, 864" % sW); e("v_add_u32 v%d, s43, v%d" % (vRA, vRA))
e("v_and_b32 v%d, 3, v0" % vT); e("v_lshlrev_b32 v%d, 2, v%d" % (vT, vT))
e("v_lshrrev_b32 v%d, 4, v0" % (vT + 1)); e("v_add_u32 v%d, v%d, v%d" % (vT, vT, vT + 1))
e("v_lshlrev_b32 v%d, 2, v%d" % (vRR, vT))
e("s_lshl_b32 s43, s%d, 6" % sW); e("s_add_u32 s43, s43, %d" % RED); e("v_add_u32 v%d, s43, v%d" % (vRR, vRR))
e("v_and_b32 v%d, 14, v0" % vT); e("v_lshlrev_b32 v%d, 1, v%d" % (vRB, vT))
e("s_lshl_b32 s43, s%d, 5" % sJ); e("v_add_u32 v%d, s43, v%d" % (vRB, vRB))
e("v_lshlrev_b32 v%d, 2, v0" % vT); e("v_add_u32 v%d, s42, v%d" % (vT, vT))
e("v_mov_b32 v%d, 0" % (vT + 1))
e("s_mov_b64 exec, 0xffff")
e("ds_write_b32 v%d, v%d offset:1728" % (vT, vT + 1))
e("s_mov_b64 exec, -1")
e("s_branch L_roledone")
g.lab("L_nr3")
e("s_mov_b32 s%d, 1" % sCLS)
in_range(NSET0, R1_N if SN else 0, "L_roledone")
e("s_mov_b32 s%d, 2" % sCLS); e("s_mov_b32 s%d, s42" % sJ)
e("s_mov_b64 s[%d:%d], s[40:41]" % (sWT, sWT + 1)); e("s_mov_b32 s%d, %d" % (sWT + 2, 4096 * 1280))
e("s_and_b32 s%d, s%d, 7" % (sKS, sJ))
e("s_lshr_b32 s%d, s%d, 3" % (sGRP, sJ))
prog([(OP_RING, 2), (OP_ATT, 1), (OP_S1, 1), (OP_LK, 3), (OP_ATT, 3)])
g.lab("L_roledone")


vP, vGA, vGAA, vGW = 16, 36, 44, 48

def signal_cleared():
    lab = g.newlab("L_nosig")
    e("s_cmp_lg_u32 s%d, 0" % sW)
    e("s_cbranch_scc1 %s" % lab)
    e("v_mov_b32 v%d, 0" % vT); e("v_mov_b32 v%d, 1" % (vT + 1))
    e("s_mov_b64 exec, 1")
    e("global_atomic_add v%d, v%d, s[%d:%d] sc1" % (vT, vT + 1, sDBG, sDBG + 1))
    e("s_mov_b64 exec, -1")
    g.lab(lab)

def reduce8_to_col(acc, out):
    g.nop(5)
    for i in range(4):
        e("v_permlane32_swap_b32 v%d, v%d" % (acc + i, acc + 4 + i))
    for i in range(4):
        e("v_add_f32 v%d, v%d, v%d" % (acc + i, acc + i, acc + 4 + i))
    g.nop(1)
    e("v_permlane16_swap_b32 v%d, v%d" % (acc, acc + 1))
    e("v_permlane16_swap_b32 v%d, v%d" % (acc + 2, acc + 3))
    e("v_add_f32 v%d, v%d, v%d" % (acc, acc, acc + 1))
    e("v_add_f32 v%d, v%d, v%d" % (acc + 2, acc + 2, acc + 3))
    g.nop(2)
    e("v_add_f32_dpp v%d, v%d, v%d row_ror:8 row_mask:0xf bank_mask:0x3" % (out, acc, acc))
    e("v_add_f32_dpp v%d, v%d, v%d row_ror:8 row_mask:0xf bank_mask:0xc" % (out, acc + 2, acc + 2))

def gemv64(NL, ones=False):
    g.lg = []
    for i in range(min(4, NL)):
        g.lds("ds_read_b128 v[%d:%d], v%d offset:%d" % (vGW + 4 * i, vGW + 4 * i + 3, vRW, i * 1024), "W%d" % i)
    if not ones:
        for j in range(NL // 4):
            g.lds("ds_read_b128 v[%d:%d], v%d offset:%d" % (vP + 4 * j, vP + 4 * j + 3, vRP, j * 16), "P%d" % j)
    for i in range(8):
        e("v_mov_b32 v%d, 0" % (vGA + i))
    def ands(i):
        b = vGAA + 2 * (i % 2)
        if ones:
            if i < 2:
                e("v_and_b32 v%d, s%d, v%d" % (b, sONE, vM01)); e("v_and_b32 v%d, s%d, v%d" % (b + 1, sONE, vM23))
        else:
            if i % 4 == 0:
                g.lwait("P%d" % (i // 4))
            e("v_and_b32 v%d, v%d, v%d" % (b, vP + i, vM01)); e("v_and_b32 v%d, v%d, v%d" % (b + 1, vP + i, vM23))
    ands(0)
    for i in range(NL):
        if i + 1 < NL:
            ands(i + 1)
        if ones and i >= 1:
            pass
        g.lwait("W%d" % i)
        if i == 0 or ones:
            g.nop(2)
        b = vGAA + 2 * (i % 2); wb = vGW + 4 * (i % 4)
        e("v_mfma_f32_4x4x4_16b_bf16 v[%d:%d], v[%d:%d], v[%d:%d], v[%d:%d]" % (vGA, vGA + 3, b, b + 1, wb, wb + 1, vGA, vGA + 3))
        e("v_mfma_f32_4x4x4_16b_bf16 v[%d:%d], v[%d:%d], v[%d:%d], v[%d:%d]" % (vGA + 4, vGA + 7, b, b + 1, wb + 2, wb + 3, vGA + 4, vGA + 7))
        if i + 4 < NL:
            g.lds("ds_read_b128 v[%d:%d], v%d offset:%d" % (wb, wb + 3, vRW, (i + 4) * 1024), "W%d" % (i + 4))
    reduce8_to_col(vGA, vGAA)
    e("ds_write_b32 v%d, v%d" % (vRR, vGAA))
    g.lg = []

def wave_sum2(a, b, t):
    for ctl in ("quad_perm:[1,0,3,2]", "quad_perm:[2,3,0,1]", "row_half_mirror", "row_mirror"):
        g.nop(1)
        e("v_add_f32_dpp v%d, v%d, v%d %s row_mask:0xf bank_mask:0xf" % (a, a, a, ctl))
        e("v_add_f32_dpp v%d, v%d, v%d %s row_mask:0xf bank_mask:0xf" % (b, b, b, ctl))
    g.nop(2)
    e("v_permlane32_swap_b32 v%d, v%d" % (a, b))
    e("v_add_f32 v%d, v%d, v%d" % (a, a, b))
    e("v_mov_b32 v%d, v%d" % (t, a))
    g.nop(2)
    e("v_permlane16_swap_b32 v%d, v%d" % (a, t))
    e("v_add_f32 v%d, v%d, v%d" % (a, a, t))

def x_to_p_and_stats(x0):
    for i in range(4):
        e("v_cvt_pk_bf16_f32 v%d, v%d, v%d" % (vGW + i, x0 + i, x0 + i))
    e("ds_write_b128 v%d, v[%d:%d]" % (vPW, vGW, vGW + 3))
    e("v_add_f32 v%d, v%d, v%d" % (vT, x0, x0 + 1))
    e("v_add_f32 v%d, v%d, v%d" % (vT + 1, x0 + 2, x0 + 3))
    e("v_mul_f32 v%d, v%d, v%d" % (vT + 2, x0, x0))
    e("v_add_f32 v%d, v%d, v%d" % (vT, vT, vT + 1))
    for i in (1, 2, 3):
        e("v_fmac_f32 v%d, v%d, v%d" % (vT + 2, x0 + i, x0 + i))
    e("v_mul_f32 v%d, v%d, v%d" % (vT, vT, vFL))
    e("v_mul_f32 v%d, v%d, v%d" % (vT + 2, vT + 2, vFL))
    wave_sum2(vT, vT + 2, vT + 1)
    e("v_lshrrev_b32 v%d, 5, v0" % (vT + 1))
    e("v_lshlrev_b32 v%d, 2, v%d" % (vT + 1, vT + 1))
    e("s_lshl_b32 s%d, s%d, 3" % (sT, sW)); e("s_add_u32 s%d, s%d, %d" % (sT, sT, ST))
    e("v_add_u32 v%d, s%d, v%d" % (vT + 1, sT, vT + 1))
    e("s_mov_b32 exec_lo, 1"); e("s_mov_b32 exec_hi, 1")
    e("ds_write_b32 v%d, v%d" % (vT + 1, vT))
    e("s_mov_b64 exec, -1")
    e("s_waitcnt lgkmcnt(0)")

def final_col_sum(y, with_ln):
    e("v_lshlrev_b32 v%d, 2, v0" % vT)
    e("v_add_u32 v%d, %d, v%d" % (vT + 1, RED, vT))
    e("ds_read2_b32 v[%d:%d], v%d offset0:0 offset1:64" % (16, 17, vT + 1))
    e("ds_read2_b32 v[%d:%d], v%d offset0:128 offset1:192" % (18, 19, vT + 1))
    if with_ln:
        e("v_mov_b32 v%d, %d" % (vT + 2, ST))
        e("ds_read_b128 v[20:23], v%d" % (vT + 2))
        e("ds_read_b128 v[24:27], v%d offset:16" % (vT + 2))
        e("v_add_u32 v%d, %d, v%d" % (vT + 1, CS, vT))
        e("ds_read_b32 v28, v%d" % (vT + 1))
    e("s_waitcnt lgkmcnt(0)")
    e("v_add_f32 v16, v16, v17"); e("v_add_f32 v18, v18, v19"); e("v_add_f32 v%d, v16, v18" % y)
    if with_ln:
        e("v_add_f32 v20, v20, v22"); e("v_add_f32 v24, v24, v26"); e("v_add_f32 v20, v20, v24")
        e("v_add_f32 v21, v21, v23"); e("v_add_f32 v25, v25, v27"); e("v_add_f32 v21, v21, v25")
        e("v_mul_f32 v20, 0x3acccccd, v20")
        e("v_mul_f32 v21, 0x3acccccd, v21")
        e("v_fma_f32 v21, -v20, v20, v21")
        e("v_add_f32 v21, 0x3727c5ac, v21")
        e("v_rsq_f32 v21, v21")
        e("v_fma_f32 v%d, -v20, v28, v%d" % (y, y))
        e("v_mul_f32 v%d, v%d, v21" % (y, y))

def round_bf16(r, t=None):
    e("v_cvt_pk_bf16_f32 v%d, v%d, v%d" % (r, r, r))
    e("v_and_b32 v%d, 0xffff0000, v%d" % (r, r))

def pack_pair_even(y, out):
    g.nop(2)
    e("v_mov_b32_dpp v%d, v%d quad_perm:[1,0,3,2] row_mask:0xf bank_mask:0xf" % (out, y))
    e("v_cvt_pk_bf16_f32 v%d, v%d, v%d" % (out, y, out))

def pack8(y, out):
    g.nop(2)
    e("v_mov_b32_dpp v%d, v%d quad_perm:[1,0,3,2] row_mask:0xf bank_mask:0xf" % (out, y))
    e("v_cvt_pk_bf16_f32 v%d, v%d, v%d" % (out, y, out))
    g.nop(2)
    e("v_mov_b32_dpp v%d, v%d quad_perm:[2,3,0,1] row_mask:0xf bank_mask:0xf" % (out + 1, out))
    e("v_mov_b32_dpp v%d, v%d row_shl:4 row_mask:0xf bank_mask:0xf" % (out + 2, out))
    g.nop(1)
    e("v_mov_b32_dpp v%d, v%d row_shl:4 row_mask:0xf bank_mask:0xf" % (out + 3, out + 1))

def exec8():
    e("s_mov_b32 exec_lo, 0x01010101"); e("s_mov_b32 exec_hi, 0x01010101")

def colsum(NL):
    gemv64(NL, ones=True)
    e("s_waitcnt lgkmcnt(0)")
    e("s_barrier")
    lab = g.newlab("L_cs")
    e("s_cmp_lg_u32 s%d, 0" % sW)
    e("s_cbranch_scc1 %s" % lab)
    final_col_sum(30, False)
    e("v_add_u32 v%d, %d, v%d" % (vT + 1, CS, vT))
    e("ds_write_b32 v%d, v30" % (vT + 1))
    e("s_waitcnt lgkmcnt(0)")
    g.lab(lab)
    e("s_barrier")

def s3_wload(vT=vT):
    e("v_bfe_u32 v%d, v0, 1, 4" % vT)
    e("v_mul_u32_u24 v%d, %d, v%d" % (vT, 4 * 1280, vT))
    e("v_lshrrev_b32 v%d, 5, v0" % (vT + 1))
    e("v_mul_u32_u24 v%d, 1280, v%d" % (vT + 1, vT + 1))
    e("v_add_u32 v%d, v%d, v%d" % (vT, vT, vT + 1))
    e("v_and_b32 v%d, 1, v0" % (vT + 1))
    e("v_lshl_add_u32 v%d, v%d, 4, v%d" % (vT, vT + 1, vT))
    e("s_mul_i32 s42, s%d, %d" % (sW, 432 * 1280))
    e("s_lshl_b32 s43, s%d, 5" % sJ)
    e("s_add_u32 s42, s42, s43")
    e("s_mul_i32 s43, s%d, 14336" % sW); e("s_add_u32 s43, s43, %d" % LP)
    for ld in range(14):
        i0 = 2 * ld
        rowoff = (64 * (i0 // 4) + (i0 % 4)) * 1280
        e("s_mov_b32 m0, s43")
        e("s_add_u32 s44, s42, %d" % rowoff)
        e("buffer_load_dwordx4 v%d, s[%d:%d], s44 offen %slds" % (vT, sWT, sWT + 3, WNT))
        e("s_add_u32 s43, s43, 1024")

XRM = 0 if OPT.get("nox2r") else 3
def x2_replica():
    e("s_and_b32 s%d, s%d, %d" % (sT + 1, sJ, XRM)); e("s_mul_i32 s%d, s%d, %d" % (sT + 1, sT + 1, X2R)); e("s_add_u32 s%d, s%d, s%d" % (sT, sT, sT + 1))

def s4_block():
    g.lab("L_s4")
    e("s_mov_b32 s%d, s%d" % (sTQ, sINV))
    s4_consts()
    nc = g.newlab("L_s4nc")
    e("s_cmp_lg_u32 s%d, 1" % sTQ); e("s_cbranch_scc1 %s" % nc)
    ts(24)
    e("s_waitcnt vmcnt(0)")
    ts(25)
    colsum(20)
    ts(26)
    g.lab(nc)
    e("s_sub_u32 s%d, s%d, 1" % (sT, sTQ)); e("s_mul_i32 s%d, s%d, %d" % (sT, sT, X2_ST)); e("s_add_u32 s%d, s%d, %d" % (sT, sT, WS_X2))
    x2_replica()
    e("v_add_u32 v%d, s%d, v%d" % (50, sT, vRB))
    fpoll(lambda: e("global_load_dwordx2 v[4:5], v50, s[%d:%d] sc1" % (sWS, sWS + 1)), 1, [4, 5], vT)
    ts_s4(0)
    e("v_lshlrev_b32 v16, 16, v4"); e("v_and_b32 v17, 0xffff0000, v4")
    e("v_lshlrev_b32 v18, 16, v5"); e("v_and_b32 v19, 0xffff0000, v5")
    x_to_p_and_stats(16)
    gemv64(20)
    e("s_waitcnt lgkmcnt(0)")
    e("s_barrier")
    lab = g.newlab("L_s4w")
    e("s_cmp_lg_u32 s%d, 0" % sW)
    e("s_cbranch_scc1 %s" % lab)
    final_col_sum(30, True)
    pack8(30, 32)
    e("s_mul_i32 s%d, s%d, %d" % (sT, sTQ, Q_ST)); e("s_add_u32 s%d, s%d, %d" % (sT, sT, WS_Q))
    e("s_lshl_b32 s%d, s%d, 7" % (sT + 1, sJ)); e("s_add_u32 s%d, s%d, s%d" % (sT, sT, sT + 1))
    e("v_lshlrev_b32 v%d, 1, v0" % vT); e("v_add_u32 v%d, s%d, v%d" % (vT, sT, vT))
    exec8()
    e("global_store_dwordx4 v%d, v[32:35], s[%d:%d] sc1" % (vT, sWS, sWS + 1))
    e("s_mov_b64 exec, -1")
    g.lab(lab)
    ts_s4(1)
    e("s_cmp_eq_u32 s%d, 3" % sTQ)
    e("s_cselect_b32 s%d, 1, 0" % sLAX)
    e("s_barrier")
    e("s_branch L_disp")

def ts_s4(which):
    if not OPT["ts"]:
        return
    e("s_memrealtime s[%d:%d]" % (sCLK, sCLK + 1))
    e("s_waitcnt lgkmcnt(0)")
    for tq, idx in ((1, 2 if which == 0 else 30), (3, 3 if which == 0 else 31)):
        e("s_cmp_eq_u32 s%d, %d" % (sTQ, tq))
        e("s_cselect_b32 s%d, s%d, s%d" % (sTS + idx, sCLK, sTS + idx))

def allreduce_rows(regs, tmps):
    for r, t in zip(regs, tmps): e("v_mov_b32 v%d, v%d" % (t, r))
    g.nop(2)
    for r, t in zip(regs, tmps): e("v_permlane16_swap_b32 v%d, v%d" % (r, t))
    for r, t in zip(regs, tmps): e("v_add_f32 v%d, v%d, v%d" % (r, r, t))
    for r, t in zip(regs, tmps): e("v_mov_b32 v%d, v%d" % (t, r))
    g.nop(2)
    for r, t in zip(regs, tmps): e("v_permlane32_swap_b32 v%d, v%d" % (r, t))
    for r, t in zip(regs, tmps): e("v_add_f32 v%d, v%d, v%d" % (r, r, t))

def q_initial():
    st = [44, 45, 46, 47]
    for b in range(2):
        for i in range(8):
            x = vXA + 8 * b + i
            if i == 0:
                e("v_dot2_f32_bf16 v%d, v%d, s%d, 0" % (st[2 * b], x, sONE))
                e("v_dot2_f32_bf16 v%d, v%d, v%d, 0" % (st[2 * b + 1], x, x))
            else:
                e("v_dot2_f32_bf16 v%d, v%d, s%d, v%d" % (st[2 * b], x, sONE, st[2 * b]))
                e("v_dot2_f32_bf16 v%d, v%d, v%d, v%d" % (st[2 * b + 1], x, x, st[2 * b + 1]))
    g.nop(3)
    for ctl in ("quad_perm:[1,0,3,2]", "quad_perm:[2,3,0,1]", "row_half_mirror", "row_mirror"):
        for r in st:
            e("v_add_f32_dpp v%d, v%d, v%d %s row_mask:0xf bank_mask:0xf" % (r, r, r, ctl))
    allreduce_rows(st, [48, 49, 50, 51])
    for b in range(2):
        m, v = st[2 * b], st[2 * b + 1]
        e("v_mul_f32 v%d, 0x3acccccd, v%d" % (m, m))
        e("v_mul_f32 v%d, 0x3acccccd, v%d" % (v, v))
        e("v_fma_f32 v%d, -v%d, v%d, v%d" % (v, m, m, v))
        e("v_add_f32 v%d, 0x3727c5ac, v%d" % (v, v))
        e("v_rsq_f32 v%d, v%d" % (v, v))
    e("s_nop 0")
    for b in range(2):
        for i in range(5):
            r = vXR + 5 * b + i
            e("v_lshlrev_b32 v%d, 16, v%d" % (r, r))
            e("v_sub_f32 v%d, v%d, v%d" % (r, r, st[2 * b]))
            e("v_mul_f32 v%d, v%d, v%d" % (r, r, st[2 * b + 1]))
            e("v_cvt_pk_bf16_f32 v%d, v%d, v%d" % (r, r, r))
    for i in range(16): e("v_mov_b32 v%d, 0" % (16 + i))
    n = 0
    for i in range(5):
        for b in range(2):
            A = 52 + 2 * (n % 2); n += 1
            e("v_and_b32 v%d, v%d, v%d" % (A, vXR + 5 * b + i, vM01)); e("v_and_b32 v%d, v%d, v%d" % (A + 1, vXR + 5 * b + i, vM23))
            g.nop(2)
            acc = 16 + 8 * b
            e("v_mfma_f32_4x4x4_16b_bf16 v[%d:%d], v[%d:%d], a[%d:%d], v[%d:%d]" % (acc, acc + 3, A, A + 1, 4 * i, 4 * i + 1, acc, acc + 3))
            e("v_mfma_f32_4x4x4_16b_bf16 v[%d:%d], v[%d:%d], a[%d:%d], v[%d:%d]" % (acc + 4, acc + 7, A, A + 1, 4 * i + 2, 4 * i + 3, acc + 4, acc + 7))
    g.nop(5)
    for b in range(2):
        acc = 16 + 8 * b
        for i in range(4):
            e("v_permlane32_swap_b32 v%d, v%d" % (acc + i, acc + 4 + i))
    for b in range(2):
        acc = 16 + 8 * b
        for i in range(4):
            e("v_add_f32 v%d, v%d, v%d" % (acc + i, acc + i, acc + 4 + i))
    g.nop(1)
    for b in range(2):
        acc = 16 + 8 * b
        e("v_permlane16_swap_b32 v%d, v%d" % (acc, acc + 1))
        e("v_permlane16_swap_b32 v%d, v%d" % (acc + 2, acc + 3))
    for b in range(2):
        acc = 16 + 8 * b
        e("v_add_f32 v%d, v%d, v%d" % (acc, acc, acc + 1))
        e("v_add_f32 v%d, v%d, v%d" % (acc + 2, acc + 2, acc + 3))
    t1 = vT + 1
    e("s_lshl_b32 s%d, s%d, 10" % (sT, sW)); e("s_add_u32 s%d, s%d, %d" % (sT, sT, LP))
    e("v_and_b32 v%d, 15, v0" % t1); e("v_lshlrev_b32 v%d, 5, v%d" % (t1, t1))
    e("v_lshrrev_b32 v%d, 5, v0" % (vT + 3)); e("v_lshl_add_u32 v%d, v%d, 4, v%d" % (t1, vT + 3, t1))
    e("v_bfe_u32 v%d, v0, 4, 1" % (vT + 3)); e("v_lshl_add_u32 v%d, v%d, 2, v%d" % (t1, vT + 3, t1))
    e("v_add_u32 v%d, s%d, v%d" % (t1, sT, t1))
    e("ds_write2_b32 v%d, v16, v18 offset0:0 offset1:2" % t1)
    e("ds_write2_b32 v%d, v24, v26 offset0:128 offset1:130" % t1)
    e("s_waitcnt lgkmcnt(0)")
    e("s_barrier")
    lab = g.newlab("L_qiw")
    e("s_cmp_lg_u32 s%d, 0" % sW); e("s_cbranch_scc1 %s" % lab)
    e("v_lshlrev_b32 v%d, 4, v0" % t1); e("v_add_u32 v%d, %d, v%d" % (t1, LP, t1))
    for w in range(4):
        e("ds_read_b128 v[%d:%d], v%d offset:%d" % (16 + 4 * w, 19 + 4 * w, t1, w * 1024))
    qp_own_addr(vT + 2)
    e("s_waitcnt lgkmcnt(0)")
    for d in range(4):
        e("v_add_f32 v%d, v%d, v%d" % (16 + d, 16 + d, 20 + d)); e("v_add_f32 v%d, v%d, v%d" % (24 + d, 24 + d, 28 + d))
    for d in range(4):
        e("v_add_f32 v%d, v%d, v%d" % (16 + d, 16 + d, 24 + d))
    e("global_store_dwordx4 v%d, v[16:19], s[%d:%d] sc1" % (vT + 2, sWS, sWS + 1))
    g.lab(lab)

def qp_addr(dst):
    e("s_mov_b32 s%d, %d" % (sT, WS_QP))
    e("s_lshl_b32 s%d, s%d, 12" % (sT + 1, sH)); e("s_add_u32 s%d, s%d, s%d" % (sT, sT, sT + 1))
    e("v_lshrrev_b32 v%d, 4, v0" % dst); e("v_lshlrev_b32 v%d, 10, v%d" % (dst, dst))
    e("v_and_b32 v%d, 15, v0" % (dst + 1)); e("v_lshl_add_u32 v%d, v%d, 5, v%d" % (dst, dst + 1, dst))
    e("v_add_u32 v%d, s%d, v%d" % (dst, sT, dst))
    e("v_add_u32 v%d, %d, v%d" % (dst + 1, QP_B, dst))

def qp_issue(addr):
    for b in range(2):
        for i, off in enumerate((0, 16, 512, 528)):
            e("global_load_dwordx4 v[%d:%d], v%d, s[%d:%d] offset:%d sc1" % (16 + 16 * b + 4 * i, 19 + 16 * b + 4 * i, addr + b, sWS, sWS + 1, off))

def qp_finish(addr):
    bad = g.newlab("L_qbad"); good = g.newlab("L_qgood")
    sentinel_check(list(range(16, 48)), bad, vT)
    e("s_branch %s" % good)
    g.lab(bad)
    poll(lambda: qp_issue(addr), list(range(16, 48)), vT)
    g.lab(good)
    for b in range(2):
        for i in range(8): e("v_add_f32 v%d, v%d, v%d" % (16 + 16 * b + i, 16 + 16 * b + i, 24 + 16 * b + i))
    allreduce_rows(list(range(16, 24)) + list(range(32, 40)), list(range(24, 32)) + list(range(40, 48)))
    for i in range(4): e("v_cvt_pk_bf16_f32 v%d, v%d, v%d" % (vQ + i, 16 + 2 * i, 17 + 2 * i))
    for i in range(4): e("v_cvt_pk_bf16_f32 v%d, v%d, v%d" % (48 + i, 32 + 2 * i, 33 + 2 * i))
    e("s_lshl_b32 s%d, s%d, 8" % (sT, sW)); e("s_add_u32 s%d, s%d, %d" % (sT, sT, Q2S))
    e("v_and_b32 v%d, 15, v0" % vT); e("v_lshlrev_b32 v%d, 4, v%d" % (vT, vT)); e("v_add_u32 v%d, s%d, v%d" % (vT, sT, vT))
    e("s_mov_b64 exec, 0xffff")
    e("ds_write_b128 v%d, v[48:51]" % vT)
    e("s_mov_b64 exec, -1")

DEPTH = int(OPT.get("depth", 58))
def kload(t, wait=None):
    if wait is not None:
        e("s_waitcnt vmcnt(%d)" % min(wait, DEPTH))
    if t < 48:
        e("buffer_load_dwordx4 v[%d:%d], v%d, s[%d:%d], s%d offen nt" % (vK0 + 4 * t, vK0 + 4 * t + 3, vKV, sK, sK + 3, sOFF))
        e("s_add_u32 s%d, s%d, 4096" % (sOFF, sOFF)); wrap()
    else:
        e("s_add_u32 m0, s%d, %d" % (sM0B, LQ + (t - 48) * 1024))
        e("s_nop 0")
        e("buffer_load_dwordx4 v%d, s[%d:%d], s%d offen nt lds" % (vKV, sK, sK + 3, sOFF))
        e("s_add_u32 s%d, s%d, 4096" % (sOFF, sOFF)); wrap()

def vload(t, wait=58):
    e("s_waitcnt vmcnt(%d)" % min(wait, DEPTH))
    e("buffer_load_dwordx4 a[%d:%d], v%d, s[%d:%d], s%d offen nt" % (4 * t, 4 * t + 3, vKV, sV, sV + 3, sOFF))
    e("s_add_u32 s%d, s%d, 4096" % (sOFF, sOFF)); wrap()

def lka():
    g.lab("L_lka")
    ts_first(5)
    e("s_mov_b32 s%d, s%d" % (sOFF, sBO))
    for t in range(56):
        if t == KPRE:
            g.lab("L_lka_pre")
        kload(t, 58 if t >= 32 else None)
    ts_first(6)
    e("s_cmp_eq_u32 s%d, 1" % sLKM)
    e("s_cbranch_scc1 L_softmax")

def lkbv():
    g.lab("L_lkbv")
    e("s_add_u32 s%d, s%d, %d" % (sOFF, sBO, 56 * 4096)); wrap()
    for t in range(56, 64):
        kload(t, 58)
    e("v_mov_b32 v%d, 0" % vT)
    e("global_load_dword v%d, v%d, s[%d:%d] sc1" % (vT + 1, vT, sDBG, sDBG + 1))
    e("s_mov_b32 s%d, s%d" % (sOFF, sBO))
    for t in range(32):
        vload(t)
    e("s_waitcnt vmcnt(32)")
    e("v_readfirstlane_b32 s%d, v%d" % (sT, vT + 1))
    ok = g.newlab("L_cok")
    e("s_cmp_ge_u32 s%d, 256" % sT)
    e("s_cbranch_scc1 %s" % ok)
    counter_spin()
    g.lab(ok)
    ts_first(7)
    e("s_lshl_b32 s%d, s%d, 1" % (sINV, sLKM))
    e("s_min_u32 s%d, s%d, 3" % (sINV, sINV))
    if OPT["ts"]:
        e("s_lshl_b32 s%d, s%d, 2" % (sT, sINV))
        e("s_lshr_b32 s%d, 0x6320, s%d" % (sPH, sT)); e("s_and_b32 s%d, s%d, 15" % (sPH, sPH))
    noq = g.newlab("L_noq")
    e("s_cmp_eq_u32 s%d, 2" % sLKM)
    e("s_cbranch_scc1 %s" % noq)
    qp_addr(vT + 2)
    qp_issue(vT + 2)
    g.lab(noq)
    if KEEPV:
        k2 = g.newlab("L_keepv")
        e("s_cmp_eq_u32 s%d, 2" % sLKM); e("s_cbranch_scc0 %s" % k2)
        for t in range(32, 44):
            vload(t, 58)
        e("s_branch L_disp")
        g.lab(k2)
    for t in range(32, 64):
        vload(t, 50 if t < 44 else 58)
    e("s_cmp_eq_u32 s%d, 2" % sLKM)
    e("s_cbranch_scc1 L_disp")
    e("s_waitcnt vmcnt(32)")
    qp_finish(vT + 2)
    if (not OPT.get("wearly")):
        e("s_cmp_eq_u32 s%d, 1" % sROLE)
    else:
        e("s_cmp_lg_u32 s%d, 0" % sROLE)
    e("s_cselect_b32 s%d, 1, 0" % sLAX)
    e("s_branch L_qk")

def mid2():
    g.lab("L_mid2")
    if EARLY1:
        e("s_mov_b32 s%d, s%d" % (sVO, sBO))
        for t in range(64):
            e("s_waitcnt vmcnt(58)")
            e("buffer_load_dwordx4 a[%d:%d], v%d, s[%d:%d], s%d offen nt" % (4 * t, 4 * t + 3, vKV, sV, sV + 3, sVO))
            e("s_add_u32 s%d, s%d, 4096" % (sVO, sVO))
            if t == FLAGPOS: flag_store()
    e("s_mov_b32 s%d, 2" % sINV)
    e("s_mov_b32 s%d, s%d" % (sLAX, sHAS4))
    if OPT["ts"]:
        e("s_mov_b32 s%d, 3" % sPH)
    q2_read()
    e("s_waitcnt vmcnt(58) lgkmcnt(0)")
    e("s_branch L_qk")

def q2_read():
    e("s_lshl_b32 s%d, s%d, 8" % (sT, sW)); e("s_add_u32 s%d, s%d, %d" % (sT, sT, Q2S))
    e("v_and_b32 v%d, 15, v0" % vT); e("v_lshlrev_b32 v%d, 4, v%d" % (vT, vT)); e("v_add_u32 v%d, s%d, v%d" % (vT, sT, vT))
    e("ds_read_b128 v[%d:%d], v%d" % (vQ, vQ + 3, vT))

def flag_store():
    nf = g.newlab("L_nofl")
    e("s_cmp_eq_u32 s%d, 0" % sW); e("s_cbranch_scc0 %s" % nf)
    e("s_lshl_b32 s%d, s%d, 7" % (sT, sH)); e("s_lshl_b32 s%d, s%d, 4" % (sT + 1, sS)); e("s_add_u32 s%d, s%d, s%d" % (sT, sT, sT + 1))
    e("s_add_u32 s%d, s%d, %d" % (sT, sT, WS_FL))
    e("v_mov_b32 v48, s%d" % sT)
    for i in range(4): e("v_mov_b32 v%d, 0" % (52 + i))
    e("s_mov_b64 exec, 1")
    e("global_store_dwordx4 v48, v[52:55], s[%d:%d] sc1" % (sWS, sWS + 1))
    e("s_mov_b64 exec, -1")
    g.lab(nf)

def pv_c():
    g.lab("L_pvc")
    e("s_mov_b32 s%d, s%d" % (sVO, sBO))
    for i in range(8):
        e("v_mov_b32 v%d, 0" % (vACC + i))
    def ands(t):
        b = vA + 2 * (t % 3); T, u = t // 4, t % 4
        e("v_and_b32_dpp v%d, v%d, v%d row_newbcast:%d row_mask:0xf bank_mask:0xf" % (b, vS + T, vM01, 4 * u))
        e("v_and_b32_dpp v%d, v%d, v%d row_newbcast:%d row_mask:0xf bank_mask:0xf" % (b + 1, vS + T, vM23, 4 * u))
    def vl(t):
        e("s_waitcnt vmcnt(%d)" % min(58, int(OPT.get("depthc", 58))))
        e("buffer_load_dwordx4 a[%d:%d], v%d, s[%d:%d], s%d offen nt" % (4 * t, 4 * t + 3, vKV, sV, sV + 3, sVO))
        e("s_add_u32 s%d, s%d, 4096" % (sVO, sVO))
        if t == FLAGPOS: flag_store()
    ands(0)
    for t in range(64):
        if t + 1 < 64: ands(t + 1)
        else: g.nop(2)
        b = vA + 2 * (t % 3)
        e("v_mfma_f32_4x4x4_16b_bf16 v[%d:%d], v[%d:%d], a[%d:%d], v[%d:%d]" % (vACC, vACC + 3, b, b + 1, 4 * t, 4 * t + 1, vACC, vACC + 3))
        e("v_mfma_f32_4x4x4_16b_bf16 v[%d:%d], v[%d:%d], a[%d:%d], v[%d:%d]" % (vACC + 4, vACC + 7, b, b + 1, 4 * t + 2, 4 * t + 3, vACC + 4, vACC + 7))
        if t < 8 and not QKC: kload(56 + t, 58)
        if t >= 2: vl(t - 2)
    vl(62); vl(63)
    e("s_branch L_pvdone")

def pv_w():
    g.lab("L_pvw")
    e("s_mov_b32 s%d, 0" % sLAX)
    NL, rowb, tv = 16, 1280, 48
    e("v_lshrrev_b32 v%d, 3, v0" % tv)
    e("v_mul_u32_u24 v%d, %d, v%d" % (tv, NL * rowb, tv))
    e("v_and_b32 v%d, 7, v0" % (tv + 1))
    e("v_lshl_add_u32 v%d, v%d, 4, v%d" % (tv, tv + 1, tv))
    e("s_mul_i32 s42, s%d, %d" % (sW, 8 * NL))
    e("s_lshl_b32 s44, s%d, 9" % sKS); e("s_add_u32 s42, s42, s44")
    e("s_mul_i32 s42, s42, %d" % rowb)
    e("s_lshl_b32 s45, s%d, 7" % sGRP); e("s_add_u32 s42, s42, s45")
    e("s_mul_i32 s43, s%d, %d" % (sW, NL * 1024)); e("s_add_u32 s43, s43, %d" % LP)
    for i in range(8):
        e("v_mov_b32 v%d, 0" % (vACC + i))
    def ands(t):
        b = vA + 2 * (t % 3); T, u = t // 4, t % 4
        e("v_and_b32_dpp v%d, v%d, v%d row_newbcast:%d row_mask:0xf bank_mask:0xf" % (b, vS + T, vM01, 4 * u))
        e("v_and_b32_dpp v%d, v%d, v%d row_newbcast:%d row_mask:0xf bank_mask:0xf" % (b + 1, vS + T, vM23, 4 * u))
    ands(0)
    for t in range(64):
        if t + 1 < 64: ands(t + 1)
        else: g.nop(2)
        if t % 4 == 0:
            e("s_waitcnt vmcnt(%d)" % min(63, 60 - t + t // 4))
        b = vA + 2 * (t % 3)
        e("v_mfma_f32_4x4x4_16b_bf16 v[%d:%d], v[%d:%d], a[%d:%d], v[%d:%d]" % (vACC, vACC + 3, b, b + 1, 4 * t, 4 * t + 1, vACC, vACC + 3))
        e("v_mfma_f32_4x4x4_16b_bf16 v[%d:%d], v[%d:%d], a[%d:%d], v[%d:%d]" % (vACC + 4, vACC + 7, b, b + 1, 4 * t + 2, 4 * t + 3, vACC + 4, vACC + 7))
        if t % 4 == 1:
            e("s_mov_b32 m0, s43")
            e("s_add_u32 s43, s43, 1024")
            e("buffer_load_dwordx4 v%d, s[%d:%d], s42 offen %slds" % (tv, sWT, sWT + 3, WNT))
            e("s_add_u32 s42, s42, %d" % rowb)
    e("s_branch L_pvdone")

def pv_n():
    g.lab("L_pvn")
    for i in range(8):
        e("v_mov_b32 v%d, 0" % (vACC + i))
    def ands(t):
        b = vA + 2 * (t % 3); T, u = t // 4, t % 4
        e("v_and_b32_dpp v%d, v%d, v%d row_newbcast:%d row_mask:0xf bank_mask:0xf" % (b, vS + T, vM01, 4 * u))
        e("v_and_b32_dpp v%d, v%d, v%d row_newbcast:%d row_mask:0xf bank_mask:0xf" % (b + 1, vS + T, vM23, 4 * u))
    e("s_waitcnt lgkmcnt(0)")
    ands(0)
    for t in range(64):
        if t + 1 < 64: ands(t + 1)
        else: g.nop(2)
        b = vA + 2 * (t % 3)
        r, n = ("a", 4 * t) if t < 44 else ("v", vK0 + 4 * (t - 44))
        e("v_mfma_f32_4x4x4_16b_bf16 v[%d:%d], v[%d:%d], %s[%d:%d], v[%d:%d]" % (vACC, vACC + 3, b, b + 1, r, n, n + 1, vACC, vACC + 3))
        e("v_mfma_f32_4x4x4_16b_bf16 v[%d:%d], v[%d:%d], %s[%d:%d], v[%d:%d]" % (vACC + 4, vACC + 7, b, b + 1, r, n + 2, n + 3, vACC + 4, vACC + 7))
    e("s_branch L_pvdone")

def qaddr(dst):
    e("s_mul_i32 s%d, s%d, %d" % (sT, sINV, Q_ST)); e("s_add_u32 s%d, s%d, %d" % (sT, sT, WS_Q))
    e("s_lshl_b32 s%d, s%d, 8" % (sT + 1, sH)); e("s_add_u32 s%d, s%d, s%d" % (sT, sT, sT + 1))
    e("v_and_b32 v%d, 15, v0" % dst); e("v_lshlrev_b32 v%d, 4, v%d" % (dst, dst))
    e("v_add_u32 v%d, s%d, v%d" % (dst, sT, dst))

def dots(T, par, from_kt):
    out = []
    for jj in range(4):
        for u in range(4):
            src = (vKT + 4 * u + jj) if from_kt else (vK0 + 4 * (4 * T + u) + jj)
            d = vD + 4 * par + u
            if jj == 0:
                out.append("v_dot2_f32_bf16 v%d, v%d, v%d, 0" % (d, src, vQ + jj))
            else:
                out.append("v_dot2c_f32_bf16 v%d, v%d, v%d" % (d, src, vQ + jj))
    return out
def red(T, par):
    d = vD + 4 * par; s = vS + T
    return [
        "v_add_f32_dpp v%d, v%d, v%d row_ror:8 row_mask:0xf bank_mask:0x3" % (vE, d, d),
        "v_add_f32_dpp v%d, v%d, v%d row_ror:8 row_mask:0xf bank_mask:0x3" % (vE + 1, d + 1, d + 1),
        "v_add_f32_dpp v%d, v%d, v%d row_ror:8 row_mask:0xf bank_mask:0xc" % (vE, d + 2, d + 2),
        "v_add_f32_dpp v%d, v%d, v%d row_ror:8 row_mask:0xf bank_mask:0xc" % (vE + 1, d + 3, d + 3),
        "v_add_f32_dpp v%d, v%d, v%d row_shl:4 row_mask:0xf bank_mask:0x5" % (s, vE, vE),
        "v_add_f32_dpp v%d, v%d, v%d row_shr:4 row_mask:0xf bank_mask:0xa" % (s, vE + 1, vE + 1),
        "v_add_f32_dpp v%d, v%d, v%d quad_perm:[1,0,3,2] row_mask:0xf bank_mask:0xf" % (s, s, s),
        "v_add_f32_dpp v%d, v%d, v%d quad_perm:[2,3,0,1] row_mask:0xf bank_mask:0xf" % (s, s, s),
    ]
def red_tail(prev):
    r = red(*prev)
    g.nop(3)
    for i, x in enumerate(r):
        e(x)
        if i >= 3: g.nop(2)
        elif i == 1: g.nop(1)

sRM = 45
RD = int(OPT.get("ringd", 20))
RQ = RD - 20
def ring_slot(n):
    j = n % RD
    return (True, LQ + j * 1024) if j < RQ else (False, (j - RQ) * 1024)
def ring_issue(n):
    srd = sK if n < 64 else sV
    if n == 64:
        e("s_mov_b32 s%d, 0x4000000" % sOFF)
    inq, off = ring_slot(n)
    e("s_add_u32 m0, s%d, %d" % (sM0B if inq else sRM, off))
    e("s_nop 0")
    e("buffer_load_dwordx4 v%d, s[%d:%d], s%d offen %slds" % (vKV, srd, srd + 3, sOFF, "" if OPT.get("ringnt0") else "nt "))
    e("s_add_u32 s%d, s%d, 4096" % (sOFF, sOFF))
def ring_wait(G):
    issued = min(128, RD + 4 * G)
    e("s_waitcnt vmcnt(%d)" % (issued - (4 * G + 4)))

def ring_k():
    g.lab("L_ring")
    e("s_mul_i32 s%d, s%d, 20480" % (sRM, sW)); e("s_add_u32 s%d, s%d, %d" % (sRM, sRM, RING))
    if OPT.get("gate"):
        e("v_lshlrev_b32 v%d, 4, v0" % (vT + 2)); e("v_add_u32 v%d, %d, v%d" % (vT + 2, WS_GO, vT + 2))
        e("s_mov_b32 exec_hi, 0")
        poll(lambda: e("global_load_dword v%d, v%d, s[%d:%d] sc1" % (vT + 3, vT + 2, sWS, sWS + 1)), [vT + 3], vT)
        e("s_mov_b64 exec, -1")
    e("s_mov_b32 s%d, 0x4000000" % sOFF)
    for n in range(RD):
        ring_issue(n)
    q2_read()
    e("s_waitcnt lgkmcnt(0)")
    ts_dyn(8)
    ra = vT + 3
    rq = vT + 4
    e("v_lshlrev_b32 v%d, 4, v0" % ra); e("v_add_u32 v%d, s%d, v%d" % (rq, sM0B, ra)); e("v_add_u32 v%d, s%d, v%d" % (ra, sRM, ra))
    prev = None
    for G in range(16):
        par = G % 2
        ring_wait(G)
        for u in range(4):
            inq, off = ring_slot(4 * G + u)
            e("ds_read_b128 v[%d:%d], v%d offset:%d" % (vKT + 4 * u, vKT + 4 * u + 3, rq if inq else ra, off))
        if prev is not None:
            r = red(*prev)
            for i, x in enumerate(r):
                e(x)
                if i >= 3: g.nop(2)
                elif i == 1: g.nop(1)
        e("s_waitcnt lgkmcnt(0)")
        for u in range(4):
            ring_issue(4 * G + u + RD)
        for x in dots(G, par, True): e(x)
        g.nop(3)
        prev = (G, par)
    red_tail(prev)
    e("s_mov_b32 s%d, 1" % sRING)
    e("s_branch L_softmax")

def ring_pv():
    g.lab("L_pvring")
    e("s_mov_b32 s%d, 0" % sRING)
    VT = [46, 50, 54, 60]
    ra = 44; rq = 45
    e("v_lshlrev_b32 v%d, 4, v0" % ra); e("v_add_u32 v%d, s%d, v%d" % (rq, sM0B, ra)); e("v_add_u32 v%d, s%d, v%d" % (ra, sRM, ra))
    for i in range(8):
        e("v_mov_b32 v%d, 0" % (vACC + i))
    def ands(t):
        b = vA + 2 * (t % 2); T, u = t // 4, t % 4
        e("v_and_b32_dpp v%d, v%d, v%d row_newbcast:%d row_mask:0xf bank_mask:0xf" % (b, vS + T, vM01, 4 * u))
        e("v_and_b32_dpp v%d, v%d, v%d row_newbcast:%d row_mask:0xf bank_mask:0xf" % (b + 1, vS + T, vM23, 4 * u))
    for G in range(16, 32):
        ring_wait(G)
        for u in range(4):
            inq, off = ring_slot(4 * G + u)
            e("ds_read_b128 v[%d:%d], v%d offset:%d" % (VT[u], VT[u] + 3, rq if inq else ra, off))
        t0 = 4 * (G - 16)
        ands(t0)
        e("s_waitcnt lgkmcnt(0)")
        for u in range(4):
            if 4 * G + u + RD < 128:
                ring_issue(4 * G + u + RD)
        for u in range(4):
            t = t0 + u
            if u < 3: ands(t + 1)
            else: g.nop(2)
            b = vA + 2 * (t % 2)
            e("v_mfma_f32_4x4x4_16b_bf16 v[%d:%d], v[%d:%d], v[%d:%d], v[%d:%d]" % (vACC, vACC + 3, b, b + 1, VT[u], VT[u] + 1, vACC, vACC + 3))
            e("v_mfma_f32_4x4x4_16b_bf16 v[%d:%d], v[%d:%d], v[%d:%d], v[%d:%d]" % (vACC + 4, vACC + 7, b, b + 1, VT[u] + 2, VT[u] + 3, vACC + 4, vACC + 7))
    if RQ:
        e("s_mov_b32 s%d, %d" % (sOFF, 48 * 4096))
        for t in range(48, 48 + RQ):
            kload(t)
    e("s_branch L_pvdone")

def att_core():
    g.lab("L_att")
    qaddr(vT + 2)
    fpoll(lambda: e("global_load_dwordx4 v[%d:%d], v%d, s[%d:%d] sc1" % (vQ, vQ + 3, vT + 2, sWS, sWS + 1)), 1, [vQ, vQ + 1, vQ + 2, vQ + 3], vT)
    g.lab("L_qk")
    ts_dyn(8)
    e("v_lshlrev_b32 v%d, 4, v0" % (vT + 3)); e("v_add_u32 v%d, s%d, v%d" % (vT + 3, sM0B, vT + 3))
    order = []
    for j in range(4):
        order += [3 * j, 3 * j + 1, 3 * j + 2, 12 + j]
    def ldsread(j):
        return ["ds_read_b128 v[%d:%d], v%d offset:%d" % (vKT + 4 * u, vKT + 4 * u + 3, vT + 3, LQ + (4 * j + u) * 1024) for u in range(4)]
    def qk(reload):
        for x in ldsread(0): e(x)
        prev = None
        for n, T in enumerate(order):
            par = n % 2
            if T >= 12:
                e("s_waitcnt lgkmcnt(0)")
            main = dots(T, par, T >= 12)
            side = red(*prev) if prev is not None else []
            for x in interleave(main, side, 2): e(x)
            if T >= 12 and T < 15:
                for x in ldsread(T - 12 + 1): e(x)
            if reload:
                if n >= 13: e("s_waitcnt vmcnt(58)")
                for u in range(4):
                    t = 4 * T + u
                    e("s_mov_b32 s%d, 0x%x" % (sOFF, 0x4000000 + t * 4096))
                    if t < 48:
                        e("buffer_load_dwordx4 v[%d:%d], v%d, s[%d:%d], s%d offen nt" % (vK0 + 4 * t, vK0 + 4 * t + 3, vKV, sK, sK + 3, sOFF))
                    else:
                        e("s_add_u32 m0, s%d, %d" % (sM0B, LQ + (t - 48) * 1024))
                        e("s_nop 0")
                        e("buffer_load_dwordx4 v%d, s[%d:%d], s%d offen nt lds" % (vKV, sK, sK + 3, sOFF))
            prev = (T, par)
        red_tail(prev)
    if QKC:
        nqc = g.newlab("L_nqc")
        e("s_cmp_eq_u32 s%d, 1" % sINV); e("s_cbranch_scc0 %s" % nqc)
        e("s_cmp_eq_u32 s%d, 0" % sCLS); e("s_cbranch_scc0 %s" % nqc)
        qk(True)
        e("s_mov_b32 s%d, 0x4000000" % sBO)
        e("s_mov_b32 s%d, 1" % sLKM)
        e("s_branch L_softmax")
        g.lab(nqc)
    qk(False)
    if KEEPV:
        assert RD == 20 and not SN
        nk = g.newlab("L_nkv")
        e("s_cmp_eq_u32 s%d, 2" % sLKM); e("s_cbranch_scc0 %s" % nk)
        e("s_mul_i32 s%d, s%d, 20480" % (sT, sW)); e("s_add_u32 s%d, s%d, %d" % (sT, sT, RING))
        e("v_lshlrev_b32 v%d, 4, v0" % (vT + 2)); e("v_add_u32 v%d, s%d, v%d" % (vT + 2, sT, vT + 2))
        for t in range(44, 64):
            if t == 56: e("s_waitcnt lgkmcnt(0)")
            e("ds_read_b128 v[%d:%d], v%d offset:%d" % (vK0 + 4 * (t - 44), vK0 + 4 * (t - 44) + 3, vT + 2, ((64 + t) % 20) * 1024))
        e("s_branch L_softmax")
        g.lab(nk)
    nl = g.newlab("L_nolk")
    e("s_cmp_eq_u32 s%d, 1" % sINV)
    e("s_cbranch_scc0 %s" % nl)
    e("s_cmp_eq_u32 s%d, 0" % sCLS)
    e("s_cbranch_scc0 %s" % nl)
    e("s_mov_b32 s%d, 0x4000000" % sBO)
    e("s_mov_b32 s%d, 1" % sLKM)
    e("s_branch L_lka")
    g.lab(nl)
    g.lab("L_softmax")
    m = vT; t1 = vT + 2
    e("v_max3_f32 v%d, v%d, v%d, v%d" % (m, vS, vS + 1, vS + 2))
    for i in range(3, 15, 2):
        e("v_max3_f32 v%d, v%d, v%d, v%d" % (m, m, vS + i, vS + i + 1))
    e("v_max_f32 v%d, v%d, v%d" % (m, m, vS + 15))
    g.nop(2)
    e("v_max_f32_dpp v%d, v%d, v%d row_ror:4 row_mask:0xf bank_mask:0xf" % (m, m, m)); g.nop(2)
    e("v_max_f32_dpp v%d, v%d, v%d row_ror:8 row_mask:0xf bank_mask:0xf" % (m, m, m))
    e("v_mov_b32 v%d, v%d" % (t1, m)); g.nop(2)
    e("v_permlane16_swap_b32 v%d, v%d" % (m, t1)); e("v_max_f32 v%d, v%d, v%d" % (m, m, t1))
    e("v_mov_b32 v%d, v%d" % (t1, m)); g.nop(2)
    e("v_permlane32_swap_b32 v%d, v%d" % (m, t1)); e("v_max_f32 v%d, v%d, v%d" % (m, m, t1))
    e("v_mul_f32 v%d, s%d, v%d" % (m, sC, m))
    for i in range(16):
        e("v_fma_f32 v%d, v%d, s%d, -v%d" % (vS + i, vS + i, sC, m))
    for i in range(16):
        e("v_exp_f32 v%d, v%d" % (vS + i, vS + i))
    l = vT + 1
    e("v_add_f32 v%d, v%d, v%d" % (l, vS, vS + 1))
    for i in range(2, 16):
        e("v_add_f32 v%d, v%d, v%d" % (l, l, vS + i))
    for i in range(16):
        e("v_cvt_pk_bf16_f32 v%d, v%d, v%d" % (vS + i, vS + i, vS + i))
    e("v_add_f32_dpp v%d, v%d, v%d row_ror:4 row_mask:0xf bank_mask:0xf" % (l, l, l)); g.nop(2)
    e("v_add_f32_dpp v%d, v%d, v%d row_ror:8 row_mask:0xf bank_mask:0xf" % (l, l, l))
    e("v_mov_b32 v%d, v%d" % (t1, l)); g.nop(2)
    e("v_permlane16_swap_b32 v%d, v%d" % (l, t1)); e("v_add_f32 v%d, v%d, v%d" % (l, l, t1))
    e("v_mov_b32 v%d, v%d" % (t1, l)); g.nop(2)
    e("v_permlane32_swap_b32 v%d, v%d" % (l, t1)); e("v_add_f32 v%d, v%d, v%d" % (l, l, t1))
    e("s_cmp_eq_u32 s%d, 1" % sRING)
    e("s_cbranch_scc1 L_pvring")
    if KEEPV:
        e("s_cmp_eq_u32 s%d, 2" % sLKM)
        e("s_cbranch_scc1 L_pvn")
    e("s_cmp_eq_u32 s%d, 1" % sLKM)
    e("s_cbranch_scc0 L_pvstd")
    if not EARLY1:
        e("s_cmp_eq_u32 s%d, 1" % sINV)
        e("s_cbranch_scc1 L_pvc")
    g.lab("L_pvstd")
    nwl = g.newlab("L_nowl")
    e("s_cmp_eq_u32 s%d, 1" % sLAX)
    e("s_cbranch_scc0 %s" % nwl)
    w2l = g.newlab("L_w2l"); w3l = g.newlab("L_w3l")
    e("s_cmp_eq_u32 s%d, 2" % sROLE); e("s_cbranch_scc1 %s" % w2l)
    e("s_cmp_eq_u32 s%d, 3" % sROLE); e("s_cbranch_scc1 %s" % w3l)
    if not OPT.get("nopvw"):
        e("s_branch L_pvw")
    e("s_lshl_b32 s44, s%d, 9" % sKS)
    e("s_lshl_b32 s45, s%d, 7" % sGRP)
    gemv64_wload(16, 1280, 44, 45, vT=48)
    e("s_branch %s" % nwl)
    g.lab(w2l)
    gemv64_wload(20, 3456, None, sGRP, vT=48)
    e("s_branch %s" % nwl)
    g.lab(w3l)
    s3_wload(vT=48)
    g.lab(nwl)
    e("s_cmp_eq_u32 s%d, 1" % sLAX)
    e("s_cselect_b64 vcc, -1, 0")
    e("s_mov_b32 s%d, 0" % sLAX)
    for i in range(8):
        e("v_mov_b32 v%d, 0" % (vACC + i))
    def ands(t):
        b = vA + 2 * (t % 3); T, u = t // 4, t % 4
        e("v_and_b32_dpp v%d, v%d, v%d row_newbcast:%d row_mask:0xf bank_mask:0xf" % (b, vS + T, vM01, 4 * u))
        e("v_and_b32_dpp v%d, v%d, v%d row_newbcast:%d row_mask:0xf bank_mask:0xf" % (b + 1, vS + T, vM23, 4 * u))
    e("s_bitcmp1_b32 s%d, 0" % sINV)
    ands(0)
    for t in range(64):
        if t + 1 < 64:
            ands(t + 1)
        else:
            g.nop(2)
        if t % 4 == 0:
            lab = g.newlab("L_nw")
            e("s_cbranch_scc1 %s" % lab)
            if 60 - t + NWMIN < 63:
                e("s_waitcnt vmcnt(%d)" % (60 - t + NWMIN))
            e("s_cbranch_vccnz %s" % lab)
            e("s_waitcnt vmcnt(%d)" % (60 - t))
            g.lab(lab)
        b = vA + 2 * (t % 3)
        e("v_mfma_f32_4x4x4_16b_bf16 v[%d:%d], v[%d:%d], a[%d:%d], v[%d:%d]" % (vACC, vACC + 3, b, b + 1, 4 * t, 4 * t + 1, vACC, vACC + 3))
        e("v_mfma_f32_4x4x4_16b_bf16 v[%d:%d], v[%d:%d], a[%d:%d], v[%d:%d]" % (vACC + 4, vACC + 7, b, b + 1, 4 * t + 2, 4 * t + 3, vACC + 4, vACC + 7))
    g.lab("L_pvdone")
    g.nop(5)
    for i in range(4):
        e("v_permlane32_swap_b32 v%d, v%d" % (vACC + i, vACC + 4 + i))
    for i in range(4):
        e("v_add_f32 v%d, v%d, v%d" % (vACC + i, vACC + i, vACC + 4 + i))
    g.nop(1)
    e("v_permlane16_swap_b32 v%d, v%d" % (vACC, vACC + 1))
    e("v_permlane16_swap_b32 v%d, v%d" % (vACC + 2, vACC + 3))
    e("v_add_f32 v%d, v%d, v%d" % (vACC, vACC, vACC + 1))
    e("v_add_f32 v%d, v%d, v%d" % (vACC + 2, vACC + 2, vACC + 3))
    e("s_mul_i32 s%d, s%d, %d" % (sT, sPAR, COMB_ST)); e("s_add_u32 s%d, s%d, %d" % (sT, sT, COMB))
    e("s_xor_b32 s%d, s%d, 1" % (sPAR, sPAR))
    e("s_lshl_b32 s%d, s%d, 9" % (sT + 1, sW)); e("s_add_u32 s%d, s%d, s%d" % (sT + 1, sT + 1, sT))
    e("v_and_b32 v%d, 15, v0" % t1); e("v_lshlrev_b32 v%d, 5, v%d" % (t1, t1))
    e("v_lshrrev_b32 v%d, 5, v0" % (vT + 3)); e("v_lshl_add_u32 v%d, v%d, 4, v%d" % (t1, vT + 3, t1))
    e("v_bfe_u32 v%d, v0, 4, 1" % (vT + 3)); e("v_lshl_add_u32 v%d, v%d, 2, v%d" % (t1, vT + 3, t1))
    e("v_add_u32 v%d, s%d, v%d" % (t1, sT + 1, t1))
    e("ds_write2_b32 v%d, v%d, v%d offset0:0 offset1:2" % (t1, vACC, vACC + 2))
    e("s_lshl_b32 s%d, s%d, 3" % (sT + 1, sW)); e("s_add_u32 s%d, s%d, s%d" % (sT + 1, sT + 1, sT))
    e("v_mov_b32 v%d, s%d" % (t1, sT + 1))
    e("v_mov_b32 v%d, v%d" % (vT + 4, m)); e("v_mov_b32 v%d, v%d" % (vT + 5, l))
    e("s_mov_b64 exec, 1")
    e("ds_write_b64 v%d, v[%d:%d] offset:2048" % (t1, vT + 4, vT + 5))
    e("s_mov_b64 exec, -1")
    e("s_waitcnt lgkmcnt(0)")
    e("s_barrier")
    nw = g.newlab("L_npub")
    e("s_cmp_lg_u32 s%d, 0" % sW)
    e("s_cbranch_scc1 %s" % nw)
    e("v_and_b32 v%d, 31, v0" % t1); e("v_lshlrev_b32 v%d, 4, v%d" % (t1, t1)); e("v_add_u32 v%d, s%d, v%d" % (t1, sT, t1))
    for w in range(4):
        e("ds_read_b128 v[%d:%d], v%d offset:%d" % (16 + 4 * w, 19 + 4 * w, t1, w * 512))
    e("v_mov_b32 v%d, s%d" % (vT + 3, sT))
    e("ds_read_b128 v[40:43], v%d offset:2048" % (vT + 3))
    e("ds_read_b128 v[44:47], v%d offset:2064" % (vT + 3))
    e("s_waitcnt lgkmcnt(0)")
    e("v_max_f32 v32, v40, v42"); e("v_max3_f32 v32, v32, v44, v46")
    for w, r in enumerate((40, 42, 44, 46)):
        e("v_sub_f32 v%d, v%d, v32" % (r, r))
    for r in (40, 42, 44, 46):
        e("v_exp_f32 v%d, v%d" % (r, r))
    e("s_nop 0")
    for d in range(4): e("v_mul_f32 v%d, v%d, v40" % (36 + d, 16 + d))
    e("v_mul_f32 v33, v41, v40")
    for w, r in ((1, 42), (2, 44), (3, 46)):
        for d in range(4): e("v_fmac_f32 v%d, v%d, v%d" % (36 + d, 16 + 4 * w + d, r))
        e("v_fmac_f32 v33, v%d, v%d" % (r + 1, r))
    e("s_mul_i32 s%d, s%d, %d" % (sT, sINV, OA_ST))
    e("s_lshl_b32 s%d, s%d, 12" % (sT + 1, sH)); e("s_add_u32 s%d, s%d, s%d" % (sT, sT, sT + 1))
    e("s_lshl_b32 s%d, s%d, 9" % (sT + 1, sS)); e("s_add_u32 s%d, s%d, s%d" % (sT, sT, sT + 1))
    e("v_lshlrev_b32 v%d, 4, v0" % t1); e("v_add_u32 v%d, s%d, v%d" % (t1, sT, t1))
    e("s_mov_b32 exec_hi, 0")
    e("global_store_dwordx4 v%d, v[36:39], s[%d:%d] sc1" % (t1, sWS, sWS + 1))
    e("s_mov_b64 exec, -1")
    e("s_mul_i32 s%d, s%d, %d" % (sT, sINV, ML_ST)); e("s_add_u32 s%d, s%d, %d" % (sT, sT, WS_ML))
    e("s_lshl_b32 s%d, s%d, 6" % (sT + 1, sH)); e("s_add_u32 s%d, s%d, s%d" % (sT, sT, sT + 1))
    e("s_and_b32 s%d, s%d, 1" % (sT + 1, sS)); e("s_lshl_b32 s%d, s%d, 5" % (sT + 1, sT + 1)); e("s_add_u32 s%d, s%d, s%d" % (sT, sT, sT + 1))
    e("s_lshr_b32 s%d, s%d, 1" % (sT + 1, sS)); e("s_lshl_b32 s%d, s%d, 3" % (sT + 1, sT + 1)); e("s_add_u32 s%d, s%d, s%d" % (sT, sT, sT + 1))
    e("v_mov_b32 v%d, s%d" % (t1, sT))
    e("s_mov_b64 exec, 1")
    e("global_store_dwordx2 v%d, v[32:33], s[%d:%d] sc1" % (t1, sWS, sWS + 1))
    e("s_mov_b64 exec, -1")
    g.lab(nw)
    ts_dyn(16)
    e("s_cmp_eq_u32 s%d, 0" % sCLS)
    e("s_cbranch_scc0 L_disp")
    e("s_cmp_eq_u32 s%d, 1" % sINV)
    e("s_cbranch_scc1 L_mid2")
    if (not OPT.get("wearly")):
        e("s_cmp_eq_u32 s%d, 0" % sINV)
        e("s_cbranch_scc1 L_wload")
    e("s_branch L_disp")

def s1_block():
    g.lab("L_s1")
    nwo = g.newlab("L_nwo")
    e("s_cmp_eq_u32 s%d, 2" % sCLS); e("s_cbranch_scc0 %s" % nwo)
    e("s_lshl_b32 s44, s%d, 9" % sKS)
    e("s_lshl_b32 s45, s%d, 7" % sGRP)
    gemv64_wload(16, 1280, 44, 45, vT=48)
    g.lab(nwo)
    s1_consts()
    e("s_mul_i32 s%d, s%d, %d" % (sT, sINV, OA_ST)); e("v_add_u32 v50, s%d, v%d" % (sT, vRA))
    e("s_mul_i32 s%d, s%d, %d" % (sT, sINV, ML_ST)); e("s_add_u32 s%d, s%d, %d" % (sT, sT, WS_ML)); e("v_add_u32 v51, s%d, v%d" % (sT, vRB))
    def issue():
        for i in range(4):
            e("global_load_dwordx4 v[%d:%d], v50, s[%d:%d] offset:%d sc1" % (16 + 4 * i, 19 + 4 * i, sWS, sWS + 1, i * 1024))
        e("global_load_dwordx4 v[32:35], v51, s[%d:%d] sc1" % (sWS, sWS + 1))
        e("global_load_dwordx4 v[36:39], v51, s[%d:%d] offset:16 sc1" % (sWS, sWS + 1))
    poll(issue, list(range(16, 40)), vT)
    ts_dyn(8)
    if OPT.get("gate"):
        ng = g.newlab("L_nogo")
        e("s_cmp_eq_u32 s%d, 0" % sINV); e("s_cbranch_scc0 %s" % ng)
        e("s_cmp_eq_u32 s%d, 0" % sGRP); e("s_cbranch_scc0 %s" % ng)
        e("s_lshl_b32 s%d, s%d, 2" % (sT, sKS)); e("s_add_u32 s%d, s%d, s%d" % (sT, sT, sW)); e("s_lshl_b32 s%d, s%d, 4" % (sT, sT))
        e("s_add_u32 s%d, s%d, %d" % (sT, sT, WS_GO))
        e("v_mov_b32 v48, s%d" % sT)
        for i in range(4): e("v_mov_b32 v%d, 0" % (52 + i))
        e("s_mov_b64 exec, 1")
        e("global_store_dwordx4 v48, v[52:55], s[%d:%d] sc1" % (sWS, sWS + 1))
        e("s_mov_b64 exec, -1")
        g.lab(ng)
    e("v_max_f32 v40, v32, v34"); e("v_max3_f32 v40, v40, v36, v38")
    e("v_mov_b32 v41, v40"); g.nop(2)
    e("v_permlane32_swap_b32 v40, v41"); e("v_max_f32 v40, v40, v41")
    for r in (32, 34, 36, 38): e("v_sub_f32 v%d, v%d, v40" % (r, r))
    for r in (32, 34, 36, 38): e("v_exp_f32 v%d, v%d" % (r, r))
    e("s_nop 0")
    e("v_mul_f32 v42, v33, v32")
    for r in (34, 36, 38): e("v_fmac_f32 v42, v%d, v%d" % (r + 1, r))
    for d in range(4): e("v_mul_f32 v%d, v%d, v32" % (44 + d, 16 + d))
    for i, r in ((1, 34), (2, 36), (3, 38)):
        for d in range(4): e("v_fmac_f32 v%d, v%d, v%d" % (44 + d, 16 + 4 * i + d, r))
    e("v_mov_b32 v43, v42"); g.nop(2)
    e("v_permlane32_swap_b32 v42, v43")
    e("v_permlane32_swap_b32 v44, v45")
    e("v_permlane32_swap_b32 v46, v47")
    e("v_add_f32 v42, v42, v43"); e("v_add_f32 v44, v44, v45"); e("v_add_f32 v46, v46, v47")
    e("v_rcp_f32 v42, v42"); e("s_nop 0")
    e("v_mul_f32 v44, v44, v42"); e("v_mul_f32 v46, v46, v42")
    e("v_cvt_pk_bf16_f32 v44, v44, v44"); e("v_cvt_pk_bf16_f32 v46, v46, v46")
    e("ds_write2_b32 v%d, v44, v46 offset0:0 offset1:2" % vPW)
    e("s_waitcnt lgkmcnt(0)")
    gemv64(16)
    e("s_waitcnt lgkmcnt(0)")
    e("s_barrier")
    ts_dyn(16)
    lab = g.newlab("L_s1w")
    e("s_cmp_lg_u32 s%d, 0" % sW); e("s_cbranch_scc1 %s" % lab)
    final_col_sum(30, False)
    e("s_mul_i32 s%d, s%d, %d" % (sT, sINV, PB_ST)); e("s_add_u32 s%d, s%d, %d" % (sT, sT, WS_PB))
    e("s_mul_i32 s%d, s%d, 2560" % (sT + 1, sKS)); e("s_add_u32 s%d, s%d, s%d" % (sT, sT, sT + 1))
    e("s_lshl_b32 s%d, s%d, 8" % (sT + 1, sGRP)); e("s_add_u32 s%d, s%d, s%d" % (sT, sT, sT + 1))
    e("v_add_u32 v%d, s%d, v%d" % (vT, sT, vT))
    for q in range(4):
        e("v_mov_b32_dpp v%d, v30 quad_perm:[%d,%d,%d,%d] row_mask:0xf bank_mask:0xf" % (32 + q, q, q, q, q))
    e("s_mov_b32 exec_lo, 0x11111111"); e("s_mov_b32 exec_hi, 0x11111111")
    e("global_store_dwordx4 v%d, v[32:35], s[%d:%d] sc1" % (vT, sWS, sWS + 1))
    e("s_mov_b64 exec, -1")
    g.lab(lab)
    nr = g.newlab("L_s1nr")
    e("s_cmp_eq_u32 s%d, 1" % sHAS4); e("s_cbranch_scc0 %s" % nr)
    e("s_cmp_lt_u32 s%d, %d" % (sINV, 3 if SN else 2)); e("s_cbranch_scc0 %s" % nr)
    e("s_lshl_b32 s45, s%d, 7" % sJ)
    gemv64_wload(20, 8192, None, 45, vT=16, srd=sWQ)
    g.lab(nr)
    e("s_barrier")
    e("s_branch L_disp")

def s2_block():
    g.lab("L_s2")
    nc = g.newlab("L_s2nc")
    e("s_cmp_lg_u32 s%d, 0" % sINV); e("s_cbranch_scc1 %s" % nc)
    ts(24)
    e("s_waitcnt vmcnt(0)")
    ts(25)
    colsum(20)
    ts(26)
    g.lab(nc)
    e("s_mul_i32 s%d, s%d, %d" % (sT, sINV, PB_ST)); e("s_add_u32 s%d, s%d, %d" % (sT, sT, WS_PB))
    e("v_add_u32 v52, s%d, v%d" % (sT, vRA))
    for k in range(1, 4): e("v_add_u32 v%d, %d, v52" % (52 + k, 5120 * k))
    odd = g.newlab("L_s2odd"); got = g.newlab("L_s2got")
    e("s_and_b32 s%d, s%d, 1" % (sT, sINV)); e("s_cmp_eq_u32 s%d, 1" % sT); e("s_cbranch_scc1 %s" % odd)
    e("s_lshr_b32 s%d, s%d, 1" % (sT, sINV)); e("s_mul_i32 s%d, s%d, 1280" % (sT, sT))
    e("v_add_u32 v50, s%d, v%d" % (sT, vRB))
    e("global_load_dwordx2 v[48:49], v50, s[%d:%d]" % (sX, sX + 1))
    e("s_branch %s" % got)
    g.lab(odd)
    e("s_sub_u32 s%d, s%d, 1" % (sT, sINV)); e("s_mul_i32 s%d, s%d, %d" % (sT, sT, X2_ST)); e("s_add_u32 s%d, s%d, %d" % (sT, sT, WS_X2))
    x2_replica()
    e("v_add_u32 v50, s%d, v%d" % (sT, vRB))
    poll(lambda: e("global_load_dwordx2 v[48:49], v50, s[%d:%d] sc1" % (sWS, sWS + 1)), [48, 49], vT)
    g.lab(got)
    def issue():
        for ks in range(8):
            e("global_load_dwordx4 v[%d:%d], v%d, s[%d:%d] offset:%d sc1" % (16 + 4 * ks, 19 + 4 * ks, 52 + ks // 2, sWS, sWS + 1, (ks % 2) * 2560))
    poll(issue, list(range(16, 48)), vT)
    ts_dyn(8)
    for d in range(4):
        e("v_add_f32 v%d, v%d, v%d" % (16 + d, 16 + d, 20 + d)); e("v_add_f32 v%d, v%d, v%d" % (24 + d, 24 + d, 28 + d))
        e("v_add_f32 v%d, v%d, v%d" % (32 + d, 32 + d, 36 + d)); e("v_add_f32 v%d, v%d, v%d" % (40 + d, 40 + d, 44 + d))
    for d in range(4):
        e("v_add_f32 v%d, v%d, v%d" % (16 + d, 16 + d, 24 + d)); e("v_add_f32 v%d, v%d, v%d" % (32 + d, 32 + d, 40 + d))
    for d in range(4):
        e("v_add_f32 v%d, v%d, v%d" % (16 + d, 16 + d, 32 + d))
    for d in range(4): round_bf16(16 + d)
    e("v_lshlrev_b32 v20, 16, v48"); e("v_and_b32 v21, 0xffff0000, v48")
    e("v_lshlrev_b32 v22, 16, v49"); e("v_and_b32 v23, 0xffff0000, v49")
    for d in range(4): e("v_add_f32 v%d, v%d, v%d" % (16 + d, 16 + d, 20 + d))
    for d in range(4): round_bf16(16 + d)
    nx = g.newlab("L_s2nx")
    e("s_cmp_lg_u32 s%d, 0" % sJ); e("s_cbranch_scc1 %s" % nx)
    e("v_cvt_pk_bf16_f32 v20, v16, v17"); e("v_cvt_pk_bf16_f32 v21, v18, v19")
    e("s_mul_i32 s%d, s%d, %d" % (sT, sINV, X1_ST)); e("s_add_u32 s%d, s%d, %d" % (sT, sT, WS_X1))
    e("v_add_u32 v50, s%d, v%d" % (sT, vRB))
    e("global_store_dwordx2 v50, v[20:21], s[%d:%d] sc1" % (sWS, sWS + 1))
    g.lab(nx)
    x_to_p_and_stats(16)
    gemv64(20)
    e("s_waitcnt lgkmcnt(0)")
    e("s_barrier")
    ts_dyn(16)
    lab = g.newlab("L_s2w")
    e("s_cmp_lg_u32 s%d, 0" % sW); e("s_cbranch_scc1 %s" % lab)
    final_col_sum(30, True)
    round_bf16(30)
    e("v_mul_f32 v31, 0xbfb8aa3b, v30")
    e("v_exp_f32 v31, v31"); e("s_nop 0")
    e("v_add_f32 v31, 1.0, v31")
    e("v_rcp_f32 v31, v31"); e("s_nop 0")
    e("v_mul_f32 v30, v30, v31")
    pack8(30, 32)
    e("s_mul_i32 s%d, s%d, %d" % (sT, sINV, H_ST)); e("s_add_u32 s%d, s%d, %d" % (sT, sT, WS_H))
    e("s_lshl_b32 s%d, s%d, 7" % (sT + 1, sJ)); e("s_add_u32 s%d, s%d, s%d" % (sT, sT, sT + 1))
    e("v_lshlrev_b32 v%d, 1, v0" % vT); e("v_add_u32 v%d, s%d, v%d" % (vT, sT, vT))
    exec8()
    e("global_store_dwordx4 v%d, v[32:35], s[%d:%d] sc1" % (vT, sWS, sWS + 1))
    e("s_mov_b64 exec, -1")
    g.lab(lab)
    e("s_barrier")
    e("s_branch L_disp")

def s3_block():
    g.lab("L_s3")
    e("s_mul_i32 s%d, s%d, %d" % (sT, sINV, H_ST)); e("s_add_u32 s%d, s%d, %d" % (sT, sT, WS_H))
    e("v_add_u32 v50, s%d, v%d" % (sT, vRA))
    e("s_mul_i32 s%d, s%d, %d" % (sT, sINV, X1_ST)); e("s_add_u32 s%d, s%d, %d" % (sT, sT, WS_X1))
    e("v_add_u32 v51, s%d, v%d" % (sT, vRB))
    def issue():
        e("global_load_dwordx4 v[4:7], v50, s[%d:%d] sc1" % (sWS, sWS + 1))
        e("global_load_dword v15, v51, s[%d:%d] sc1" % (sWS, sWS + 1))
    fpoll(issue, 2, [4, 5, 6, 7, 15], vT)
    ts_dyn(8)
    for i in range(4):
        e("v_and_b32 v%d, 0xffff, v%d" % (28, 4 + i))
        e("v_lshl_or_b32 v%d, v%d, 16, v%d" % (20 + 2 * i, 28, 28))
        e("v_lshrrev_b32 v%d, 16, v%d" % (28, 4 + i))
        e("v_lshl_or_b32 v%d, v%d, 16, v%d" % (21 + 2 * i, 28, 28))
    e("ds_write_b128 v%d, v[20:23]" % vPW)
    e("ds_write_b128 v%d, v[24:27] offset:16" % vPW)
    e("s_waitcnt lgkmcnt(0)")
    g.lg = []
    NI = 28; NB = 6
    for i in range(NB):
        g.lds("ds_read_b64 v[%d:%d], v%d offset:%d" % (52 + 2 * i, 53 + 2 * i, vRW, i * 512), "W%d" % i)
    for jj in range(7):
        g.lds("ds_read_b128 v[%d:%d], v%d offset:%d" % (16 + 4 * jj, 19 + 4 * jj, vRP, jj * 256), "P%d" % jj)
    for i in range(4): e("v_mov_b32 v%d, 0" % (44 + i))
    def ands(i):
        b = 48 + 2 * (i % 2)
        if i % 4 == 0: g.lwait("P%d" % (i // 4))
        e("v_and_b32 v%d, v%d, v%d" % (b, 16 + i, vM01)); e("v_and_b32 v%d, v%d, v%d" % (b + 1, 16 + i, vM23))
    ands(0)
    for i in range(NI):
        if i + 1 < NI: ands(i + 1)
        else: g.nop(2)
        g.lwait("W%d" % i)
        if i == 0: g.nop(2)
        b = 48 + 2 * (i % 2); wb = 52 + 2 * (i % NB)
        e("v_mfma_f32_4x4x4_16b_bf16 v[44:47], v[%d:%d], v[%d:%d], v[44:47]" % (b, b + 1, wb, wb + 1))
        if i + NB < NI:
            g.lds("ds_read_b64 v[%d:%d], v%d offset:%d" % (wb, wb + 1, vRW, (i + NB) * 512), "W%d" % (i + NB))
    g.lg = []
    g.nop(5)
    e("v_permlane32_swap_b32 v44, v46"); e("v_permlane32_swap_b32 v45, v47")
    e("v_add_f32 v44, v44, v46"); e("v_add_f32 v45, v45, v47")
    g.nop(2)
    e("v_permlane16_swap_b32 v44, v45"); e("v_add_f32 v44, v44, v45")
    g.nop(2)
    e("v_add_f32_dpp v44, v44, v44 row_ror:8 row_mask:0xf bank_mask:0xf"); g.nop(2)
    e("v_add_f32_dpp v44, v44, v44 row_ror:4 row_mask:0xf bank_mask:0xf")
    e("ds_write_b32 v%d, v44" % vRR)
    e("s_waitcnt lgkmcnt(0)")
    e("s_barrier")
    ts_dyn(16)
    lab = g.newlab("L_s3w")
    e("s_cmp_lg_u32 s%d, 0" % sW); e("s_cbranch_scc1 %s" % lab)
    e("v_and_b32 v%d, 15, v0" % vT); e("v_lshlrev_b32 v%d, 2, v%d" % (vT, vT)); e("v_add_u32 v%d, %d, v%d" % (vT, RED, vT))
    e("ds_read2_b32 v[16:17], v%d offset0:0 offset1:16" % vT)
    e("ds_read2_b32 v[18:19], v%d offset0:32 offset1:48" % vT)
    e("s_waitcnt lgkmcnt(0)")
    e("v_add_f32 v16, v16, v17"); e("v_add_f32 v18, v18, v19"); e("v_add_f32 v30, v16, v18")
    round_bf16(30)
    e("v_lshlrev_b32 v16, 16, v15"); e("v_and_b32 v17, 0xffff0000, v15")
    e("v_and_b32 v18, 1, v0"); e("v_cmp_eq_u32 vcc, 1, v18"); e("s_nop 1")
    e("v_cndmask_b32 v16, v16, v17, vcc")
    e("v_add_f32 v30, v30, v16")
    pack8(30, 32)
    odd = g.newlab("L_s3odd"); fin = g.newlab("L_s3fin")
    e("s_mov_b32 exec_lo, 0x0101"); e("s_mov_b32 exec_hi, 0")
    e("s_and_b32 s%d, s%d, 1" % (sT, sINV)); e("s_cmp_eq_u32 s%d, 1" % sT); e("s_cbranch_scc1 %s" % odd)
    e("s_mul_i32 s%d, s%d, %d" % (sT, sINV, X2_ST)); e("s_add_u32 s%d, s%d, %d" % (sT, sT, WS_X2))
    e("v_add_u32 v%d, s%d, v%d" % (vT, sT, vRB))
    e("s_mov_b64 exec, -1")
    e("v_lshrrev_b32 v%d, 4, v0" % (vT + 1)); e("v_mul_u32_u24 v%d, %d, v%d" % (vT + 1, X2R, vT + 1)); e("v_add3_u32 v%d, v%d, s%d, v%d" % (vT, vRB, sT, vT + 1))
    exec8()
    e("global_store_dwordx4 v%d, v[32:35], s[%d:%d] sc1" % (vT, sWS, sWS + 1))
    e("s_branch %s" % fin)
    g.lab(odd)
    e("s_lshr_b32 s%d, s%d, 1" % (sT, sINV)); e("s_mul_i32 s%d, s%d, 1280" % (sT, sT))
    e("v_add_u32 v%d, s%d, v%d" % (vT, sT, vRB))
    e("global_store_dwordx4 v%d, v[32:35], s[%d:%d]" % (vT, sOUT, sOUT + 1))
    g.lab(fin)
    e("s_mov_b64 exec, -1")
    g.lab(lab)
    e("s_barrier")
    e("s_branch L_disp")

def wload_block():
    g.lab("L_wload")
    n2 = g.newlab("L_wl")
    e("s_cmp_eq_u32 s%d, 2" % sROLE); e("s_cbranch_scc0 %s" % n2)
    gemv64_wload(20, 3456, None, sGRP, vT=16)
    e("s_branch L_disp")
    g.lab(n2)
    e("s_cmp_eq_u32 s%d, 3" % sROLE); e("s_cbranch_scc0 L_disp")
    s3_wload(vT=16)
    e("s_branch L_disp")

e("s_mov_b32 s%d, 0" % sLKM)
if not ROT: e("s_mov_b32 s%d, 0" % sBO)
e("s_mov_b32 s%d, 0" % sPH); e("s_mov_b32 s%d, 0" % sINV); e("s_mov_b32 s%d, 0" % sTQ)
if OPT.get("tsstart"): ts(28)
e("s_waitcnt vmcnt(%d)" % (KPRE - KP1))
signal_cleared()
ts(1)
q_initial()
ts(4)
if not ROT: e("s_mov_b32 s%d, %d" % (sOFF, KPRE * 4096))
e("s_branch L_lka_pre")
s4_block()
lka()
lkbv()
mid2()
if not EARLY1: pv_c()
pv_w()
if KEEPV: pv_n()
ring_k()
ring_pv()
att_core()
s1_block(); s2_block(); s3_block()
wload_block()

g.lab("L_lk")
e("s_lshl_b32 s%d, s%d, 7" % (sT, sH)); e("s_add_u32 s%d, s%d, %d" % (sT, sT, WS_FL))
e("v_lshlrev_b32 v%d, 4, v0" % (vT + 2)); e("v_add_u32 v%d, s%d, v%d" % (vT + 2, sT, vT + 2))
e("s_cmp_lt_u32 s%d, %d" % (sH, NSET0 - 128))
e("s_cselect_b32 s%d, 31, 15" % (sT + 2))
e("s_mov_b32 exec_lo, s%d" % (sT + 2)); e("s_mov_b32 exec_hi, 0")
if not OPT.get("noflag"):
    poll(lambda: e("global_load_dword v%d, v%d, s[%d:%d] sc1" % (vT + 3, vT + 2, sWS, sWS + 1)), [vT + 3], vT)
e("s_mov_b64 exec, -1")
e("s_mov_b32 s%d, 0x4000000" % sBO)
e("s_mov_b32 s%d, 2" % sLKM)
if OPT["ts"]:
    e("s_memrealtime s[%d:%d]" % (sCLK, sCLK + 1)); e("s_waitcnt lgkmcnt(0)"); e("s_mov_b32 s%d, s%d" % (sTS + 29, sCLK))
e("s_branch L_lka")

g.lab("L_disp")
ts_dyn(24) if False else None
e("s_and_b32 s%d, s%d, 15" % (sT, sPROG))
e("s_bfe_u32 s%d, s%d, 0x40004" % (sINV, sPROG))
e("s_lshr_b64 s[%d:%d], s[%d:%d], 8" % (sPROG, sPROG + 1, sPROG, sPROG + 1))
if OPT["ts"]:
    e("s_lshl_b32 s%d, s%d, 2" % (sT + 1, sINV))
    e("s_lshr_b32 s%d, 0x6320, s%d" % (sT + 2, sT + 1)); e("s_lshr_b32 s%d, 0x7451, s%d" % (sT + 3, sT + 1))
    e("s_cmp_eq_u32 s%d, %d" % (sT, OP_ATT)); e("s_cselect_b32 s%d, s%d, s%d" % (sPH, sT + 2, sT + 3))
    e("s_cmp_eq_u32 s%d, %d" % (sT, OP_RING)); e("s_cselect_b32 s%d, s%d, s%d" % (sPH, sT + 2, sPH))
    e("s_and_b32 s%d, s%d, 15" % (sPH, sPH))
    e("s_cmp_eq_u32 s%d, %d" % (sT, OP_S4)); e("s_cselect_b32 s%d, 15, s%d" % (sPH, sPH))
for op, lab in ((OP_ATT, "L_att"), (OP_S1, "L_s1"), (OP_S2, "L_s2"), (OP_S3, "L_s3"), (OP_S4, "L_s4"), (OP_RING, "L_ring"), (OP_LK, "L_lk")):
    e("s_cmp_eq_u32 s%d, %d" % (sT, op)); e("s_cbranch_scc1 %s" % lab)
g.lab("L_fin")
if OPT["ts"]:
    lab = g.newlab("L_nots")
    e("s_cmp_lg_u32 s%d, 0" % sW); e("s_cbranch_scc1 %s" % lab)
    e("s_lshl_b32 s%d, s2, 7" % sT); e("s_add_u32 s%d, s%d, %d" % (sT, sT, WS_TS))
    e("v_mov_b32 v%d, s%d" % (vT, sT))
    e("s_mov_b64 exec, 1")
    for i in range(32):
        e("v_mov_b32 v%d, s%d" % (vT + 1, sTS + i))
        e("global_store_dword v%d, v%d, s[%d:%d] offset:%d" % (vT, vT + 1, sWS, sWS + 1, 4 * i))
        e("s_nop 1")
    e("s_mov_b64 exec, -1")
    g.lab(lab)
if OPT.get("dts"):
    lab = g.newlab("L_nodts")
    e("s_memrealtime s[%d:%d]" % (sCLK, sCLK + 1))
    e("s_waitcnt lgkmcnt(0)")
    e("s_cmp_lg_u32 s%d, 0" % sW); e("s_cbranch_scc1 %s" % lab)
    e("v_mov_b32 v%d, 0" % vT)
    e("s_mov_b64 exec, 1")
    e("s_not_b32 s%d, s%d" % (sT, sTS))
    lst = [sT, sTS + 0, sTS + 1, sTS + 16, sTS + 8 + 2, sTS + 16 + 2, sTS + 16 + 3, sTS + 16 + 6, sTS + 16+1, sTS + 16 + 4, sTS + 16 + 7, sCLK]
    for i, r in enumerate(lst):
        e("v_mov_b32 v%d, s%d" % (vT + 1, r))
        e("global_atomic_umax v%d, v%d, s[%d:%d] offset:%d sc1" % (vT, vT + 1, sDBG, sDBG + 1, 4 + 4 * i))
        e("s_nop 1")
    e("s_mov_b64 exec, -1")
    g.lab(lab)
g.lab("L_end")
e("s_endpgm")
e('.section .rodata,"a"')
e(".p2align 6")
e(".amdhsa_kernel %s" % KN)
e("  .amdhsa_next_free_vgpr 512")
e("  .amdhsa_next_free_sgpr 102")
e("  .amdhsa_accum_offset 256")
e("  .amdhsa_group_segment_fixed_size 0")
e("  .amdhsa_kernarg_size 88")
e("  .amdhsa_user_sgpr_count 2")
e("  .amdhsa_user_sgpr_kernarg_segment_ptr 1")
e("  .amdhsa_system_sgpr_workgroup_id_x 1")
e(".end_amdhsa_kernel")
open(sys.argv[1], "w").write(g.text())
```

```python
import sys
from gl import *

OPT = dict(ts=False, dbgq=False)
for a in sys.argv[2:]:
    k, _, v = a.partition("=")
    OPT[k] = (int(v) if v else True)

WS_OA = 0x0;      OA_ST = 0x20000
WS_ML = 0x80000;  ML_ST = 0x800
WS_PB = 0x82000;  PB_ST = 0x5000
WS_H  = 0x96000;  H_ST  = 0x1000
WS_X1 = 0x9A000;  X1_ST = 0x800
WS_X2 = 0xA8000;  X2_ST = 0x800;  X2R = 0x2000
WS_Q  = 0xC0000;  Q_ST  = 0x2000
WS_QP = 0xD0000;  QP_B = 0x20000
WS_FL = 0xA0000
WS_GO = 0xA1000
WS_TS = 0x180000
LQ = 0
LP = 65536
LM = 147456
COMB = LM;            COMB_ST = 0x840
PD   = LM + 0x1100
RED  = LM + 0x1C00
ST   = LM + 0x2000
CS   = LM + 0x2100
Q2S  = LM + 0x2400
PD3  = LP + 57344
SPIN = int(OPT.get("spin", 200000))
KPRE = int(OPT.get("kpre", 32))
FLAGPOS = int(OPT.get("flagpos", 63))
WNT = "nt " if OPT.get("wnt") else ""
QKC = not OPT.get("noqkc")
KEEPV = not OPT.get("nokeepv")
EARLY1 = OPT.get("early1")
NWMIN = 14

R4_N = 64
R1_0, R1_N = 0, 80
R2_0, R2_N = 80, 27
R3_0, R3_N = 107, 40
NSET0 = 147
RING = LP

sW = 3
sK, sV, sWT = 4, 8, 12
sWS, sDBG, sOUT, sX = 16, 18, 20, 22
sH, sS, sPH, sINV, sROLE, sJ = 24, 25, 26, 27, 28, 29
sOFF, sSPIN = 30, 31
sT = 32
sC, sONE = 48, 49
sTQ, sLAX = 50, 51
sKS, sGRP = 52, 53
sM0B = 54
sBO = 55
sVO = 56
sLKM = 57
sHAS4, sCLS, sPAR, sRING = 58, 59, 62, 63
sWQ = 96
sPROG = 100
ROT = None
sMSK = sPAR
def wrap():
    if ROT: e("s_and_b32 s%d, s%d, s%d" % (sOFF, sOFF, sMSK))
MQK = OPT.get("mqk")
BC = 1 if MQK else 4
sCLK = 60
sTS = 64
vL, vKV, vM01, vM23, vQ = 0, 1, 2, 3, 4
vRW, vRP, vRR, vRA, vPW, vFL, vRB, vRC = 8, 9, 10, 11, 12, 13, 14, 15
vS = 16
vKT = 32
vD = 48
vE = 56
vT = 58
vACC = 32
vA = 40
vK0 = 64

g = G()
e = g.e

def ts(i):
    if not OPT["ts"]:
        return
    e("s_memrealtime s[%d:%d]" % (sCLK, sCLK + 1))
    e("s_waitcnt lgkmcnt(0)")
    e("s_mov_b32 s%d, s%d" % (sTS + i, sCLK))

def ts_dyn(base):
    if not OPT["ts"]:
        return
    e("s_memrealtime s[%d:%d]" % (sCLK, sCLK + 1))
    e("s_waitcnt lgkmcnt(0)")
    for p in range(8):
        e("s_cmp_eq_u32 s%d, %d" % (sPH, p))
        e("s_cselect_b32 s%d, s%d, s%d" % (sTS + base + p, sCLK, sTS + base + p))

def ts_first(i):
    if not OPT["ts"]:
        return
    e("s_memrealtime s[%d:%d]" % (sCLK, sCLK + 1))
    e("s_waitcnt lgkmcnt(0)")
    e("s_cmp_eq_u32 s%d, 0" % sLKM)
    e("s_cselect_b32 s%d, s%d, s%d" % (sTS + i, sCLK, sTS + i))

def sentinel_check(regs, fail_label, tmp):
    r = list(regs)
    cur = None
    if len(r) == 1:
        cur = r[0]
    else:
        e("v_max_u32 v%d, v%d, v%d" % (tmp, r[0], r[1])); r = r[2:]
        while len(r) >= 2:
            e("v_max3_u32 v%d, v%d, v%d, v%d" % (tmp, tmp, r[0], r[1])); r = r[2:]
        if r:
            e("v_max_u32 v%d, v%d, v%d" % (tmp, tmp, r[0]))
        cur = tmp
    e("v_cmp_eq_u32 vcc, -1, v%d" % cur)
    e("s_nop 1")
    e("s_cmp_lg_u64 vcc, 0")
    e("s_cbranch_scc1 %s" % fail_label)

def poll(issue, regs, tmp):
    top = g.newlab("L_poll"); again = g.newlab("L_again"); done = g.newlab("L_pdone")
    e("s_mov_b32 s%d, 0" % sSPIN)
    g.lab(top)
    issue()
    e("s_waitcnt vmcnt(0)")
    sentinel_check(regs, again, tmp)
    e("s_branch %s" % done)
    g.lab(again)
    e("s_add_u32 s%d, s%d, 1" % (sSPIN, sSPIN))
    e("s_cmp_lt_u32 s%d, %d" % (sSPIN, SPIN))
    e("s_cbranch_scc1 %s" % top)
    g.lab(done)

PPR = int(OPT.get("ppr", 16))
def fpoll(issue, nld, regs, tmp):
    if PPR == 0:
        return poll(issue, regs, tmp)
    top = g.newlab("L_fp"); again = g.newlab("L_fa"); done = g.newlab("L_fd"); chk = g.newlab("L_fc")
    e("s_mov_b32 s%d, 0" % sSPIN)
    issue()
    e("s_waitcnt vmcnt(0)")
    e("s_branch %s" % chk)
    g.lab(top)
    e("s_waitcnt vmcnt(%d)" % (5 * nld))
    issue()
    g.lab(chk)
    sentinel_check(regs, again, tmp)
    e("s_branch %s" % done)
    g.lab(again)
    e("s_add_u32 s%d, s%d, 1" % (sSPIN, sSPIN))
    e("s_cmp_ge_u32 s%d, %d" % (sSPIN, SPIN * 8))
    e("s_cbranch_scc1 %s" % done)
    if PPR & (PPR - 1) == 0:
        e("s_and_b32 s%d, s%d, %d" % (sT, sSPIN, PPR - 1))
        e("s_cmp_eq_u32 s%d, 0" % sT)
    else:
        raise SystemExit("ppr must be a power of two")
    e("s_cbranch_scc1 %s" % top)
    e("s_branch %s" % chk)
    g.lab(done)

def counter_spin():
    top = g.newlab("L_cnt"); done = g.newlab("L_cdone")
    e("s_mov_b32 s%d, 0" % sSPIN)
    e("v_mov_b32 v%d, 0" % vT)
    g.lab(top)
    e("global_load_dword v%d, v%d, s[%d:%d] sc1" % (vT + 1, vT, sDBG, sDBG + 1))
    e("s_waitcnt vmcnt(0)")
    e("v_readfirstlane_b32 s%d, v%d" % (sT, vT + 1))
    e("s_add_u32 s%d, s%d, 1" % (sSPIN, sSPIN))
    e("s_cmp_ge_u32 s%d, %d" % (sSPIN, SPIN))
    e("s_cbranch_scc1 %s" % done)
    e("s_cmp_lt_u32 s%d, 256" % sT)
    e("s_cbranch_scc1 %s" % top)
    g.lab(done)

e("; @launch grid=(256,1,1) block=(256,1,1) lds=163840")
e('.amdgcn_target "amdgcn-amd-amdhsa--gfx950"')
e(".text")
e(".globl %s" % KN)
e(".p2align 8")
e(".type %s,@function" % KN)
g.lab(KN)
e("s_cmp_ge_u32 s2, 256")
e("s_cbranch_scc1 L_end")
e("s_load_dwordx4 s[32:35], s[0:1], 0")
e("s_load_dwordx4 s[36:39], s[0:1], 16")
e("s_load_dwordx2 s[40:41], s[0:1], 32")
e("s_load_dwordx4 s[44:47], s[0:1], 48")
e("s_load_dwordx4 s[56:59], s[0:1], 64")
e("s_load_dwordx2 s[%d:%d], s[0:1], 80" % (sWS, sWS + 1))
e("v_lshrrev_b32 v1, 6, v0")
e("v_and_b32 v0, 63, v0")
e("v_readfirstlane_b32 s%d, v1" % sW)
e("s_and_b32 s%d, s2, 31" % sH)
e("s_lshr_b32 s%d, s2, 5" % sS)
if OPT["ts"]:
    for i in range(32):
        e("s_mov_b32 s%d, 0" % (sTS + i))
e("s_mov_b32 s%d, 0x3e0293ee" % sC)
import struct, math
cval = struct.unpack("<I", struct.pack("<f", (128 ** -0.5) * math.log2(math.e)))[0]
g.L[-1] = "s_mov_b32 s%d, 0x%08x" % (sC, cval)
e("s_mov_b32 s%d, 0x3f803f80" % sONE)
e("v_lshlrev_b32 v%d, 4, v0" % vKV)
e("s_lshl_b32 s%d, s%d, 10" % (sM0B, sW))
e("v_add_u32 v%d, s%d, v%d" % (vKV, sM0B, vKV))
e("s_lshl_b32 s%d, s%d, 14" % (sM0B, sW))
e("v_and_b32 v%d, 3, v0" % vT)
e("v_mov_b32 v%d, 0" % vM01); e("v_mov_b32 v%d, 0" % vM23)
e("v_mov_b32 v%d, 0xffff" % (vT + 1)); e("v_mov_b32 v%d, 0xffff0000" % (vT + 2))
for val, dst, src in ((0, vM01, vT + 1), (1, vM01, vT + 2), (2, vM23, vT + 1), (3, vM23, vT + 2)):
    e("v_cmp_eq_u32 vcc, %d, v%d" % (val, vT))
    e("s_nop 1")
    e("v_cndmask_b32 v%d, v%d, v%d, vcc" % (dst, dst, src))
e("s_waitcnt lgkmcnt(0)")
ts(0)
e("s_mov_b64 s[%d:%d], s[32:33]" % (sX, sX + 1))
e("s_mov_b64 s[%d:%d], s[56:57]" % (sOUT, sOUT + 1))
e("s_mov_b64 s[%d:%d], s[58:59]" % (sDBG, sDBG + 1))
e("s_lshl_b32 s42, s%d, 21" % sH)
e("s_lshl_b32 s43, s%d, 18" % sS)
e("s_add_u32 s42, s42, s43")
e("s_add_u32 s%d, s34, s42" % sK); e("s_addc_u32 s%d, s35, 0" % (sK + 1))
e("s_mov_b32 s%d, 0x4040000" % (sK + 2)); e("s_mov_b32 s%d, 0x20000" % (sK + 3))
e("s_add_u32 s%d, s36, s42" % sV); e("s_addc_u32 s%d, s37, 0" % (sV + 1))
e("s_mov_b32 s%d, 0x4040000" % (sV + 2)); e("s_mov_b32 s%d, 0x20000" % (sV + 3))
KP1 = int(OPT.get("kp1", 0))
e("s_mov_b32 s%d, 0" % sOFF)
if ROT:
    rm = int(ROT)
    if rm == 1:
        e("s_lshl_b32 s42, s%d, 3" % sS); e("s_lshr_b32 s43, s%d, 2" % sH); e("s_add_u32 s42, s42, s43")
    elif rm == 2:
        e("s_mul_i32 s42, s2, 5")
    else:
        e("s_mul_i32 s42, s2, 17"); e("s_lshr_b32 s42, s42, 1")
    e("s_and_b32 s42, s42, 63"); e("s_lshl_b32 s%d, s42, 12" % sBO)
    e("s_mov_b32 s%d, s%d" % (sOFF, sBO)); e("s_mov_b32 s%d, 0x3ffff" % sMSK)
for t in range(KP1):
    e("buffer_load_dwordx4 v[%d:%d], v%d, s[%d:%d], s%d offen nt" % (vK0 + 4 * t, vK0 + 4 * t + 3, vKV, sK, sK + 3, sOFF))
    e("s_add_u32 s%d, s%d, 4096" % (sOFF, sOFF)); wrap()
if OPT.get("tsstart"): ts(5)
if OPT.get("lat"):
    e("buffer_load_dwordx4 v[64:67], v%d, s[%d:%d], s%d offen nt" % (vKV, sK, sK + 3, sOFF))
    e("s_waitcnt vmcnt(0)"); ts(24)
    e("buffer_load_dwordx4 v[64:67], v%d, s[%d:%d], s%d offen nt" % (vKV, sV, sV + 3, sOFF))
    e("s_waitcnt vmcnt(0)"); ts(25)
    e("s_mov_b32 s42, 0x4000000")
    e("buffer_load_dwordx4 v[64:67], v%d, s[%d:%d], s42 offen nt" % (vKV, sK, sK + 3))
    e("s_waitcnt vmcnt(0)"); ts(26)
    e("s_mov_b32 s42, 0x8000")
    e("buffer_load_dwordx4 v[64:67], v%d, s[%d:%d], s42 offen nt" % (vKV, sK, sK + 3))
    e("s_waitcnt vmcnt(0)"); ts(29)
e("s_mov_b64 s[%d:%d], s[38:39]" % (sWQ, sWQ + 1))
e("s_mov_b32 s%d, %d" % (sWQ + 2, 640 * 8192)); e("s_mov_b32 s%d, 0x20000" % (sWQ + 3))
e("s_cmp_lg_u32 s%d, 0" % sW)
e("s_cbranch_scc1 L_noclear")
e("s_mul_i32 s42, s2, 3072")
e("v_lshlrev_b32 v%d, 4, v0" % vT)
e("v_add_u32 v%d, s42, v%d" % (vT, vT))
for i in range(4):
    e("v_mov_b32 v%d, -1" % (vKT + i))
for i in range(3):
    e("global_store_dwordx4 v%d, v[%d:%d], s[%d:%d] offset:%d sc1" % (vT, vKT, vKT + 3, sWS, sWS + 1, i * 1024))
def qp_own_addr(dst):
    e("s_lshl_b32 s42, s%d, 3" % sH); e("s_add_u32 s42, s42, s%d" % sS); e("s_lshl_b32 s42, s42, 9")
    e("s_add_u32 s42, s42, %d" % WS_QP)
    e("v_lshrrev_b32 v%d, 5, v0" % dst); e("v_mul_u32_u24 v%d, %d, v%d" % (dst, QP_B, dst))
    e("v_and_b32 v%d, 31, v0" % (dst + 1)); e("v_lshl_add_u32 v%d, v%d, 4, v%d" % (dst, dst + 1, dst))
    e("v_add_u32 v%d, s42, v%d" % (dst, dst))
qp_own_addr(vT)
e("global_store_dwordx4 v%d, v[%d:%d], s[%d:%d] sc1" % (vT, vKT, vKT + 3, sWS, sWS + 1))
e("s_cmp_ge_u32 s2, %d" % R4_N)
e("s_cbranch_scc1 L_noclear")
e("v_lshrrev_b32 v%d, 3, v0" % vT); e("v_mul_u32_u24 v%d, %d, v%d" % (vT, Q_ST, vT))
e("v_and_b32 v%d, 7, v0" % (vT + 1)); e("v_lshl_add_u32 v%d, v%d, 4, v%d" % (vT, vT + 1, vT))
e("s_lshl_b32 s42, s2, 7"); e("s_add_u32 s42, s42, %d" % WS_Q); e("v_add_u32 v%d, s42, v%d" % (vT, vT))
e("s_mov_b32 exec_hi, 0")
e("global_store_dwordx4 v%d, v[%d:%d], s[%d:%d] sc1" % (vT, vKT, vKT + 3, sWS, sWS + 1))
e("s_mov_b64 exec, -1")
g.lab("L_noclear")
vXA = 16
vXR = 32
e("v_lshlrev_b32 v%d, 4, v0" % vT)
for b in range(2):
    for i in range(4): e("v_mov_b32 v%d, 0" % (vXA + 8 * b + 4 + i))
for b in range(2):
    e("global_load_dwordx4 v[%d:%d], v%d, s[%d:%d] offset:%d" % (vXA + 8 * b, vXA + 8 * b + 3, vT, sX, sX + 1, b * 1280))
e("s_mov_b64 exec, 0xffff")
for b in range(2):
    e("global_load_dwordx4 v[%d:%d], v%d, s[%d:%d] offset:%d" % (vXA + 8 * b + 4, vXA + 8 * b + 7, vT, sX, sX + 1, b * 1280 + 1024))
e("s_mov_b64 exec, -1")
e("s_mul_i32 s42, s%d, 80" % sS); e("s_mul_i32 s43, s%d, 20" % sW); e("s_add_u32 s42, s42, s43")
e("v_lshrrev_b32 v%d, 4, v0" % vT); e("v_add_u32 v%d, s42, v%d" % (vT, vT))
e("v_lshlrev_b32 v%d, 1, v%d" % (vT + 1, vT))
for b in range(2):
    for i in range(5):
        e("global_load_ushort v%d, v%d, s[%d:%d] offset:%d" % (vXR + 5 * b + i, vT + 1, sX, sX + 1, b * 1280 + 8 * i))
e("v_lshlrev_b32 v%d, 13, v%d" % (vT, vT))
e("v_and_b32 v%d, 15, v0" % (vT + 1)); e("v_lshl_add_u32 v%d, v%d, 4, v%d" % (vT, vT + 1, vT))
e("s_lshl_b32 s42, s%d, 8" % sH)
for i in range(5):
    e("buffer_load_dwordx4 a[%d:%d], v%d, s[%d:%d], s42 offen" % (4 * i, 4 * i + 3, vT, sWQ, sWQ + 3))
    e("s_add_u32 s42, s42, %d" % (4 * 8192))
if OPT.get("touch"):
    e("s_mov_b32 s43, 0x4000000")
    e("buffer_load_dword v44, off, s[%d:%d], 0 nt" % (sV, sV + 3))
    e("buffer_load_dword v45, off, s[%d:%d], s43 nt" % (sK, sK + 3))
    e("buffer_load_dword v46, off, s[%d:%d], s43 nt" % (sV, sV + 3))
for t in range(KP1, KPRE):
    e("buffer_load_dwordx4 v[%d:%d], v%d, s[%d:%d], s%d offen nt" % (vK0 + 4 * t, vK0 + 4 * t + 3, vKV, sK, sK + 3, sOFF))
    e("s_add_u32 s%d, s%d, 4096" % (sOFF, sOFF)); wrap()
if OPT.get("tsstart"): ts(27)

e("s_mov_b32 s%d, 0" % sROLE); e("s_mov_b32 s%d, 0" % sJ)
e("s_mov_b32 s%d, 0" % sKS); e("s_mov_b32 s%d, 0" % sGRP)
e("s_mov_b32 s%d, 0" % sHAS4); e("s_mov_b32 s%d, 0" % sCLS); e("s_mov_b32 s%d, 0" % sPAR); e("s_mov_b32 s%d, 0" % sRING)
e("s_mov_b64 s[%d:%d], s[38:39]" % (sWT, sWT + 1))
e("s_mov_b32 s%d, %d" % (sWT + 2, 640 * 8192)); e("s_mov_b32 s%d, 0x20000" % (sWT + 3))
OP_ATT, OP_S1, OP_S2, OP_S3, OP_S4, OP_RING, OP_LK = 1, 2, 3, 4, 5, 6, 7
def prog(steps):
    v = 0
    for i, (op, inv) in enumerate(steps):
        v |= (op | (inv << 4)) << (8 * i)
    e("s_mov_b32 s%d, 0x%08x" % (sPROG, v & 0xffffffff)); e("s_mov_b32 s%d, 0x%08x" % (sPROG + 1, v >> 32))
prog([(OP_RING, 2), (OP_ATT, 1), (OP_LK, 3), (OP_ATT, 3)])
def in_range(lo, n, skip):
    e("s_sub_u32 s42, s2, %d" % lo)
    e("s_cmp_lt_u32 s42, %d" % n)
    e("s_cbranch_scc0 %s" % skip)

def gemv64_consts(NL, rowb):
    KW = 8 * NL
    e("s_mul_i32 s42, s%d, %d" % (sW, NL * 1024))
    e("s_add_u32 s42, s42, %d" % LP)
    e("v_lshlrev_b32 v%d, 4, v0" % vRW)
    e("v_add_u32 v%d, s42, v%d" % (vRW, vRW))
    e("v_lshrrev_b32 v%d, 3, v0" % vT)
    e("v_mul_u32_u24 v%d, %d, v%d" % (vRP, NL * 4, vT))
    e("s_mul_i32 s42, s%d, %d" % (sW, KW * 4))
    e("s_add_u32 s42, s42, %d" % PD)
    e("v_add_u32 v%d, s42, v%d" % (vRP, vRP))
    e("v_and_b32 v%d, 7, v0" % vRR)
    e("v_lshlrev_b32 v%d, 3, v%d" % (vRR, vRR))
    e("v_lshrrev_b32 v%d, 5, v0" % (vT + 1))
    e("v_lshl_add_u32 v%d, v%d, 2, v%d" % (vRR, vT + 1, vRR))
    e("v_bfe_u32 v%d, v0, 4, 1" % (vT + 1))
    e("v_add_u32 v%d, v%d, v%d" % (vRR, vRR, vT + 1))
    e("v_bfe_u32 v%d, v0, 3, 1" % (vT + 1))
    e("v_lshl_add_u32 v%d, v%d, 1, v%d" % (vRR, vT + 1, vRR))
    e("s_lshl_b32 s42, s%d, 8" % sW)
    e("s_add_u32 s42, s42, %d" % RED)
    e("v_lshlrev_b32 v%d, 2, v%d" % (vRR, vRR))
    e("v_add_u32 v%d, s42, v%d" % (vRR, vRR))

def gemv64_wload(NL, rowb, k0_expr_sreg, cb_sreg, vT=vT, srd=sWT):
    KW = 8 * NL
    e("v_lshrrev_b32 v%d, 3, v0" % vT)
    e("v_mul_u32_u24 v%d, %d, v%d" % (vT, NL * rowb, vT)) if NL * rowb < (1 << 24) else None
    e("v_and_b32 v%d, 7, v0" % (vT + 1))
    e("v_lshl_add_u32 v%d, v%d, 4, v%d" % (vT, vT + 1, vT))
    e("s_mul_i32 s42, s%d, %d" % (sW, KW))
    if k0_expr_sreg is not None:
        e("s_add_u32 s42, s42, s%d" % k0_expr_sreg)
    e("s_mul_i32 s42, s42, %d" % rowb)
    e("s_add_u32 s42, s42, s%d" % cb_sreg)
    e("s_mul_i32 s43, s%d, %d" % (sW, NL * 1024))
    e("s_add_u32 s43, s43, %d" % LP)
    for i in range(NL):
        e("s_mov_b32 m0, s43")
        e("s_add_u32 s43, s43, 1024")
        e("buffer_load_dwordx4 v%d, s[%d:%d], s42 offen %slds" % (vT, srd, srd + 3, WNT))
        e("s_add_u32 s42, s42, %d" % rowb)

def x160_consts():
    e("v_min_u32 v%d, 39, v0" % vT)
    e("v_lshlrev_b32 v%d, 2, v%d" % (vT, vT))
    e("s_mul_i32 s42, s%d, 160" % sW)
    e("v_add_u32 v%d, s42, v%d" % (vT, vT))
    e("v_lshlrev_b32 v%d, 1, v%d" % (vRB, vT))
    e("v_lshlrev_b32 v%d, 2, v%d" % (vRA, vT))
    e("v_add_u32 v%d, %d, v%d" % (vPW, PD, vRA))
    e("v_mov_b32 v%d, 0" % vFL)
    e("v_cmp_gt_u32 vcc, 40, v0")
    e("s_nop 1")
    e("v_cndmask_b32 v%d, v%d, 1.0, vcc" % (vFL, vFL))

def s1_consts():
    gemv64_consts(16, 1280)
    e("s_lshl_b32 s42, s%d, 2" % sKS); e("s_add_u32 s42, s42, s%d" % sW)
    e("v_lshrrev_b32 v%d, 5, v0" % vT)
    e("v_and_b32 v%d, 31, v0" % (vT + 1))
    e("v_lshlrev_b32 v%d, 4, v%d" % (vT + 1, vT + 1))
    e("v_lshl_add_u32 v%d, v%d, 9, v%d" % (vRA, vT, vT + 1))
    e("s_lshl_b32 s43, s42, 12"); e("v_add_u32 v%d, s43, v%d" % (vRA, vRA))
    e("v_lshlrev_b32 v%d, 5, v%d" % (vRB, vT))
    e("s_lshl_b32 s43, s42, 6"); e("v_add_u32 v%d, s43, v%d" % (vRB, vRB))
    e("v_lshl_add_u32 v%d, v%d, 2, v%d" % (vPW, vT, vT + 1))
    e("s_lshl_b32 s43, s%d, 9" % sW); e("s_add_u32 s43, s43, %d" % PD)
    e("v_add_u32 v%d, s43, v%d" % (vPW, vPW))

def s4_consts():
    gemv64_consts(20, 8192); x160_consts()

in_range(R1_0, R1_N, "L_nr1")
e("s_mov_b32 s%d, 1" % sROLE); e("s_mov_b32 s%d, s42" % sJ)
e("s_mov_b64 s[%d:%d], s[40:41]" % (sWT, sWT + 1)); e("s_mov_b32 s%d, %d" % (sWT + 2, 4096 * 1280))
e("s_and_b32 s%d, s%d, 7" % (sKS, sJ))
e("s_lshr_b32 s%d, s%d, 3" % (sGRP, sJ))
SN = OPT.get("sn")
prog([(OP_S1, 0), (OP_ATT, 1), (OP_S1, 2), (OP_ATT, 3), (OP_S1, 3)] if SN else [(OP_S1, 0), (OP_ATT, 1), (OP_S1, 2), (OP_S1, 1), (OP_ATT, 3), (OP_S1, 3)])
e("s_cmp_ge_u32 s2, %d" % R4_N)
e("s_cbranch_scc1 L_roledone")
e("s_mov_b32 s%d, 1" % sHAS4)
prog([(OP_S1, 0), (OP_S4, 1), (OP_ATT, 1), (OP_S1, 2), (OP_S4, 3), (OP_ATT, 3), (OP_S1, 3)] if SN else [(OP_S1, 0), (OP_S4, 1), (OP_ATT, 1), (OP_S1, 2), (OP_S1, 1), (OP_S4, 3), (OP_ATT, 3), (OP_S1, 3)])
e("s_branch L_roledone")
g.lab("L_nr1")
in_range(R2_0, R2_N, "L_nr2")
e("s_mov_b32 s%d, 2" % sROLE); e("s_mov_b32 s%d, s42" % sJ)
e("s_mov_b64 s[%d:%d], s[44:45]" % (sWT, sWT + 1)); e("s_mov_b32 s%d, %d" % (sWT + 2, 640 * 3456))
e("s_lshl_b32 s%d, s%d, 7" % (sGRP, sJ))
gemv64_consts(20, 3456); x160_consts()
prog([(OP_S2, 0), (OP_ATT, 1), (OP_S2, 1), (OP_S2, 2), (OP_ATT, 3), (OP_S2, 3)] if SN else [(OP_S2, 0), (OP_ATT, 1), (OP_S2, 2), (OP_S2, 1), (OP_ATT, 3), (OP_S2, 3)])
e("s_branch L_roledone")
g.lab("L_nr2")
in_range(R3_0, R3_N, "L_nr3")
prog([(OP_S3, 0), (OP_ATT, 1), (OP_S3, 1), (OP_S3, 2), (OP_ATT, 3), (OP_S3, 3)] if SN else ([(OP_S3, 0), (OP_ATT, 1), (OP_S3, 2), (OP_S3, 1), (OP_ATT, 3), (OP_S3, 3)] if OPT.get("s3old") else [(OP_S3, 0), (OP_ATT, 1), (OP_S3, 2), (OP_ATT, 3), (OP_S3, 1), (OP_S3, 3)]))
e("s_mov_b32 s%d, 3" % sROLE); e("s_mov_b32 s%d, s42" % sJ)
if not OPT.get("s3lin"):
    e("s_and_b32 s43, s42, 7"); e("s_mul_i32 s43, s43, 5"); e("s_lshr_b32 s42, s42, 3"); e("s_add_u32 s%d, s43, s42" % sJ)
e("s_mov_b64 s[%d:%d], s[46:47]" % (sWT, sWT + 1)); e("s_mov_b32 s%d, %d" % (sWT + 2, 1728 * 1280))
e("s_mul_i32 s42, s%d, 14336" % sW); e("s_add_u32 s42, s42, %d" % LP)
e("v_lshlrev_b32 v%d, 3, v0" % vRW); e("v_add_u32 v%d, s42, v%d" % (vRW, vRW))
e("s_mul_i32 s42, s%d, 1792" % sW); e("s_add_u32 s42, s42, %d" % PD3)
e("v_lshrrev_b32 v%d, 2, v0" % vT); e("v_lshlrev_b32 v%d, 4, v%d" % (vRP, vT)); e("v_add_u32 v%d, s42, v%d" % (vRP, vRP))
e("v_min_u32 v%d, 53, v0" % vT)
e("v_lshlrev_b32 v%d, 5, v%d" % (vPW, vT)); e("v_add_u32 v%d, s42, v%d" % (vPW, vPW))
e("v_lshlrev_b32 v%d, 4, v%d" % (vRA, vT))
e("s_mul_i32 s43, s%d, 864" % sW); e("v_add_u32 v%d, s43, v%d" % (vRA, vRA))
e("v_and_b32 v%d, 3, v0" % vT); e("v_lshlrev_b32 v%d, 2, v%d" % (vT, vT))
e("v_lshrrev_b32 v%d, 4, v0" % (vT + 1)); e("v_add_u32 v%d, v%d, v%d" % (vT, vT, vT + 1))
e("v_lshlrev_b32 v%d, 2, v%d" % (vRR, vT))
e("s_lshl_b32 s43, s%d, 6" % sW); e("s_add_u32 s43, s43, %d" % RED); e("v_add_u32 v%d, s43, v%d" % (vRR, vRR))
e("v_and_b32 v%d, 14, v0" % vT); e("v_lshlrev_b32 v%d, 1, v%d" % (vRB, vT))
e("s_lshl_b32 s43, s%d, 5" % sJ); e("v_add_u32 v%d, s43, v%d" % (vRB, vRB))
e("v_lshlrev_b32 v%d, 2, v0" % vT); e("v_add_u32 v%d, s42, v%d" % (vT, vT))
e("v_mov_b32 v%d, 0" % (vT + 1))
e("s_mov_b64 exec, 0xffff")
e("ds_write_b32 v%d, v%d offset:1728" % (vT, vT + 1))
e("s_mov_b64 exec, -1")
e("s_branch L_roledone")
g.lab("L_nr3")
e("s_mov_b32 s%d, 1" % sCLS)
in_range(NSET0, R1_N if SN else 0, "L_roledone")
e("s_mov_b32 s%d, 2" % sCLS); e("s_mov_b32 s%d, s42" % sJ)
e("s_mov_b64 s[%d:%d], s[40:41]" % (sWT, sWT + 1)); e("s_mov_b32 s%d, %d" % (sWT + 2, 4096 * 1280))
e("s_and_b32 s%d, s%d, 7" % (sKS, sJ))
e("s_lshr_b32 s%d, s%d, 3" % (sGRP, sJ))
prog([(OP_RING, 2), (OP_ATT, 1), (OP_S1, 1), (OP_LK, 3), (OP_ATT, 3)])
g.lab("L_roledone")


vP, vGA, vGAA, vGW = 16, 36, 44, 48

def signal_cleared():
    lab = g.newlab("L_nosig")
    e("s_cmp_lg_u32 s%d, 0" % sW)
    e("s_cbranch_scc1 %s" % lab)
    e("v_mov_b32 v%d, 0" % vT); e("v_mov_b32 v%d, 1" % (vT + 1))
    e("s_mov_b64 exec, 1")
    e("global_atomic_add v%d, v%d, s[%d:%d] sc1" % (vT, vT + 1, sDBG, sDBG + 1))
    e("s_mov_b64 exec, -1")
    g.lab(lab)

def reduce8_to_col(acc, out):
    g.nop(5)
    for i in range(4):
        e("v_permlane32_swap_b32 v%d, v%d" % (acc + i, acc + 4 + i))
    for i in range(4):
        e("v_add_f32 v%d, v%d, v%d" % (acc + i, acc + i, acc + 4 + i))
    g.nop(1)
    e("v_permlane16_swap_b32 v%d, v%d" % (acc, acc + 1))
    e("v_permlane16_swap_b32 v%d, v%d" % (acc + 2, acc + 3))
    e("v_add_f32 v%d, v%d, v%d" % (acc, acc, acc + 1))
    e("v_add_f32 v%d, v%d, v%d" % (acc + 2, acc + 2, acc + 3))
    g.nop(2)
    e("v_add_f32_dpp v%d, v%d, v%d row_ror:8 row_mask:0xf bank_mask:0x3" % (out, acc, acc))
    e("v_add_f32_dpp v%d, v%d, v%d row_ror:8 row_mask:0xf bank_mask:0xc" % (out, acc + 2, acc + 2))

def gemv64(NL, ones=False):
    g.lg = []
    for i in range(min(4, NL)):
        g.lds("ds_read_b128 v[%d:%d], v%d offset:%d" % (vGW + 4 * i, vGW + 4 * i + 3, vRW, i * 1024), "W%d" % i)
    if not ones:
        for j in range(NL // 4):
            g.lds("ds_read_b128 v[%d:%d], v%d offset:%d" % (vP + 4 * j, vP + 4 * j + 3, vRP, j * 16), "P%d" % j)
    for i in range(8):
        e("v_mov_b32 v%d, 0" % (vGA + i))
    def ands(i):
        b = vGAA + 2 * (i % 2)
        if ones:
            if i < 2:
                e("v_and_b32 v%d, s%d, v%d" % (b, sONE, vM01)); e("v_and_b32 v%d, s%d, v%d" % (b + 1, sONE, vM23))
        else:
            if i % 4 == 0:
                g.lwait("P%d" % (i // 4))
            e("v_and_b32 v%d, v%d, v%d" % (b, vP + i, vM01)); e("v_and_b32 v%d, v%d, v%d" % (b + 1, vP + i, vM23))
    ands(0)
    for i in range(NL):
        if i + 1 < NL:
            ands(i + 1)
        if ones and i >= 1:
            pass
        g.lwait("W%d" % i)
        if i == 0 or ones:
            g.nop(2)
        b = vGAA + 2 * (i % 2); wb = vGW + 4 * (i % 4)
        e("v_mfma_f32_4x4x4_16b_bf16 v[%d:%d], v[%d:%d], v[%d:%d], v[%d:%d]" % (vGA, vGA + 3, b, b + 1, wb, wb + 1, vGA, vGA + 3))
        e("v_mfma_f32_4x4x4_16b_bf16 v[%d:%d], v[%d:%d], v[%d:%d], v[%d:%d]" % (vGA + 4, vGA + 7, b, b + 1, wb + 2, wb + 3, vGA + 4, vGA + 7))
        if i + 4 < NL:
            g.lds("ds_read_b128 v[%d:%d], v%d offset:%d" % (wb, wb + 3, vRW, (i + 4) * 1024), "W%d" % (i + 4))
    reduce8_to_col(vGA, vGAA)
    e("ds_write_b32 v%d, v%d" % (vRR, vGAA))
    g.lg = []

def wave_sum2(a, b, t):
    for ctl in ("quad_perm:[1,0,3,2]", "quad_perm:[2,3,0,1]", "row_half_mirror", "row_mirror"):
        g.nop(1)
        e("v_add_f32_dpp v%d, v%d, v%d %s row_mask:0xf bank_mask:0xf" % (a, a, a, ctl))
        e("v_add_f32_dpp v%d, v%d, v%d %s row_mask:0xf bank_mask:0xf" % (b, b, b, ctl))
    g.nop(2)
    e("v_permlane32_swap_b32 v%d, v%d" % (a, b))
    e("v_add_f32 v%d, v%d, v%d" % (a, a, b))
    e("v_mov_b32 v%d, v%d" % (t, a))
    g.nop(2)
    e("v_permlane16_swap_b32 v%d, v%d" % (a, t))
    e("v_add_f32 v%d, v%d, v%d" % (a, a, t))

def x_to_p_and_stats(x0):
    for i in range(4):
        e("v_cvt_pk_bf16_f32 v%d, v%d, v%d" % (vGW + i, x0 + i, x0 + i))
    e("ds_write_b128 v%d, v[%d:%d]" % (vPW, vGW, vGW + 3))
    e("v_add_f32 v%d, v%d, v%d" % (vT, x0, x0 + 1))
    e("v_add_f32 v%d, v%d, v%d" % (vT + 1, x0 + 2, x0 + 3))
    e("v_mul_f32 v%d, v%d, v%d" % (vT + 2, x0, x0))
    e("v_add_f32 v%d, v%d, v%d" % (vT, vT, vT + 1))
    for i in (1, 2, 3):
        e("v_fmac_f32 v%d, v%d, v%d" % (vT + 2, x0 + i, x0 + i))
    e("v_mul_f32 v%d, v%d, v%d" % (vT, vT, vFL))
    e("v_mul_f32 v%d, v%d, v%d" % (vT + 2, vT + 2, vFL))
    wave_sum2(vT, vT + 2, vT + 1)
    e("v_lshrrev_b32 v%d, 5, v0" % (vT + 1))
    e("v_lshlrev_b32 v%d, 2, v%d" % (vT + 1, vT + 1))
    e("s_lshl_b32 s%d, s%d, 3" % (sT, sW)); e("s_add_u32 s%d, s%d, %d" % (sT, sT, ST))
    e("v_add_u32 v%d, s%d, v%d" % (vT + 1, sT, vT + 1))
    e("s_mov_b32 exec_lo, 1"); e("s_mov_b32 exec_hi, 1")
    e("ds_write_b32 v%d, v%d" % (vT + 1, vT))
    e("s_mov_b64 exec, -1")
    e("s_waitcnt lgkmcnt(0)")

def final_col_sum(y, with_ln):
    e("v_lshlrev_b32 v%d, 2, v0" % vT)
    e("v_add_u32 v%d, %d, v%d" % (vT + 1, RED, vT))
    e("ds_read2_b32 v[%d:%d], v%d offset0:0 offset1:64" % (16, 17, vT + 1))
    e("ds_read2_b32 v[%d:%d], v%d offset0:128 offset1:192" % (18, 19, vT + 1))
    if with_ln:
        e("v_mov_b32 v%d, %d" % (vT + 2, ST))
        e("ds_read_b128 v[20:23], v%d" % (vT + 2))
        e("ds_read_b128 v[24:27], v%d offset:16" % (vT + 2))
        e("v_add_u32 v%d, %d, v%d" % (vT + 1, CS, vT))
        e("ds_read_b32 v28, v%d" % (vT + 1))
    e("s_waitcnt lgkmcnt(0)")
    e("v_add_f32 v16, v16, v17"); e("v_add_f32 v18, v18, v19"); e("v_add_f32 v%d, v16, v18" % y)
    if with_ln:
        e("v_add_f32 v20, v20, v22"); e("v_add_f32 v24, v24, v26"); e("v_add_f32 v20, v20, v24")
        e("v_add_f32 v21, v21, v23"); e("v_add_f32 v25, v25, v27"); e("v_add_f32 v21, v21, v25")
        e("v_mul_f32 v20, 0x3acccccd, v20")
        e("v_mul_f32 v21, 0x3acccccd, v21")
        e("v_fma_f32 v21, -v20, v20, v21")
        e("v_add_f32 v21, 0x3727c5ac, v21")
        e("v_rsq_f32 v21, v21")
        e("v_fma_f32 v%d, -v20, v28, v%d" % (y, y))
        e("v_mul_f32 v%d, v%d, v21" % (y, y))

def round_bf16(r, t=None):
    e("v_cvt_pk_bf16_f32 v%d, v%d, v%d" % (r, r, r))
    e("v_and_b32 v%d, 0xffff0000, v%d" % (r, r))

def pack_pair_even(y, out):
    g.nop(2)
    e("v_mov_b32_dpp v%d, v%d quad_perm:[1,0,3,2] row_mask:0xf bank_mask:0xf" % (out, y))
    e("v_cvt_pk_bf16_f32 v%d, v%d, v%d" % (out, y, out))

def pack8(y, out):
    g.nop(2)
    e("v_mov_b32_dpp v%d, v%d quad_perm:[1,0,3,2] row_mask:0xf bank_mask:0xf" % (out, y))
    e("v_cvt_pk_bf16_f32 v%d, v%d, v%d" % (out, y, out))
    g.nop(2)
    e("v_mov_b32_dpp v%d, v%d quad_perm:[2,3,0,1] row_mask:0xf bank_mask:0xf" % (out + 1, out))
    e("v_mov_b32_dpp v%d, v%d row_shl:4 row_mask:0xf bank_mask:0xf" % (out + 2, out))
    g.nop(1)
    e("v_mov_b32_dpp v%d, v%d row_shl:4 row_mask:0xf bank_mask:0xf" % (out + 3, out + 1))

def exec8():
    e("s_mov_b32 exec_lo, 0x01010101"); e("s_mov_b32 exec_hi, 0x01010101")

def colsum(NL):
    gemv64(NL, ones=True)
    e("s_waitcnt lgkmcnt(0)")
    e("s_barrier")
    lab = g.newlab("L_cs")
    e("s_cmp_lg_u32 s%d, 0" % sW)
    e("s_cbranch_scc1 %s" % lab)
    final_col_sum(30, False)
    e("v_add_u32 v%d, %d, v%d" % (vT + 1, CS, vT))
    e("ds_write_b32 v%d, v30" % (vT + 1))
    e("s_waitcnt lgkmcnt(0)")
    g.lab(lab)
    e("s_barrier")

def s3_wload(vT=vT):
    e("v_bfe_u32 v%d, v0, 1, 4" % vT)
    e("v_mul_u32_u24 v%d, %d, v%d" % (vT, 4 * 1280, vT))
    e("v_lshrrev_b32 v%d, 5, v0" % (vT + 1))
    e("v_mul_u32_u24 v%d, 1280, v%d" % (vT + 1, vT + 1))
    e("v_add_u32 v%d, v%d, v%d" % (vT, vT, vT + 1))
    e("v_and_b32 v%d, 1, v0" % (vT + 1))
    e("v_lshl_add_u32 v%d, v%d, 4, v%d" % (vT, vT + 1, vT))
    e("s_mul_i32 s42, s%d, %d" % (sW, 432 * 1280))
    e("s_lshl_b32 s43, s%d, 5" % sJ)
    e("s_add_u32 s42, s42, s43")
    e("s_mul_i32 s43, s%d, 14336" % sW); e("s_add_u32 s43, s43, %d" % LP)
    for ld in range(14):
        i0 = 2 * ld
        rowoff = (64 * (i0 // 4) + (i0 % 4)) * 1280
        e("s_mov_b32 m0, s43")
        e("s_add_u32 s44, s42, %d" % rowoff)
        e("buffer_load_dwordx4 v%d, s[%d:%d], s44 offen %slds" % (vT, sWT, sWT + 3, WNT))
        e("s_add_u32 s43, s43, 1024")

XRM = 0 if OPT.get("nox2r") else 3
def x2_replica():
    e("s_and_b32 s%d, s%d, %d" % (sT + 1, sJ, XRM)); e("s_mul_i32 s%d, s%d, %d" % (sT + 1, sT + 1, X2R)); e("s_add_u32 s%d, s%d, s%d" % (sT, sT, sT + 1))

def s4_block():
    g.lab("L_s4")
    e("s_mov_b32 s%d, s%d" % (sTQ, sINV))
    s4_consts()
    nc = g.newlab("L_s4nc")
    e("s_cmp_lg_u32 s%d, 1" % sTQ); e("s_cbranch_scc1 %s" % nc)
    ts(24)
    e("s_waitcnt vmcnt(0)")
    ts(25)
    colsum(20)
    ts(26)
    g.lab(nc)
    e("s_sub_u32 s%d, s%d, 1" % (sT, sTQ)); e("s_mul_i32 s%d, s%d, %d" % (sT, sT, X2_ST)); e("s_add_u32 s%d, s%d, %d" % (sT, sT, WS_X2))
    x2_replica()
    e("v_add_u32 v%d, s%d, v%d" % (50, sT, vRB))
    fpoll(lambda: e("global_load_dwordx2 v[4:5], v50, s[%d:%d] sc1" % (sWS, sWS + 1)), 1, [4, 5], vT)
    ts_s4(0)
    e("v_lshlrev_b32 v16, 16, v4"); e("v_and_b32 v17, 0xffff0000, v4")
    e("v_lshlrev_b32 v18, 16, v5"); e("v_and_b32 v19, 0xffff0000, v5")
    x_to_p_and_stats(16)
    gemv64(20)
    e("s_waitcnt lgkmcnt(0)")
    e("s_barrier")
    lab = g.newlab("L_s4w")
    e("s_cmp_lg_u32 s%d, 0" % sW)
    e("s_cbranch_scc1 %s" % lab)
    final_col_sum(30, True)
    pack8(30, 32)
    e("s_mul_i32 s%d, s%d, %d" % (sT, sTQ, Q_ST)); e("s_add_u32 s%d, s%d, %d" % (sT, sT, WS_Q))
    e("s_lshl_b32 s%d, s%d, 7" % (sT + 1, sJ)); e("s_add_u32 s%d, s%d, s%d" % (sT, sT, sT + 1))
    e("v_lshlrev_b32 v%d, 1, v0" % vT); e("v_add_u32 v%d, s%d, v%d" % (vT, sT, vT))
    exec8()
    e("global_store_dwordx4 v%d, v[32:35], s[%d:%d] sc1" % (vT, sWS, sWS + 1))
    e("s_mov_b64 exec, -1")
    g.lab(lab)
    ts_s4(1)
    e("s_cmp_eq_u32 s%d, 3" % sTQ)
    e("s_cselect_b32 s%d, 1, 0" % sLAX)
    e("s_barrier")
    e("s_branch L_disp")

def ts_s4(which):
    if not OPT["ts"]:
        return
    e("s_memrealtime s[%d:%d]" % (sCLK, sCLK + 1))
    e("s_waitcnt lgkmcnt(0)")
    for tq, idx in ((1, 2 if which == 0 else 30), (3, 3 if which == 0 else 31)):
        e("s_cmp_eq_u32 s%d, %d" % (sTQ, tq))
        e("s_cselect_b32 s%d, s%d, s%d" % (sTS + idx, sCLK, sTS + idx))

def allreduce_rows(regs, tmps):
    for r, t in zip(regs, tmps): e("v_mov_b32 v%d, v%d" % (t, r))
    g.nop(2)
    for r, t in zip(regs, tmps): e("v_permlane16_swap_b32 v%d, v%d" % (r, t))
    for r, t in zip(regs, tmps): e("v_add_f32 v%d, v%d, v%d" % (r, r, t))
    for r, t in zip(regs, tmps): e("v_mov_b32 v%d, v%d" % (t, r))
    g.nop(2)
    for r, t in zip(regs, tmps): e("v_permlane32_swap_b32 v%d, v%d" % (r, t))
    for r, t in zip(regs, tmps): e("v_add_f32 v%d, v%d, v%d" % (r, r, t))

def q_initial():
    st = [44, 45, 46, 47]
    for b in range(2):
        for i in range(8):
            x = vXA + 8 * b + i
            if i == 0:
                e("v_dot2_f32_bf16 v%d, v%d, s%d, 0" % (st[2 * b], x, sONE))
                e("v_dot2_f32_bf16 v%d, v%d, v%d, 0" % (st[2 * b + 1], x, x))
            else:
                e("v_dot2_f32_bf16 v%d, v%d, s%d, v%d" % (st[2 * b], x, sONE, st[2 * b]))
                e("v_dot2_f32_bf16 v%d, v%d, v%d, v%d" % (st[2 * b + 1], x, x, st[2 * b + 1]))
    g.nop(3)
    for ctl in ("quad_perm:[1,0,3,2]", "quad_perm:[2,3,0,1]", "row_half_mirror", "row_mirror"):
        for r in st:
            e("v_add_f32_dpp v%d, v%d, v%d %s row_mask:0xf bank_mask:0xf" % (r, r, r, ctl))
    allreduce_rows(st, [48, 49, 50, 51])
    for b in range(2):
        m, v = st[2 * b], st[2 * b + 1]
        e("v_mul_f32 v%d, 0x3acccccd, v%d" % (m, m))
        e("v_mul_f32 v%d, 0x3acccccd, v%d" % (v, v))
        e("v_fma_f32 v%d, -v%d, v%d, v%d" % (v, m, m, v))
        e("v_add_f32 v%d, 0x3727c5ac, v%d" % (v, v))
        e("v_rsq_f32 v%d, v%d" % (v, v))
    e("s_nop 0")
    for b in range(2):
        for i in range(5):
            r = vXR + 5 * b + i
            e("v_lshlrev_b32 v%d, 16, v%d" % (r, r))
            e("v_sub_f32 v%d, v%d, v%d" % (r, r, st[2 * b]))
            e("v_mul_f32 v%d, v%d, v%d" % (r, r, st[2 * b + 1]))
            e("v_cvt_pk_bf16_f32 v%d, v%d, v%d" % (r, r, r))
    for i in range(16): e("v_mov_b32 v%d, 0" % (16 + i))
    n = 0
    for i in range(5):
        for b in range(2):
            A = 52 + 2 * (n % 2); n += 1
            e("v_and_b32 v%d, v%d, v%d" % (A, vXR + 5 * b + i, vM01)); e("v_and_b32 v%d, v%d, v%d" % (A + 1, vXR + 5 * b + i, vM23))
            g.nop(2)
            acc = 16 + 8 * b
            e("v_mfma_f32_4x4x4_16b_bf16 v[%d:%d], v[%d:%d], a[%d:%d], v[%d:%d]" % (acc, acc + 3, A, A + 1, 4 * i, 4 * i + 1, acc, acc + 3))
            e("v_mfma_f32_4x4x4_16b_bf16 v[%d:%d], v[%d:%d], a[%d:%d], v[%d:%d]" % (acc + 4, acc + 7, A, A + 1, 4 * i + 2, 4 * i + 3, acc + 4, acc + 7))
    g.nop(5)
    for b in range(2):
        acc = 16 + 8 * b
        for i in range(4):
            e("v_permlane32_swap_b32 v%d, v%d" % (acc + i, acc + 4 + i))
    for b in range(2):
        acc = 16 + 8 * b
        for i in range(4):
            e("v_add_f32 v%d, v%d, v%d" % (acc + i, acc + i, acc + 4 + i))
    g.nop(1)
    for b in range(2):
        acc = 16 + 8 * b
        e("v_permlane16_swap_b32 v%d, v%d" % (acc, acc + 1))
        e("v_permlane16_swap_b32 v%d, v%d" % (acc + 2, acc + 3))
    for b in range(2):
        acc = 16 + 8 * b
        e("v_add_f32 v%d, v%d, v%d" % (acc, acc, acc + 1))
        e("v_add_f32 v%d, v%d, v%d" % (acc + 2, acc + 2, acc + 3))
    t1 = vT + 1
    e("s_lshl_b32 s%d, s%d, 10" % (sT, sW)); e("s_add_u32 s%d, s%d, %d" % (sT, sT, LP))
    e("v_and_b32 v%d, 15, v0" % t1); e("v_lshlrev_b32 v%d, 5, v%d" % (t1, t1))
    e("v_lshrrev_b32 v%d, 5, v0" % (vT + 3)); e("v_lshl_add_u32 v%d, v%d, 4, v%d" % (t1, vT + 3, t1))
    e("v_bfe_u32 v%d, v0, 4, 1" % (vT + 3)); e("v_lshl_add_u32 v%d, v%d, 2, v%d" % (t1, vT + 3, t1))
    e("v_add_u32 v%d, s%d, v%d" % (t1, sT, t1))
    e("ds_write2_b32 v%d, v16, v18 offset0:0 offset1:2" % t1)
    e("ds_write2_b32 v%d, v24, v26 offset0:128 offset1:130" % t1)
    e("s_waitcnt lgkmcnt(0)")
    e("s_barrier")
    lab = g.newlab("L_qiw")
    e("s_cmp_lg_u32 s%d, 0" % sW); e("s_cbranch_scc1 %s" % lab)
    e("v_lshlrev_b32 v%d, 4, v0" % t1); e("v_add_u32 v%d, %d, v%d" % (t1, LP, t1))
    for w in range(4):
        e("ds_read_b128 v[%d:%d], v%d offset:%d" % (16 + 4 * w, 19 + 4 * w, t1, w * 1024))
    qp_own_addr(vT + 2)
    e("s_waitcnt lgkmcnt(0)")
    for d in range(4):
        e("v_add_f32 v%d, v%d, v%d" % (16 + d, 16 + d, 20 + d)); e("v_add_f32 v%d, v%d, v%d" % (24 + d, 24 + d, 28 + d))
    for d in range(4):
        e("v_add_f32 v%d, v%d, v%d" % (16 + d, 16 + d, 24 + d))
    e("global_store_dwordx4 v%d, v[16:19], s[%d:%d] sc1" % (vT + 2, sWS, sWS + 1))
    g.lab(lab)

def qp_addr(dst):
    e("s_mov_b32 s%d, %d" % (sT, WS_QP))
    e("s_lshl_b32 s%d, s%d, 12" % (sT + 1, sH)); e("s_add_u32 s%d, s%d, s%d" % (sT, sT, sT + 1))
    e("v_lshrrev_b32 v%d, 4, v0" % dst); e("v_lshlrev_b32 v%d, 10, v%d" % (dst, dst))
    e("v_and_b32 v%d, 15, v0" % (dst + 1)); e("v_lshl_add_u32 v%d, v%d, 5, v%d" % (dst, dst + 1, dst))
    e("v_add_u32 v%d, s%d, v%d" % (dst, sT, dst))
    e("v_add_u32 v%d, %d, v%d" % (dst + 1, QP_B, dst))

def qp_issue(addr):
    for b in range(2):
        for i, off in enumerate((0, 16, 512, 528)):
            e("global_load_dwordx4 v[%d:%d], v%d, s[%d:%d] offset:%d sc1" % (16 + 16 * b + 4 * i, 19 + 16 * b + 4 * i, addr + b, sWS, sWS + 1, off))

def qp_finish(addr):
    bad = g.newlab("L_qbad"); good = g.newlab("L_qgood")
    sentinel_check(list(range(16, 48)), bad, vT)
    e("s_branch %s" % good)
    g.lab(bad)
    poll(lambda: qp_issue(addr), list(range(16, 48)), vT)
    g.lab(good)
    for b in range(2):
        for i in range(8): e("v_add_f32 v%d, v%d, v%d" % (16 + 16 * b + i, 16 + 16 * b + i, 24 + 16 * b + i))
    allreduce_rows(list(range(16, 24)) + list(range(32, 40)), list(range(24, 32)) + list(range(40, 48)))
    for i in range(4): e("v_cvt_pk_bf16_f32 v%d, v%d, v%d" % (vQ + i, 16 + 2 * i, 17 + 2 * i))
    for i in range(4): e("v_cvt_pk_bf16_f32 v%d, v%d, v%d" % (48 + i, 32 + 2 * i, 33 + 2 * i))
    e("s_lshl_b32 s%d, s%d, 8" % (sT, sW)); e("s_add_u32 s%d, s%d, %d" % (sT, sT, Q2S))
    e("v_and_b32 v%d, 15, v0" % vT); e("v_lshlrev_b32 v%d, 4, v%d" % (vT, vT)); e("v_add_u32 v%d, s%d, v%d" % (vT, sT, vT))
    e("s_mov_b64 exec, 0xffff")
    e("ds_write_b128 v%d, v[48:51]" % vT)
    e("s_mov_b64 exec, -1")

DEPTH = int(OPT.get("depth", 58))
def kload(t, wait=None):
    if wait is not None:
        e("s_waitcnt vmcnt(%d)" % min(wait, DEPTH))
    if t < 48:
        e("buffer_load_dwordx4 v[%d:%d], v%d, s[%d:%d], s%d offen nt" % (vK0 + 4 * t, vK0 + 4 * t + 3, vKV, sK, sK + 3, sOFF))
        e("s_add_u32 s%d, s%d, 4096" % (sOFF, sOFF)); wrap()
    else:
        e("s_add_u32 m0, s%d, %d" % (sM0B, LQ + (t - 48) * 1024))
        e("s_nop 0")
        e("buffer_load_dwordx4 v%d, s[%d:%d], s%d offen nt lds" % (vKV, sK, sK + 3, sOFF))
        e("s_add_u32 s%d, s%d, 4096" % (sOFF, sOFF)); wrap()

def vload(t, wait=58):
    e("s_waitcnt vmcnt(%d)" % min(wait, DEPTH))
    e("buffer_load_dwordx4 a[%d:%d], v%d, s[%d:%d], s%d offen nt" % (4 * t, 4 * t + 3, vKV, sV, sV + 3, sOFF))
    e("s_add_u32 s%d, s%d, 4096" % (sOFF, sOFF)); wrap()

def lka():
    g.lab("L_lka")
    ts_first(5)
    e("s_mov_b32 s%d, s%d" % (sOFF, sBO))
    for t in range(56):
        if t == KPRE:
            g.lab("L_lka_pre")
        kload(t, 58 if t >= 32 else None)
    ts_first(6)
    e("s_cmp_eq_u32 s%d, 1" % sLKM)
    e("s_cbranch_scc1 L_softmax")

def lkbv():
    g.lab("L_lkbv")
    e("s_add_u32 s%d, s%d, %d" % (sOFF, sBO, 56 * 4096)); wrap()
    for t in range(56, 64):
        kload(t, 58)
    e("v_mov_b32 v%d, 0" % vT)
    e("global_load_dword v%d, v%d, s[%d:%d] sc1" % (vT + 1, vT, sDBG, sDBG + 1))
    e("s_mov_b32 s%d, s%d" % (sOFF, sBO))
    for t in range(32):
        vload(t)
    e("s_waitcnt vmcnt(32)")
    e("v_readfirstlane_b32 s%d, v%d" % (sT, vT + 1))
    ok = g.newlab("L_cok")
    e("s_cmp_ge_u32 s%d, 256" % sT)
    e("s_cbranch_scc1 %s" % ok)
    counter_spin()
    g.lab(ok)
    ts_first(7)
    e("s_lshl_b32 s%d, s%d, 1" % (sINV, sLKM))
    e("s_min_u32 s%d, s%d, 3" % (sINV, sINV))
    if OPT["ts"]:
        e("s_lshl_b32 s%d, s%d, 2" % (sT, sINV))
        e("s_lshr_b32 s%d, 0x6320, s%d" % (sPH, sT)); e("s_and_b32 s%d, s%d, 15" % (sPH, sPH))
    noq = g.newlab("L_noq")
    e("s_cmp_eq_u32 s%d, 2" % sLKM)
    e("s_cbranch_scc1 %s" % noq)
    qp_addr(vT + 2)
    qp_issue(vT + 2)
    g.lab(noq)
    if KEEPV:
        k2 = g.newlab("L_keepv")
        e("s_cmp_eq_u32 s%d, 2" % sLKM); e("s_cbranch_scc0 %s" % k2)
        for t in range(32, 44):
            vload(t, 58)
        e("s_branch L_disp")
        g.lab(k2)
    for t in range(32, 64):
        vload(t, 50 if t < 44 else 58)
    e("s_cmp_eq_u32 s%d, 2" % sLKM)
    e("s_cbranch_scc1 L_disp")
    e("s_waitcnt vmcnt(32)")
    qp_finish(vT + 2)
    if (not OPT.get("wearly")):
        e("s_cmp_eq_u32 s%d, 1" % sROLE)
    else:
        e("s_cmp_lg_u32 s%d, 0" % sROLE)
    e("s_cselect_b32 s%d, 1, 0" % sLAX)
    e("s_branch L_qk")

def mid2():
    g.lab("L_mid2")
    if EARLY1:
        e("s_mov_b32 s%d, s%d" % (sVO, sBO))
        for t in range(64):
            e("s_waitcnt vmcnt(58)")
            e("buffer_load_dwordx4 a[%d:%d], v%d, s[%d:%d], s%d offen nt" % (4 * t, 4 * t + 3, vKV, sV, sV + 3, sVO))
            e("s_add_u32 s%d, s%d, 4096" % (sVO, sVO))
            if t == FLAGPOS: flag_store()
    e("s_mov_b32 s%d, 2" % sINV)
    e("s_mov_b32 s%d, s%d" % (sLAX, sHAS4))
    if OPT["ts"]:
        e("s_mov_b32 s%d, 3" % sPH)
    q2_read()
    e("s_waitcnt vmcnt(58) lgkmcnt(0)")
    e("s_branch L_qk")

def q2_read():
    e("s_lshl_b32 s%d, s%d, 8" % (sT, sW)); e("s_add_u32 s%d, s%d, %d" % (sT, sT, Q2S))
    e("v_and_b32 v%d, 15, v0" % vT); e("v_lshlrev_b32 v%d, 4, v%d" % (vT, vT)); e("v_add_u32 v%d, s%d, v%d" % (vT, sT, vT))
    e("ds_read_b128 v[%d:%d], v%d" % (vQ, vQ + 3, vT))

def flag_store():
    nf = g.newlab("L_nofl")
    e("s_cmp_eq_u32 s%d, 0" % sW); e("s_cbranch_scc0 %s" % nf)
    e("s_lshl_b32 s%d, s%d, 7" % (sT, sH)); e("s_lshl_b32 s%d, s%d, 4" % (sT + 1, sS)); e("s_add_u32 s%d, s%d, s%d" % (sT, sT, sT + 1))
    e("s_add_u32 s%d, s%d, %d" % (sT, sT, WS_FL))
    e("v_mov_b32 v48, s%d" % sT)
    for i in range(4): e("v_mov_b32 v%d, 0" % (52 + i))
    e("s_mov_b64 exec, 1")
    e("global_store_dwordx4 v48, v[52:55], s[%d:%d] sc1" % (sWS, sWS + 1))
    e("s_mov_b64 exec, -1")
    g.lab(nf)

def pv_c():
    g.lab("L_pvc")
    e("s_mov_b32 s%d, s%d" % (sVO, sBO))
    for i in range(8):
        e("v_mov_b32 v%d, 0" % (vACC + i))
    def ands(t):
        b = vA + 2 * (t % 3); T, u = t // 4, t % 4
        e("v_and_b32_dpp v%d, v%d, v%d row_newbcast:%d row_mask:0xf bank_mask:0xf" % (b, vS + T, vM01, BC * u))
        e("v_and_b32_dpp v%d, v%d, v%d row_newbcast:%d row_mask:0xf bank_mask:0xf" % (b + 1, vS + T, vM23, BC * u))
    def vl(t):
        e("s_waitcnt vmcnt(%d)" % min(58, int(OPT.get("depthc", 58))))
        e("buffer_load_dwordx4 a[%d:%d], v%d, s[%d:%d], s%d offen nt" % (4 * t, 4 * t + 3, vKV, sV, sV + 3, sVO))
        e("s_add_u32 s%d, s%d, 4096" % (sVO, sVO))
        if t == FLAGPOS: flag_store()
    ands(0)
    for t in range(64):
        if t + 1 < 64: ands(t + 1)
        else: g.nop(2)
        b = vA + 2 * (t % 3)
        e("v_mfma_f32_4x4x4_16b_bf16 v[%d:%d], v[%d:%d], a[%d:%d], v[%d:%d]" % (vACC, vACC + 3, b, b + 1, 4 * t, 4 * t + 1, vACC, vACC + 3))
        e("v_mfma_f32_4x4x4_16b_bf16 v[%d:%d], v[%d:%d], a[%d:%d], v[%d:%d]" % (vACC + 4, vACC + 7, b, b + 1, 4 * t + 2, 4 * t + 3, vACC + 4, vACC + 7))
        if t < 8 and not QKC: kload(56 + t, 58)
        if t >= 2: vl(t - 2)
    vl(62); vl(63)
    e("s_branch L_pvdone")

def pv_w():
    g.lab("L_pvw")
    e("s_mov_b32 s%d, 0" % sLAX)
    NL, rowb, tv = 16, 1280, 48
    e("v_lshrrev_b32 v%d, 3, v0" % tv)
    e("v_mul_u32_u24 v%d, %d, v%d" % (tv, NL * rowb, tv))
    e("v_and_b32 v%d, 7, v0" % (tv + 1))
    e("v_lshl_add_u32 v%d, v%d, 4, v%d" % (tv, tv + 1, tv))
    e("s_mul_i32 s42, s%d, %d" % (sW, 8 * NL))
    e("s_lshl_b32 s44, s%d, 9" % sKS); e("s_add_u32 s42, s42, s44")
    e("s_mul_i32 s42, s42, %d" % rowb)
    e("s_lshl_b32 s45, s%d, 7" % sGRP); e("s_add_u32 s42, s42, s45")
    e("s_mul_i32 s43, s%d, %d" % (sW, NL * 1024)); e("s_add_u32 s43, s43, %d" % LP)
    for i in range(8):
        e("v_mov_b32 v%d, 0" % (vACC + i))
    def ands(t):
        b = vA + 2 * (t % 3); T, u = t // 4, t % 4
        e("v_and_b32_dpp v%d, v%d, v%d row_newbcast:%d row_mask:0xf bank_mask:0xf" % (b, vS + T, vM01, BC * u))
        e("v_and_b32_dpp v%d, v%d, v%d row_newbcast:%d row_mask:0xf bank_mask:0xf" % (b + 1, vS + T, vM23, BC * u))
    ands(0)
    for t in range(64):
        if t + 1 < 64: ands(t + 1)
        else: g.nop(2)
        if t % 4 == 0:
            e("s_waitcnt vmcnt(%d)" % min(63, 60 - t + t // 4))
        b = vA + 2 * (t % 3)
        e("v_mfma_f32_4x4x4_16b_bf16 v[%d:%d], v[%d:%d], a[%d:%d], v[%d:%d]" % (vACC, vACC + 3, b, b + 1, 4 * t, 4 * t + 1, vACC, vACC + 3))
        e("v_mfma_f32_4x4x4_16b_bf16 v[%d:%d], v[%d:%d], a[%d:%d], v[%d:%d]" % (vACC + 4, vACC + 7, b, b + 1, 4 * t + 2, 4 * t + 3, vACC + 4, vACC + 7))
        if t % 4 == 1:
            e("s_mov_b32 m0, s43")
            e("s_add_u32 s43, s43, 1024")
            e("buffer_load_dwordx4 v%d, s[%d:%d], s42 offen %slds" % (tv, sWT, sWT + 3, WNT))
            e("s_add_u32 s42, s42, %d" % rowb)
    e("s_branch L_pvdone")

def pv_n():
    g.lab("L_pvn")
    for i in range(8):
        e("v_mov_b32 v%d, 0" % (vACC + i))
    def ands(t):
        b = vA + 2 * (t % 3); T, u = t // 4, t % 4
        e("v_and_b32_dpp v%d, v%d, v%d row_newbcast:%d row_mask:0xf bank_mask:0xf" % (b, vS + T, vM01, BC * u))
        e("v_and_b32_dpp v%d, v%d, v%d row_newbcast:%d row_mask:0xf bank_mask:0xf" % (b + 1, vS + T, vM23, BC * u))
    e("s_waitcnt lgkmcnt(0)")
    ands(0)
    for t in range(64):
        if t + 1 < 64: ands(t + 1)
        else: g.nop(2)
        b = vA + 2 * (t % 3)
        r, n = ("a", 4 * t) if t < 44 else ("v", vK0 + 4 * (t - 44))
        e("v_mfma_f32_4x4x4_16b_bf16 v[%d:%d], v[%d:%d], %s[%d:%d], v[%d:%d]" % (vACC, vACC + 3, b, b + 1, r, n, n + 1, vACC, vACC + 3))
        e("v_mfma_f32_4x4x4_16b_bf16 v[%d:%d], v[%d:%d], %s[%d:%d], v[%d:%d]" % (vACC + 4, vACC + 7, b, b + 1, r, n + 2, n + 3, vACC + 4, vACC + 7))
    e("s_branch L_pvdone")

def qaddr(dst):
    e("s_mul_i32 s%d, s%d, %d" % (sT, sINV, Q_ST)); e("s_add_u32 s%d, s%d, %d" % (sT, sT, WS_Q))
    e("s_lshl_b32 s%d, s%d, 8" % (sT + 1, sH)); e("s_add_u32 s%d, s%d, s%d" % (sT, sT, sT + 1))
    e("v_and_b32 v%d, 15, v0" % dst); e("v_lshlrev_b32 v%d, 4, v%d" % (dst, dst))
    e("v_add_u32 v%d, s%d, v%d" % (dst, sT, dst))

def dots(T, par, from_kt):
    out = []
    for jj in range(4):
        for u in range(4):
            src = (vKT + 4 * u + jj) if from_kt else (vK0 + 4 * (4 * T + u) + jj)
            d = vD + 4 * par + u
            if jj == 0:
                out.append("v_dot2_f32_bf16 v%d, v%d, v%d, 0" % (d, src, vQ + jj))
            else:
                out.append("v_dot2c_f32_bf16 v%d, v%d, v%d" % (d, src, vQ + jj))
    return out
def red(T, par):
    d = vD + 4 * par; s = vS + T
    return [
        "v_add_f32_dpp v%d, v%d, v%d row_ror:8 row_mask:0xf bank_mask:0x3" % (vE, d, d),
        "v_add_f32_dpp v%d, v%d, v%d row_ror:8 row_mask:0xf bank_mask:0x3" % (vE + 1, d + 1, d + 1),
        "v_add_f32_dpp v%d, v%d, v%d row_ror:8 row_mask:0xf bank_mask:0xc" % (vE, d + 2, d + 2),
        "v_add_f32_dpp v%d, v%d, v%d row_ror:8 row_mask:0xf bank_mask:0xc" % (vE + 1, d + 3, d + 3),
        "v_add_f32_dpp v%d, v%d, v%d row_shl:4 row_mask:0xf bank_mask:0x5" % (s, vE, vE),
        "v_add_f32_dpp v%d, v%d, v%d row_shr:4 row_mask:0xf bank_mask:0xa" % (s, vE + 1, vE + 1),
        "v_add_f32_dpp v%d, v%d, v%d quad_perm:[1,0,3,2] row_mask:0xf bank_mask:0xf" % (s, s, s),
        "v_add_f32_dpp v%d, v%d, v%d quad_perm:[2,3,0,1] row_mask:0xf bank_mask:0xf" % (s, s, s),
    ]
def mqk_stream(tiles):
    vDD, vTT = 48, 60
    for u in (1, 2, 3):
        e("s_mov_b32 s%d, 0x%08x" % (30 + 2 * u, 0x11111111 << u)); e("s_mov_b32 s%d, 0x%08x" % (31 + 2 * u, 0x11111111 << u))
    def M(i):
        T, u, src, pre, post = tiles[i]
        d = vDD + 4 * (i % 3)
        return ["v_mfma_f32_4x4x4_16b_bf16 v[%d:%d], v[%d:%d], v[%d:%d], 0" % (d, d + 3, vQ, vQ + 1, src, src + 1),
                "v_mfma_f32_4x4x4_16b_bf16 v[%d:%d], v[%d:%d], v[%d:%d], v[%d:%d]" % (d, d + 3, vQ + 2, vQ + 3, src + 2, src + 3, d, d + 3)]
    def V(i):
        T, u, src, pre, post = tiles[i]
        d = vDD + 4 * (i % 3); s_ = vS + T
        o = [r for r in range(4) if r != u]
        qp = lambda r: "quad_perm:[%d,%d,%d,%d] row_mask:0xf bank_mask:0xf" % (r, r, r, r)
        out = ["v_add_f32_dpp v%d, v%d, v%d %s" % (vTT, d + o[0], d + u, qp(o[0])),
               "v_add_f32_dpp v%d, v%d, v%d %s" % (vTT, d + o[1], vTT, qp(o[1])),
               "v_add_f32_dpp v%d, v%d, v%d %s" % (s_ if u == 0 else vTT, d + o[2], vTT, qp(o[2]))]
        if u:
            out.append("v_cndmask_b32_e64 v%d, v%d, v%d, s[%d:%d]" % (s_, s_, vTT, 30 + 2 * u, 31 + 2 * u))
        return out
    def F(T, k):
        return "v_add_f32_dpp v%d, v%d, v%d row_ror:%d row_mask:0xf bank_mask:0xf" % (vS + T, vS + T, vS + T, 8 if k == 0 else 4)
    n = len(tiles)
    fin = None
    for i in range(n + 2):
        m = []
        if i < n:
            if tiles[i][3]: tiles[i][3]()
            m = M(i)
        v = V(i - 2) if i >= 2 else []
        if i >= n:
            g.nop(3)
        if i == 2:
            g.nop(3)
        if m: e(m[0])
        for x in v[:2]: e(x)
        if fin is not None:
            if not m: g.nop(2)
            e(F(fin, 0))
        if m and not v: g.nop(2)
        if m: e(m[1])
        for x in v[2:]: e(x)
        if fin is not None:
            g.nop(2)
            e(F(fin, 1)); fin = None
        if i < n and tiles[i][4]: tiles[i][4]()
        if i >= 2 and tiles[i - 2][1] == 3:
            fin = tiles[i - 2][0]
    g.nop(2); e(F(fin, 0)); g.nop(2); e(F(fin, 1)); g.nop(2)

def red_tail(prev):
    r = red(*prev)
    g.nop(3)
    for i, x in enumerate(r):
        e(x)
        if i >= 3: g.nop(2)
        elif i == 1: g.nop(1)

sRM = 45
RD = int(OPT.get("ringd", 20))
RQ = RD - 20
def ring_slot(n):
    j = n % RD
    return (True, LQ + j * 1024) if j < RQ else (False, (j - RQ) * 1024)
def ring_issue(n):
    srd = sK if n < 64 else sV
    if n == 64:
        e("s_mov_b32 s%d, 0x4000000" % sOFF)
    inq, off = ring_slot(n)
    e("s_add_u32 m0, s%d, %d" % (sM0B if inq else sRM, off))
    e("s_nop 0")
    e("buffer_load_dwordx4 v%d, s[%d:%d], s%d offen %slds" % (vKV, srd, srd + 3, sOFF, "" if OPT.get("ringnt0") else "nt "))
    e("s_add_u32 s%d, s%d, 4096" % (sOFF, sOFF))
def ring_wait(G):
    issued = min(128, RD + 4 * G)
    e("s_waitcnt vmcnt(%d)" % (issued - (4 * G + 4)))

def ring_k():
    g.lab("L_ring")
    e("s_mul_i32 s%d, s%d, 20480" % (sRM, sW)); e("s_add_u32 s%d, s%d, %d" % (sRM, sRM, RING))
    if OPT.get("gate"):
        e("v_lshlrev_b32 v%d, 4, v0" % (vT + 2)); e("v_add_u32 v%d, %d, v%d" % (vT + 2, WS_GO, vT + 2))
        e("s_mov_b32 exec_hi, 0")
        poll(lambda: e("global_load_dword v%d, v%d, s[%d:%d] sc1" % (vT + 3, vT + 2, sWS, sWS + 1)), [vT + 3], vT)
        e("s_mov_b64 exec, -1")
    e("s_mov_b32 s%d, 0x4000000" % sOFF)
    for n in range(RD):
        ring_issue(n)
    q2_read()
    e("s_waitcnt lgkmcnt(0)")
    ts_dyn(8)
    ra = vT + 3
    rq = vT + 4
    e("v_lshlrev_b32 v%d, 4, v0" % ra); e("v_add_u32 v%d, s%d, v%d" % (rq, sM0B, ra)); e("v_add_u32 v%d, s%d, v%d" % (ra, sRM, ra))
    if MQK:
        tiles = []
        for G in range(16):
            def pre(G=G):
                ring_wait(G)
                for u in range(4):
                    inq, off = ring_slot(4 * G + u)
                    e("ds_read_b128 v[%d:%d], v%d offset:%d" % (vKT + 4 * u, vKT + 4 * u + 3, rq if inq else ra, off))
                e("s_waitcnt lgkmcnt(0)")
                for u in range(4):
                    ring_issue(4 * G + u + RD)
            for u in range(4):
                tiles.append((G, u, vKT + 4 * u, pre if u == 0 else None, None))
        mqk_stream(tiles)
        e("s_mov_b32 s%d, 1" % sRING)
        e("s_branch L_softmax")
        return
    prev = None
    for G in range(16):
        par = G % 2
        ring_wait(G)
        for u in range(4):
            inq, off = ring_slot(4 * G + u)
            e("ds_read_b128 v[%d:%d], v%d offset:%d" % (vKT + 4 * u, vKT + 4 * u + 3, rq if inq else ra, off))
        if prev is not None:
            r = red(*prev)
            for i, x in enumerate(r):
                e(x)
                if i >= 3: g.nop(2)
                elif i == 1: g.nop(1)
        e("s_waitcnt lgkmcnt(0)")
        for u in range(4):
            ring_issue(4 * G + u + RD)
        for x in dots(G, par, True): e(x)
        g.nop(3)
        prev = (G, par)
    red_tail(prev)
    e("s_mov_b32 s%d, 1" % sRING)
    e("s_branch L_softmax")

def ring_pv():
    g.lab("L_pvring")
    e("s_mov_b32 s%d, 0" % sRING)
    VT = [46, 50, 54, 60]
    ra = 44; rq = 45
    e("v_lshlrev_b32 v%d, 4, v0" % ra); e("v_add_u32 v%d, s%d, v%d" % (rq, sM0B, ra)); e("v_add_u32 v%d, s%d, v%d" % (ra, sRM, ra))
    for i in range(8):
        e("v_mov_b32 v%d, 0" % (vACC + i))
    def ands(t):
        b = vA + 2 * (t % 2); T, u = t // 4, t % 4
        e("v_and_b32_dpp v%d, v%d, v%d row_newbcast:%d row_mask:0xf bank_mask:0xf" % (b, vS + T, vM01, BC * u))
        e("v_and_b32_dpp v%d, v%d, v%d row_newbcast:%d row_mask:0xf bank_mask:0xf" % (b + 1, vS + T, vM23, BC * u))
    for G in range(16, 32):
        ring_wait(G)
        for u in range(4):
            inq, off = ring_slot(4 * G + u)
            e("ds_read_b128 v[%d:%d], v%d offset:%d" % (VT[u], VT[u] + 3, rq if inq else ra, off))
        t0 = 4 * (G - 16)
        ands(t0)
        e("s_waitcnt lgkmcnt(0)")
        for u in range(4):
            if 4 * G + u + RD < 128:
                ring_issue(4 * G + u + RD)
        for u in range(4):
            t = t0 + u
            if u < 3: ands(t + 1)
            else: g.nop(2)
            b = vA + 2 * (t % 2)
            e("v_mfma_f32_4x4x4_16b_bf16 v[%d:%d], v[%d:%d], v[%d:%d], v[%d:%d]" % (vACC, vACC + 3, b, b + 1, VT[u], VT[u] + 1, vACC, vACC + 3))
            e("v_mfma_f32_4x4x4_16b_bf16 v[%d:%d], v[%d:%d], v[%d:%d], v[%d:%d]" % (vACC + 4, vACC + 7, b, b + 1, VT[u] + 2, VT[u] + 3, vACC + 4, vACC + 7))
    if RQ:
        e("s_mov_b32 s%d, %d" % (sOFF, 48 * 4096))
        for t in range(48, 48 + RQ):
            kload(t)
    e("s_branch L_pvdone")

def att_core():
    g.lab("L_att")
    qaddr(vT + 2)
    fpoll(lambda: e("global_load_dwordx4 v[%d:%d], v%d, s[%d:%d] sc1" % (vQ, vQ + 3, vT + 2, sWS, sWS + 1)), 1, [vQ, vQ + 1, vQ + 2, vQ + 3], vT)
    g.lab("L_qk")
    ts_dyn(8)
    e("v_lshlrev_b32 v%d, 4, v0" % (vT + 3)); e("v_add_u32 v%d, s%d, v%d" % (vT + 3, sM0B, vT + 3))
    order = []
    for j in range(4):
        order += [3 * j, 3 * j + 1, 3 * j + 2, 12 + j]
    def ldsread(j):
        return ["ds_read_b128 v[%d:%d], v%d offset:%d" % (vKT + 4 * u, vKT + 4 * u + 3, vT + 3, LQ + (4 * j + u) * 1024) for u in range(4)]
    def qk_m(reload):
        for x in ldsread(0): e(x)
        tiles = []
        for n, T in enumerate(order):
            for u in range(4):
                pre = post = None
                if T >= 12 and u == 0:
                    pre = lambda: e("s_waitcnt lgkmcnt(0)")
                if u == 3:
                    def post(n=n, T=T):
                        if T >= 12 and T < 15:
                            for x in ldsread(T - 12 + 1): e(x)
                        if reload:
                            if n >= 13: e("s_waitcnt vmcnt(58)")
                            for uu in range(4):
                                t = 4 * T + uu
                                e("s_mov_b32 s%d, 0x%x" % (sOFF, 0x4000000 + t * 4096))
                                if t < 48:
                                    e("buffer_load_dwordx4 v[%d:%d], v%d, s[%d:%d], s%d offen nt" % (vK0 + 4 * t, vK0 + 4 * t + 3, vKV, sK, sK + 3, sOFF))
                                else:
                                    e("s_add_u32 m0, s%d, %d" % (sM0B, LQ + (t - 48) * 1024))
                                    e("s_nop 0")
                                    e("buffer_load_dwordx4 v%d, s[%d:%d], s%d offen nt lds" % (vKV, sK, sK + 3, sOFF))
                tiles.append((T, u, (vKT + 4 * u) if T >= 12 else (vK0 + 4 * (4 * T + u)), pre, post))
        mqk_stream(tiles)
    def qk(reload):
        if MQK: return qk_m(reload)
        for x in ldsread(0): e(x)
        prev = None
        for n, T in enumerate(order):
            par = n % 2
            if T >= 12:
                e("s_waitcnt lgkmcnt(0)")
            main = dots(T, par, T >= 12)
            side = red(*prev) if prev is not None else []
            for x in interleave(main, side, 2): e(x)
            if T >= 12 and T < 15:
                for x in ldsread(T - 12 + 1): e(x)
            if reload:
                if n >= 13: e("s_waitcnt vmcnt(58)")
                for u in range(4):
                    t = 4 * T + u
                    e("s_mov_b32 s%d, 0x%x" % (sOFF, 0x4000000 + t * 4096))
                    if t < 48:
                        e("buffer_load_dwordx4 v[%d:%d], v%d, s[%d:%d], s%d offen nt" % (vK0 + 4 * t, vK0 + 4 * t + 3, vKV, sK, sK + 3, sOFF))
                    else:
                        e("s_add_u32 m0, s%d, %d" % (sM0B, LQ + (t - 48) * 1024))
                        e("s_nop 0")
                        e("buffer_load_dwordx4 v%d, s[%d:%d], s%d offen nt lds" % (vKV, sK, sK + 3, sOFF))
            prev = (T, par)
        red_tail(prev)
    if QKC:
        nqc = g.newlab("L_nqc")
        e("s_cmp_eq_u32 s%d, 1" % sINV); e("s_cbranch_scc0 %s" % nqc)
        e("s_cmp_eq_u32 s%d, 0" % sCLS); e("s_cbranch_scc0 %s" % nqc)
        qk(True)
        e("s_mov_b32 s%d, 0x4000000" % sBO)
        e("s_mov_b32 s%d, 1" % sLKM)
        e("s_branch L_softmax")
        g.lab(nqc)
    qk(False)
    if KEEPV:
        assert RD == 20 and not SN
        nk = g.newlab("L_nkv")
        e("s_cmp_eq_u32 s%d, 2" % sLKM); e("s_cbranch_scc0 %s" % nk)
        e("s_mul_i32 s%d, s%d, 20480" % (sT, sW)); e("s_add_u32 s%d, s%d, %d" % (sT, sT, RING))
        e("v_lshlrev_b32 v%d, 4, v0" % (vT + 2)); e("v_add_u32 v%d, s%d, v%d" % (vT + 2, sT, vT + 2))
        for t in range(44, 64):
            if t == 56: e("s_waitcnt lgkmcnt(0)")
            e("ds_read_b128 v[%d:%d], v%d offset:%d" % (vK0 + 4 * (t - 44), vK0 + 4 * (t - 44) + 3, vT + 2, ((64 + t) % 20) * 1024))
        e("s_branch L_softmax")
        g.lab(nk)
    nl = g.newlab("L_nolk")
    e("s_cmp_eq_u32 s%d, 1" % sINV)
    e("s_cbranch_scc0 %s" % nl)
    e("s_cmp_eq_u32 s%d, 0" % sCLS)
    e("s_cbranch_scc0 %s" % nl)
    e("s_mov_b32 s%d, 0x4000000" % sBO)
    e("s_mov_b32 s%d, 1" % sLKM)
    e("s_branch L_lka")
    g.lab(nl)
    g.lab("L_softmax")
    m = vT; t1 = vT + 2
    e("v_max3_f32 v%d, v%d, v%d, v%d" % (m, vS, vS + 1, vS + 2))
    for i in range(3, 15, 2):
        e("v_max3_f32 v%d, v%d, v%d, v%d" % (m, m, vS + i, vS + i + 1))
    e("v_max_f32 v%d, v%d, v%d" % (m, m, vS + 15))
    g.nop(2)
    R1, R2 = ("quad_perm:[1,0,3,2]", "quad_perm:[2,3,0,1]") if MQK else ("row_ror:4", "row_ror:8")
    e("v_max_f32_dpp v%d, v%d, v%d %s row_mask:0xf bank_mask:0xf" % (m, m, m, R1)); g.nop(2)
    e("v_max_f32_dpp v%d, v%d, v%d %s row_mask:0xf bank_mask:0xf" % (m, m, m, R2))
    e("v_mov_b32 v%d, v%d" % (t1, m)); g.nop(2)
    e("v_permlane16_swap_b32 v%d, v%d" % (m, t1)); e("v_max_f32 v%d, v%d, v%d" % (m, m, t1))
    e("v_mov_b32 v%d, v%d" % (t1, m)); g.nop(2)
    e("v_permlane32_swap_b32 v%d, v%d" % (m, t1)); e("v_max_f32 v%d, v%d, v%d" % (m, m, t1))
    e("v_mul_f32 v%d, s%d, v%d" % (m, sC, m))
    for i in range(16):
        e("v_fma_f32 v%d, v%d, s%d, -v%d" % (vS + i, vS + i, sC, m))
    for i in range(16):
        e("v_exp_f32 v%d, v%d" % (vS + i, vS + i))
    l = vT + 1
    e("v_add_f32 v%d, v%d, v%d" % (l, vS, vS + 1))
    for i in range(2, 16):
        e("v_add_f32 v%d, v%d, v%d" % (l, l, vS + i))
    for i in range(16):
        e("v_cvt_pk_bf16_f32 v%d, v%d, v%d" % (vS + i, vS + i, vS + i))
    e("v_add_f32_dpp v%d, v%d, v%d %s row_mask:0xf bank_mask:0xf" % (l, l, l, R1)); g.nop(2)
    e("v_add_f32_dpp v%d, v%d, v%d %s row_mask:0xf bank_mask:0xf" % (l, l, l, R2))
    e("v_mov_b32 v%d, v%d" % (t1, l)); g.nop(2)
    e("v_permlane16_swap_b32 v%d, v%d" % (l, t1)); e("v_add_f32 v%d, v%d, v%d" % (l, l, t1))
    e("v_mov_b32 v%d, v%d" % (t1, l)); g.nop(2)
    e("v_permlane32_swap_b32 v%d, v%d" % (l, t1)); e("v_add_f32 v%d, v%d, v%d" % (l, l, t1))
    e("s_cmp_eq_u32 s%d, 1" % sRING)
    e("s_cbranch_scc1 L_pvring")
    if KEEPV:
        e("s_cmp_eq_u32 s%d, 2" % sLKM)
        e("s_cbranch_scc1 L_pvn")
    e("s_cmp_eq_u32 s%d, 1" % sLKM)
    e("s_cbranch_scc0 L_pvstd")
    if not EARLY1:
        e("s_cmp_eq_u32 s%d, 1" % sINV)
        e("s_cbranch_scc1 L_pvc")
    g.lab("L_pvstd")
    nwl = g.newlab("L_nowl")
    e("s_cmp_eq_u32 s%d, 1" % sLAX)
    e("s_cbranch_scc0 %s" % nwl)
    w2l = g.newlab("L_w2l"); w3l = g.newlab("L_w3l")
    e("s_cmp_eq_u32 s%d, 2" % sROLE); e("s_cbranch_scc1 %s" % w2l)
    e("s_cmp_eq_u32 s%d, 3" % sROLE); e("s_cbranch_scc1 %s" % w3l)
    if not OPT.get("nopvw"):
        e("s_branch L_pvw")
    e("s_lshl_b32 s44, s%d, 9" % sKS)
    e("s_lshl_b32 s45, s%d, 7" % sGRP)
    gemv64_wload(16, 1280, 44, 45, vT=48)
    e("s_branch %s" % nwl)
    g.lab(w2l)
    gemv64_wload(20, 3456, None, sGRP, vT=48)
    e("s_branch %s" % nwl)
    g.lab(w3l)
    s3_wload(vT=48)
    g.lab(nwl)
    e("s_cmp_eq_u32 s%d, 1" % sLAX)
    e("s_cselect_b64 vcc, -1, 0")
    e("s_mov_b32 s%d, 0" % sLAX)
    for i in range(8):
        e("v_mov_b32 v%d, 0" % (vACC + i))
    def ands(t):
        b = vA + 2 * (t % 3); T, u = t // 4, t % 4
        e("v_and_b32_dpp v%d, v%d, v%d row_newbcast:%d row_mask:0xf bank_mask:0xf" % (b, vS + T, vM01, BC * u))
        e("v_and_b32_dpp v%d, v%d, v%d row_newbcast:%d row_mask:0xf bank_mask:0xf" % (b + 1, vS + T, vM23, BC * u))
    e("s_bitcmp1_b32 s%d, 0" % sINV)
    ands(0)
    for t in range(64):
        if t + 1 < 64:
            ands(t + 1)
        else:
            g.nop(2)
        if t % 4 == 0:
            lab = g.newlab("L_nw")
            e("s_cbranch_scc1 %s" % lab)
            if 60 - t + NWMIN < 63:
                e("s_waitcnt vmcnt(%d)" % (60 - t + NWMIN))
            e("s_cbranch_vccnz %s" % lab)
            e("s_waitcnt vmcnt(%d)" % (60 - t))
            g.lab(lab)
        b = vA + 2 * (t % 3)
        e("v_mfma_f32_4x4x4_16b_bf16 v[%d:%d], v[%d:%d], a[%d:%d], v[%d:%d]" % (vACC, vACC + 3, b, b + 1, 4 * t, 4 * t + 1, vACC, vACC + 3))
        e("v_mfma_f32_4x4x4_16b_bf16 v[%d:%d], v[%d:%d], a[%d:%d], v[%d:%d]" % (vACC + 4, vACC + 7, b, b + 1, 4 * t + 2, 4 * t + 3, vACC + 4, vACC + 7))
    g.lab("L_pvdone")
    g.nop(5)
    for i in range(4):
        e("v_permlane32_swap_b32 v%d, v%d" % (vACC + i, vACC + 4 + i))
    for i in range(4):
        e("v_add_f32 v%d, v%d, v%d" % (vACC + i, vACC + i, vACC + 4 + i))
    g.nop(1)
    e("v_permlane16_swap_b32 v%d, v%d" % (vACC, vACC + 1))
    e("v_permlane16_swap_b32 v%d, v%d" % (vACC + 2, vACC + 3))
    e("v_add_f32 v%d, v%d, v%d" % (vACC, vACC, vACC + 1))
    e("v_add_f32 v%d, v%d, v%d" % (vACC + 2, vACC + 2, vACC + 3))
    e("s_mul_i32 s%d, s%d, %d" % (sT, sPAR, COMB_ST)); e("s_add_u32 s%d, s%d, %d" % (sT, sT, COMB))
    e("s_xor_b32 s%d, s%d, 1" % (sPAR, sPAR))
    e("s_lshl_b32 s%d, s%d, 9" % (sT + 1, sW)); e("s_add_u32 s%d, s%d, s%d" % (sT + 1, sT + 1, sT))
    e("v_and_b32 v%d, 15, v0" % t1); e("v_lshlrev_b32 v%d, 5, v%d" % (t1, t1))
    e("v_lshrrev_b32 v%d, 5, v0" % (vT + 3)); e("v_lshl_add_u32 v%d, v%d, 4, v%d" % (t1, vT + 3, t1))
    e("v_bfe_u32 v%d, v0, 4, 1" % (vT + 3)); e("v_lshl_add_u32 v%d, v%d, 2, v%d" % (t1, vT + 3, t1))
    e("v_add_u32 v%d, s%d, v%d" % (t1, sT + 1, t1))
    e("ds_write2_b32 v%d, v%d, v%d offset0:0 offset1:2" % (t1, vACC, vACC + 2))
    e("s_lshl_b32 s%d, s%d, 3" % (sT + 1, sW)); e("s_add_u32 s%d, s%d, s%d" % (sT + 1, sT + 1, sT))
    e("v_mov_b32 v%d, s%d" % (t1, sT + 1))
    e("v_mov_b32 v%d, v%d" % (vT + 4, m)); e("v_mov_b32 v%d, v%d" % (vT + 5, l))
    e("s_mov_b64 exec, 1")
    e("ds_write_b64 v%d, v[%d:%d] offset:2048" % (t1, vT + 4, vT + 5))
    e("s_mov_b64 exec, -1")
    e("s_waitcnt lgkmcnt(0)")
    e("s_barrier")
    nw = g.newlab("L_npub")
    e("s_cmp_lg_u32 s%d, 0" % sW)
    e("s_cbranch_scc1 %s" % nw)
    e("v_and_b32 v%d, 31, v0" % t1); e("v_lshlrev_b32 v%d, 4, v%d" % (t1, t1)); e("v_add_u32 v%d, s%d, v%d" % (t1, sT, t1))
    for w in range(4):
        e("ds_read_b128 v[%d:%d], v%d offset:%d" % (16 + 4 * w, 19 + 4 * w, t1, w * 512))
    e("v_mov_b32 v%d, s%d" % (vT + 3, sT))
    e("ds_read_b128 v[40:43], v%d offset:2048" % (vT + 3))
    e("ds_read_b128 v[44:47], v%d offset:2064" % (vT + 3))
    e("s_waitcnt lgkmcnt(0)")
    e("v_max_f32 v32, v40, v42"); e("v_max3_f32 v32, v32, v44, v46")
    for w, r in enumerate((40, 42, 44, 46)):
        e("v_sub_f32 v%d, v%d, v32" % (r, r))
    for r in (40, 42, 44, 46):
        e("v_exp_f32 v%d, v%d" % (r, r))
    e("s_nop 0")
    for d in range(4): e("v_mul_f32 v%d, v%d, v40" % (36 + d, 16 + d))
    e("v_mul_f32 v33, v41, v40")
    for w, r in ((1, 42), (2, 44), (3, 46)):
        for d in range(4): e("v_fmac_f32 v%d, v%d, v%d" % (36 + d, 16 + 4 * w + d, r))
        e("v_fmac_f32 v33, v%d, v%d" % (r + 1, r))
    e("s_mul_i32 s%d, s%d, %d" % (sT, sINV, OA_ST))
    e("s_lshl_b32 s%d, s%d, 12" % (sT + 1, sH)); e("s_add_u32 s%d, s%d, s%d" % (sT, sT, sT + 1))
    e("s_lshl_b32 s%d, s%d, 9" % (sT + 1, sS)); e("s_add_u32 s%d, s%d, s%d" % (sT, sT, sT + 1))
    e("v_lshlrev_b32 v%d, 4, v0" % t1); e("v_add_u32 v%d, s%d, v%d" % (t1, sT, t1))
    e("s_mov_b32 exec_hi, 0")
    e("global_store_dwordx4 v%d, v[36:39], s[%d:%d] sc1" % (t1, sWS, sWS + 1))
    e("s_mov_b64 exec, -1")
    e("s_mul_i32 s%d, s%d, %d" % (sT, sINV, ML_ST)); e("s_add_u32 s%d, s%d, %d" % (sT, sT, WS_ML))
    e("s_lshl_b32 s%d, s%d, 6" % (sT + 1, sH)); e("s_add_u32 s%d, s%d, s%d" % (sT, sT, sT + 1))
    e("s_and_b32 s%d, s%d, 1" % (sT + 1, sS)); e("s_lshl_b32 s%d, s%d, 5" % (sT + 1, sT + 1)); e("s_add_u32 s%d, s%d, s%d" % (sT, sT, sT + 1))
    e("s_lshr_b32 s%d, s%d, 1" % (sT + 1, sS)); e("s_lshl_b32 s%d, s%d, 3" % (sT + 1, sT + 1)); e("s_add_u32 s%d, s%d, s%d" % (sT, sT, sT + 1))
    e("v_mov_b32 v%d, s%d" % (t1, sT))
    e("s_mov_b64 exec, 1")
    e("global_store_dwordx2 v%d, v[32:33], s[%d:%d] sc1" % (t1, sWS, sWS + 1))
    e("s_mov_b64 exec, -1")
    g.lab(nw)
    ts_dyn(16)
    e("s_cmp_eq_u32 s%d, 0" % sCLS)
    e("s_cbranch_scc0 L_disp")
    e("s_cmp_eq_u32 s%d, 1" % sINV)
    e("s_cbranch_scc1 L_mid2")
    if (not OPT.get("wearly")):
        e("s_cmp_eq_u32 s%d, 0" % sINV)
        e("s_cbranch_scc1 L_wload")
    e("s_branch L_disp")

def s1_block():
    g.lab("L_s1")
    nwo = g.newlab("L_nwo")
    e("s_cmp_eq_u32 s%d, 2" % sCLS); e("s_cbranch_scc0 %s" % nwo)
    e("s_lshl_b32 s44, s%d, 9" % sKS)
    e("s_lshl_b32 s45, s%d, 7" % sGRP)
    gemv64_wload(16, 1280, 44, 45, vT=48)
    g.lab(nwo)
    s1_consts()
    e("s_mul_i32 s%d, s%d, %d" % (sT, sINV, OA_ST)); e("v_add_u32 v50, s%d, v%d" % (sT, vRA))
    e("s_mul_i32 s%d, s%d, %d" % (sT, sINV, ML_ST)); e("s_add_u32 s%d, s%d, %d" % (sT, sT, WS_ML)); e("v_add_u32 v51, s%d, v%d" % (sT, vRB))
    def issue():
        for i in range(4):
            e("global_load_dwordx4 v[%d:%d], v50, s[%d:%d] offset:%d sc1" % (16 + 4 * i, 19 + 4 * i, sWS, sWS + 1, i * 1024))
        e("global_load_dwordx4 v[32:35], v51, s[%d:%d] sc1" % (sWS, sWS + 1))
        e("global_load_dwordx4 v[36:39], v51, s[%d:%d] offset:16 sc1" % (sWS, sWS + 1))
    if OPT.get("s1dma"):
        SO = LP + 65536; SM = LM + 0x2800
        PS = int(OPT.get("pps", 2))
        e("s_lshl_b32 s42, s%d, 12" % sW); e("s_add_u32 s42, s42, %d" % SO)
        e("s_lshl_b32 s43, s%d, 6" % sW); e("s_add_u32 s43, s43, %d" % SM)
        for i in range(1, 4): e("v_add_u32 v%d, %d, v50" % (51 + i, i * 1024))
        e("v_lshrrev_b32 v55, 5, v0"); e("v_lshlrev_b32 v55, 5, v55")
        e("v_sub_u32 v51, v51, v55")
        e("v_and_b32 v56, 3, v0"); e("v_lshl_add_u32 v51, v56, 4, v51")
        e("v_add_u32 v55, s43, v55")
        e("v_lshlrev_b32 v56, 4, v0"); e("v_add_u32 v56, s42, v56")
        def dissue():
            for i in range(4):
                e("s_add_u32 m0, s42, %d" % (i * 1024))
                e("s_nop 0")
                e("global_load_lds_dwordx4 v%d, s[%d:%d] sc1" % (50 if i == 0 else 51 + i, sWS, sWS + 1))
            e("s_mov_b32 m0, s43")
            e("s_mov_b64 exec, 15")
            e("global_load_lds_dwordx4 v51, s[%d:%d] sc1" % (sWS, sWS + 1))
            e("s_mov_b64 exec, -1")
        top = g.newlab("L_dp"); again = g.newlab("L_da"); done = g.newlab("L_dd"); chk = g.newlab("L_dc")
        e("s_mov_b32 s%d, 0" % sSPIN)
        dissue()
        e("s_waitcnt vmcnt(0)")
        e("s_branch %s" % chk)
        g.lab(top)
        e("s_waitcnt vmcnt(25)")
        dissue()
        g.lab(chk)
        for i in range(4):
            e("ds_read_b128 v[%d:%d], v56 offset:%d" % (16 + 4 * i, 19 + 4 * i, i * 1024))
        e("ds_read_b128 v[32:35], v55"); e("ds_read_b128 v[36:39], v55 offset:16")
        e("s_waitcnt lgkmcnt(0)")
        sentinel_check(list(range(16, 40)), again, vT)
        e("s_branch %s" % done)
        g.lab(again)
        e("s_add_u32 s%d, s%d, 1" % (sSPIN, sSPIN))
        e("s_cmp_ge_u32 s%d, %d" % (sSPIN, SPIN * 4))
        e("s_cbranch_scc1 %s" % done)
        e("s_and_b32 s%d, s%d, %d" % (sT, sSPIN, PS - 1))
        e("s_cmp_eq_u32 s%d, 0" % sT)
        e("s_cbranch_scc1 %s" % top)
        e("s_branch %s" % chk)
        g.lab(done)
    else:
        poll(issue, list(range(16, 40)), vT)
    ts_dyn(8)
    if OPT.get("gate"):
        ng = g.newlab("L_nogo")
        e("s_cmp_eq_u32 s%d, 0" % sINV); e("s_cbranch_scc0 %s" % ng)
        e("s_cmp_eq_u32 s%d, 0" % sGRP); e("s_cbranch_scc0 %s" % ng)
        e("s_lshl_b32 s%d, s%d, 2" % (sT, sKS)); e("s_add_u32 s%d, s%d, s%d" % (sT, sT, sW)); e("s_lshl_b32 s%d, s%d, 4" % (sT, sT))
        e("s_add_u32 s%d, s%d, %d" % (sT, sT, WS_GO))
        e("v_mov_b32 v48, s%d" % sT)
        for i in range(4): e("v_mov_b32 v%d, 0" % (52 + i))
        e("s_mov_b64 exec, 1")
        e("global_store_dwordx4 v48, v[52:55], s[%d:%d] sc1" % (sWS, sWS + 1))
        e("s_mov_b64 exec, -1")
        g.lab(ng)
    e("v_max_f32 v40, v32, v34"); e("v_max3_f32 v40, v40, v36, v38")
    e("v_mov_b32 v41, v40"); g.nop(2)
    e("v_permlane32_swap_b32 v40, v41"); e("v_max_f32 v40, v40, v41")
    for r in (32, 34, 36, 38): e("v_sub_f32 v%d, v%d, v40" % (r, r))
    for r in (32, 34, 36, 38): e("v_exp_f32 v%d, v%d" % (r, r))
    e("s_nop 0")
    e("v_mul_f32 v42, v33, v32")
    for r in (34, 36, 38): e("v_fmac_f32 v42, v%d, v%d" % (r + 1, r))
    for d in range(4): e("v_mul_f32 v%d, v%d, v32" % (44 + d, 16 + d))
    for i, r in ((1, 34), (2, 36), (3, 38)):
        for d in range(4): e("v_fmac_f32 v%d, v%d, v%d" % (44 + d, 16 + 4 * i + d, r))
    e("v_mov_b32 v43, v42"); g.nop(2)
    e("v_permlane32_swap_b32 v42, v43")
    e("v_permlane32_swap_b32 v44, v45")
    e("v_permlane32_swap_b32 v46, v47")
    e("v_add_f32 v42, v42, v43"); e("v_add_f32 v44, v44, v45"); e("v_add_f32 v46, v46, v47")
    e("v_rcp_f32 v42, v42"); e("s_nop 0")
    e("v_mul_f32 v44, v44, v42"); e("v_mul_f32 v46, v46, v42")
    e("v_cvt_pk_bf16_f32 v44, v44, v44"); e("v_cvt_pk_bf16_f32 v46, v46, v46")
    e("ds_write2_b32 v%d, v44, v46 offset0:0 offset1:2" % vPW)
    e("s_waitcnt lgkmcnt(0)")
    gemv64(16)
    e("s_waitcnt lgkmcnt(0)")
    e("s_barrier")
    ts_dyn(16)
    lab = g.newlab("L_s1w")
    e("s_cmp_lg_u32 s%d, 0" % sW); e("s_cbranch_scc1 %s" % lab)
    final_col_sum(30, False)
    e("s_mul_i32 s%d, s%d, %d" % (sT, sINV, PB_ST)); e("s_add_u32 s%d, s%d, %d" % (sT, sT, WS_PB))
    e("s_mul_i32 s%d, s%d, 2560" % (sT + 1, sKS)); e("s_add_u32 s%d, s%d, s%d" % (sT, sT, sT + 1))
    e("s_lshl_b32 s%d, s%d, 8" % (sT + 1, sGRP)); e("s_add_u32 s%d, s%d, s%d" % (sT, sT, sT + 1))
    e("v_add_u32 v%d, s%d, v%d" % (vT, sT, vT))
    for q in range(4):
        e("v_mov_b32_dpp v%d, v30 quad_perm:[%d,%d,%d,%d] row_mask:0xf bank_mask:0xf" % (32 + q, q, q, q, q))
    e("s_mov_b32 exec_lo, 0x11111111"); e("s_mov_b32 exec_hi, 0x11111111")
    e("global_store_dwordx4 v%d, v[32:35], s[%d:%d] sc1" % (vT, sWS, sWS + 1))
    e("s_mov_b64 exec, -1")
    g.lab(lab)
    nr = g.newlab("L_s1nr")
    e("s_cmp_eq_u32 s%d, 1" % sHAS4); e("s_cbranch_scc0 %s" % nr)
    e("s_cmp_lt_u32 s%d, %d" % (sINV, 3 if SN else 2)); e("s_cbranch_scc0 %s" % nr)
    e("s_lshl_b32 s45, s%d, 7" % sJ)
    gemv64_wload(20, 8192, None, 45, vT=16, srd=sWQ)
    g.lab(nr)
    e("s_barrier")
    e("s_branch L_disp")

def s2_block():
    g.lab("L_s2")
    nc = g.newlab("L_s2nc")
    e("s_cmp_lg_u32 s%d, 0" % sINV); e("s_cbranch_scc1 %s" % nc)
    ts(24)
    e("s_waitcnt vmcnt(0)")
    ts(25)
    colsum(20)
    ts(26)
    g.lab(nc)
    e("s_mul_i32 s%d, s%d, %d" % (sT, sINV, PB_ST)); e("s_add_u32 s%d, s%d, %d" % (sT, sT, WS_PB))
    e("v_add_u32 v52, s%d, v%d" % (sT, vRA))
    for k in range(1, 4): e("v_add_u32 v%d, %d, v52" % (52 + k, 5120 * k))
    odd = g.newlab("L_s2odd"); got = g.newlab("L_s2got")
    e("s_and_b32 s%d, s%d, 1" % (sT, sINV)); e("s_cmp_eq_u32 s%d, 1" % sT); e("s_cbranch_scc1 %s" % odd)
    e("s_lshr_b32 s%d, s%d, 1" % (sT, sINV)); e("s_mul_i32 s%d, s%d, 1280" % (sT, sT))
    e("v_add_u32 v50, s%d, v%d" % (sT, vRB))
    e("global_load_dwordx2 v[48:49], v50, s[%d:%d]" % (sX, sX + 1))
    e("s_branch %s" % got)
    g.lab(odd)
    e("s_sub_u32 s%d, s%d, 1" % (sT, sINV)); e("s_mul_i32 s%d, s%d, %d" % (sT, sT, X2_ST)); e("s_add_u32 s%d, s%d, %d" % (sT, sT, WS_X2))
    x2_replica()
    e("v_add_u32 v50, s%d, v%d" % (sT, vRB))
    poll(lambda: e("global_load_dwordx2 v[48:49], v50, s[%d:%d] sc1" % (sWS, sWS + 1)), [48, 49], vT)
    g.lab(got)
    def issue():
        for ks in range(8):
            e("global_load_dwordx4 v[%d:%d], v%d, s[%d:%d] offset:%d sc1" % (16 + 4 * ks, 19 + 4 * ks, 52 + ks // 2, sWS, sWS + 1, (ks % 2) * 2560))
    poll(issue, list(range(16, 48)), vT)
    ts_dyn(8)
    for d in range(4):
        e("v_add_f32 v%d, v%d, v%d" % (16 + d, 16 + d, 20 + d)); e("v_add_f32 v%d, v%d, v%d" % (24 + d, 24 + d, 28 + d))
        e("v_add_f32 v%d, v%d, v%d" % (32 + d, 32 + d, 36 + d)); e("v_add_f32 v%d, v%d, v%d" % (40 + d, 40 + d, 44 + d))
    for d in range(4):
        e("v_add_f32 v%d, v%d, v%d" % (16 + d, 16 + d, 24 + d)); e("v_add_f32 v%d, v%d, v%d" % (32 + d, 32 + d, 40 + d))
    for d in range(4):
        e("v_add_f32 v%d, v%d, v%d" % (16 + d, 16 + d, 32 + d))
    for d in range(4): round_bf16(16 + d)
    e("v_lshlrev_b32 v20, 16, v48"); e("v_and_b32 v21, 0xffff0000, v48")
    e("v_lshlrev_b32 v22, 16, v49"); e("v_and_b32 v23, 0xffff0000, v49")
    for d in range(4): e("v_add_f32 v%d, v%d, v%d" % (16 + d, 16 + d, 20 + d))
    for d in range(4): round_bf16(16 + d)
    nx = g.newlab("L_s2nx")
    e("s_cmp_lg_u32 s%d, 0" % sJ); e("s_cbranch_scc1 %s" % nx)
    e("v_cvt_pk_bf16_f32 v20, v16, v17"); e("v_cvt_pk_bf16_f32 v21, v18, v19")
    e("s_mul_i32 s%d, s%d, %d" % (sT, sINV, X1_ST)); e("s_add_u32 s%d, s%d, %d" % (sT, sT, WS_X1))
    e("v_add_u32 v50, s%d, v%d" % (sT, vRB))
    e("global_store_dwordx2 v50, v[20:21], s[%d:%d] sc1" % (sWS, sWS + 1))
    g.lab(nx)
    x_to_p_and_stats(16)
    gemv64(20)
    e("s_waitcnt lgkmcnt(0)")
    e("s_barrier")
    ts_dyn(16)
    lab = g.newlab("L_s2w")
    e("s_cmp_lg_u32 s%d, 0" % sW); e("s_cbranch_scc1 %s" % lab)
    final_col_sum(30, True)
    round_bf16(30)
    e("v_mul_f32 v31, 0xbfb8aa3b, v30")
    e("v_exp_f32 v31, v31"); e("s_nop 0")
    e("v_add_f32 v31, 1.0, v31")
    e("v_rcp_f32 v31, v31"); e("s_nop 0")
    e("v_mul_f32 v30, v30, v31")
    pack8(30, 32)
    e("s_mul_i32 s%d, s%d, %d" % (sT, sINV, H_ST)); e("s_add_u32 s%d, s%d, %d" % (sT, sT, WS_H))
    e("s_lshl_b32 s%d, s%d, 7" % (sT + 1, sJ)); e("s_add_u32 s%d, s%d, s%d" % (sT, sT, sT + 1))
    e("v_lshlrev_b32 v%d, 1, v0" % vT); e("v_add_u32 v%d, s%d, v%d" % (vT, sT, vT))
    exec8()
    e("global_store_dwordx4 v%d, v[32:35], s[%d:%d] sc1" % (vT, sWS, sWS + 1))
    e("s_mov_b64 exec, -1")
    g.lab(lab)
    e("s_barrier")
    e("s_branch L_disp")

def s3_block():
    g.lab("L_s3")
    e("s_mul_i32 s%d, s%d, %d" % (sT, sINV, H_ST)); e("s_add_u32 s%d, s%d, %d" % (sT, sT, WS_H))
    e("v_add_u32 v50, s%d, v%d" % (sT, vRA))
    e("s_mul_i32 s%d, s%d, %d" % (sT, sINV, X1_ST)); e("s_add_u32 s%d, s%d, %d" % (sT, sT, WS_X1))
    e("v_add_u32 v51, s%d, v%d" % (sT, vRB))
    def issue():
        e("global_load_dwordx4 v[4:7], v50, s[%d:%d] sc1" % (sWS, sWS + 1))
        e("global_load_dword v15, v51, s[%d:%d] sc1" % (sWS, sWS + 1))
    fpoll(issue, 2, [4, 5, 6, 7, 15], vT)
    ts_dyn(8)
    for i in range(4):
        e("v_and_b32 v%d, 0xffff, v%d" % (28, 4 + i))
        e("v_lshl_or_b32 v%d, v%d, 16, v%d" % (20 + 2 * i, 28, 28))
        e("v_lshrrev_b32 v%d, 16, v%d" % (28, 4 + i))
        e("v_lshl_or_b32 v%d, v%d, 16, v%d" % (21 + 2 * i, 28, 28))
    e("ds_write_b128 v%d, v[20:23]" % vPW)
    e("ds_write_b128 v%d, v[24:27] offset:16" % vPW)
    e("s_waitcnt lgkmcnt(0)")
    g.lg = []
    NI = 28; NB = 6
    for i in range(NB):
        g.lds("ds_read_b64 v[%d:%d], v%d offset:%d" % (52 + 2 * i, 53 + 2 * i, vRW, i * 512), "W%d" % i)
    for jj in range(7):
        g.lds("ds_read_b128 v[%d:%d], v%d offset:%d" % (16 + 4 * jj, 19 + 4 * jj, vRP, jj * 256), "P%d" % jj)
    for i in range(4): e("v_mov_b32 v%d, 0" % (44 + i))
    def ands(i):
        b = 48 + 2 * (i % 2)
        if i % 4 == 0: g.lwait("P%d" % (i // 4))
        e("v_and_b32 v%d, v%d, v%d" % (b, 16 + i, vM01)); e("v_and_b32 v%d, v%d, v%d" % (b + 1, 16 + i, vM23))
    ands(0)
    for i in range(NI):
        if i + 1 < NI: ands(i + 1)
        else: g.nop(2)
        g.lwait("W%d" % i)
        if i == 0: g.nop(2)
        b = 48 + 2 * (i % 2); wb = 52 + 2 * (i % NB)
        e("v_mfma_f32_4x4x4_16b_bf16 v[44:47], v[%d:%d], v[%d:%d], v[44:47]" % (b, b + 1, wb, wb + 1))
        if i + NB < NI:
            g.lds("ds_read_b64 v[%d:%d], v%d offset:%d" % (wb, wb + 1, vRW, (i + NB) * 512), "W%d" % (i + NB))
    g.lg = []
    g.nop(5)
    e("v_permlane32_swap_b32 v44, v46"); e("v_permlane32_swap_b32 v45, v47")
    e("v_add_f32 v44, v44, v46"); e("v_add_f32 v45, v45, v47")
    g.nop(2)
    e("v_permlane16_swap_b32 v44, v45"); e("v_add_f32 v44, v44, v45")
    g.nop(2)
    e("v_add_f32_dpp v44, v44, v44 row_ror:8 row_mask:0xf bank_mask:0xf"); g.nop(2)
    e("v_add_f32_dpp v44, v44, v44 row_ror:4 row_mask:0xf bank_mask:0xf")
    e("ds_write_b32 v%d, v44" % vRR)
    e("s_waitcnt lgkmcnt(0)")
    e("s_barrier")
    ts_dyn(16)
    lab = g.newlab("L_s3w")
    e("s_cmp_lg_u32 s%d, 0" % sW); e("s_cbranch_scc1 %s" % lab)
    e("v_and_b32 v%d, 15, v0" % vT); e("v_lshlrev_b32 v%d, 2, v%d" % (vT, vT)); e("v_add_u32 v%d, %d, v%d" % (vT, RED, vT))
    e("ds_read2_b32 v[16:17], v%d offset0:0 offset1:16" % vT)
    e("ds_read2_b32 v[18:19], v%d offset0:32 offset1:48" % vT)
    e("s_waitcnt lgkmcnt(0)")
    e("v_add_f32 v16, v16, v17"); e("v_add_f32 v18, v18, v19"); e("v_add_f32 v30, v16, v18")
    round_bf16(30)
    e("v_lshlrev_b32 v16, 16, v15"); e("v_and_b32 v17, 0xffff0000, v15")
    e("v_and_b32 v18, 1, v0"); e("v_cmp_eq_u32 vcc, 1, v18"); e("s_nop 1")
    e("v_cndmask_b32 v16, v16, v17, vcc")
    e("v_add_f32 v30, v30, v16")
    pack8(30, 32)
    odd = g.newlab("L_s3odd"); fin = g.newlab("L_s3fin")
    e("s_mov_b32 exec_lo, 0x0101"); e("s_mov_b32 exec_hi, 0")
    e("s_and_b32 s%d, s%d, 1" % (sT, sINV)); e("s_cmp_eq_u32 s%d, 1" % sT); e("s_cbranch_scc1 %s" % odd)
    e("s_mul_i32 s%d, s%d, %d" % (sT, sINV, X2_ST)); e("s_add_u32 s%d, s%d, %d" % (sT, sT, WS_X2))
    e("v_add_u32 v%d, s%d, v%d" % (vT, sT, vRB))
    e("s_mov_b64 exec, -1")
    e("v_lshrrev_b32 v%d, 4, v0" % (vT + 1)); e("v_mul_u32_u24 v%d, %d, v%d" % (vT + 1, X2R, vT + 1)); e("v_add3_u32 v%d, v%d, s%d, v%d" % (vT, vRB, sT, vT + 1))
    exec8()
    e("global_store_dwordx4 v%d, v[32:35], s[%d:%d] sc1" % (vT, sWS, sWS + 1))
    e("s_branch %s" % fin)
    g.lab(odd)
    e("s_lshr_b32 s%d, s%d, 1" % (sT, sINV)); e("s_mul_i32 s%d, s%d, 1280" % (sT, sT))
    e("v_add_u32 v%d, s%d, v%d" % (vT, sT, vRB))
    e("global_store_dwordx4 v%d, v[32:35], s[%d:%d] sc1" % (vT, sOUT, sOUT + 1))
    g.lab(fin)
    e("s_mov_b64 exec, -1")
    g.lab(lab)
    e("s_barrier")
    e("s_branch L_disp")

def wload_block():
    g.lab("L_wload")
    n2 = g.newlab("L_wl")
    e("s_cmp_eq_u32 s%d, 2" % sROLE); e("s_cbranch_scc0 %s" % n2)
    gemv64_wload(20, 3456, None, sGRP, vT=16)
    e("s_branch L_disp")
    g.lab(n2)
    e("s_cmp_eq_u32 s%d, 3" % sROLE); e("s_cbranch_scc0 L_disp")
    s3_wload(vT=16)
    e("s_branch L_disp")

e("s_mov_b32 s%d, 0" % sLKM)
if not ROT: e("s_mov_b32 s%d, 0" % sBO)
e("s_mov_b32 s%d, 0" % sPH); e("s_mov_b32 s%d, 0" % sINV); e("s_mov_b32 s%d, 0" % sTQ)
if OPT.get("tsstart"): ts(28)
e("s_waitcnt vmcnt(%d)" % (KPRE - KP1))
signal_cleared()
ts(1)
q_initial()
ts(4)
if not ROT: e("s_mov_b32 s%d, %d" % (sOFF, KPRE * 4096))
e("s_branch L_lka_pre")
s4_block()
lka()
lkbv()
mid2()
if not EARLY1: pv_c()
pv_w()
if KEEPV: pv_n()
ring_k()
ring_pv()
att_core()
s1_block(); s2_block(); s3_block()
wload_block()

g.lab("L_lk")
e("s_lshl_b32 s%d, s%d, 7" % (sT, sH)); e("s_add_u32 s%d, s%d, %d" % (sT, sT, WS_FL))
e("v_lshlrev_b32 v%d, 4, v0" % (vT + 2)); e("v_add_u32 v%d, s%d, v%d" % (vT + 2, sT, vT + 2))
e("s_cmp_lt_u32 s%d, %d" % (sH, NSET0 - 128))
e("s_cselect_b32 s%d, 31, 15" % (sT + 2))
e("s_mov_b32 exec_lo, s%d" % (sT + 2)); e("s_mov_b32 exec_hi, 0")
if not OPT.get("noflag"):
    poll(lambda: e("global_load_dword v%d, v%d, s[%d:%d] sc1" % (vT + 3, vT + 2, sWS, sWS + 1)), [vT + 3], vT)
e("s_mov_b64 exec, -1")
e("s_mov_b32 s%d, 0x4000000" % sBO)
e("s_mov_b32 s%d, 2" % sLKM)
if OPT["ts"]:
    e("s_memrealtime s[%d:%d]" % (sCLK, sCLK + 1)); e("s_waitcnt lgkmcnt(0)"); e("s_mov_b32 s%d, s%d" % (sTS + 29, sCLK))
e("s_branch L_lka")

g.lab("L_disp")
ts_dyn(24) if False else None
e("s_and_b32 s%d, s%d, 15" % (sT, sPROG))
e("s_bfe_u32 s%d, s%d, 0x40004" % (sINV, sPROG))
e("s_lshr_b64 s[%d:%d], s[%d:%d], 8" % (sPROG, sPROG + 1, sPROG, sPROG + 1))
if OPT["ts"]:
    e("s_lshl_b32 s%d, s%d, 2" % (sT + 1, sINV))
    e("s_lshr_b32 s%d, 0x6320, s%d" % (sT + 2, sT + 1)); e("s_lshr_b32 s%d, 0x7451, s%d" % (sT + 3, sT + 1))
    e("s_cmp_eq_u32 s%d, %d" % (sT, OP_ATT)); e("s_cselect_b32 s%d, s%d, s%d" % (sPH, sT + 2, sT + 3))
    e("s_cmp_eq_u32 s%d, %d" % (sT, OP_RING)); e("s_cselect_b32 s%d, s%d, s%d" % (sPH, sT + 2, sPH))
    e("s_and_b32 s%d, s%d, 15" % (sPH, sPH))
    e("s_cmp_eq_u32 s%d, %d" % (sT, OP_S4)); e("s_cselect_b32 s%d, 15, s%d" % (sPH, sPH))
for op, lab in ((OP_ATT, "L_att"), (OP_S1, "L_s1"), (OP_S2, "L_s2"), (OP_S3, "L_s3"), (OP_S4, "L_s4"), (OP_RING, "L_ring"), (OP_LK, "L_lk")):
    e("s_cmp_eq_u32 s%d, %d" % (sT, op)); e("s_cbranch_scc1 %s" % lab)
g.lab("L_fin")
if OPT["ts"]:
    lab = g.newlab("L_nots")
    e("s_cmp_lg_u32 s%d, 0" % sW); e("s_cbranch_scc1 %s" % lab)
    e("s_lshl_b32 s%d, s2, 7" % sT); e("s_add_u32 s%d, s%d, %d" % (sT, sT, WS_TS))
    e("v_mov_b32 v%d, s%d" % (vT, sT))
    e("s_mov_b64 exec, 1")
    for i in range(32):
        e("v_mov_b32 v%d, s%d" % (vT + 1, sTS + i))
        e("global_store_dword v%d, v%d, s[%d:%d] offset:%d" % (vT, vT + 1, sWS, sWS + 1, 4 * i))
        e("s_nop 1")
    e("s_mov_b64 exec, -1")
    g.lab(lab)
if OPT.get("dts"):
    lab = g.newlab("L_nodts")
    e("s_memrealtime s[%d:%d]" % (sCLK, sCLK + 1))
    e("s_waitcnt lgkmcnt(0)")
    e("s_cmp_lg_u32 s%d, 0" % sW); e("s_cbranch_scc1 %s" % lab)
    e("v_mov_b32 v%d, 0" % vT)
    e("s_mov_b64 exec, 1")
    e("s_not_b32 s%d, s%d" % (sT, sTS))
    lst = [sT, sTS + 0, sTS + 1, sTS + 16, sTS + 8 + 2, sTS + 16 + 2, sTS + 16 + 3, sTS + 16 + 6, sTS + 16+1, sTS + 16 + 4, sTS + 16 + 7, sCLK]
    if OPT.get("dts2"):
        lst = [sT, sTS + 0, sTS + 5, sTS + 27, sTS + 28, sTS + 1, sTS + 4, sTS + 16, sCLK]
    for i, r in enumerate(lst):
        e("v_mov_b32 v%d, s%d" % (vT + 1, r))
        e("global_atomic_umax v%d, v%d, s[%d:%d] offset:%d sc1" % (vT, vT + 1, sDBG, sDBG + 1, 4 + 4 * i))
        e("s_nop 1")
    e("s_mov_b64 exec, -1")
    g.lab(lab)
if OPT.get("s1dma"): e("s_waitcnt vmcnt(0)")
g.lab("L_end")
e("s_endpgm")
e('.section .rodata,"a"')
e(".p2align 6")
e(".amdhsa_kernel %s" % KN)
e("  .amdhsa_next_free_vgpr 512")
e("  .amdhsa_next_free_sgpr 102")
e("  .amdhsa_accum_offset 256")
e("  .amdhsa_group_segment_fixed_size 0")
e("  .amdhsa_kernarg_size 88")
e("  .amdhsa_user_sgpr_count 2")
e("  .amdhsa_user_sgpr_kernarg_segment_ptr 1")
e("  .amdhsa_system_sgpr_workgroup_id_x 1")
e(".end_amdhsa_kernel")
open(sys.argv[1], "w").write(g.text())
```

```python
import sys
from gl import *

OPT = dict(ts=False, dbgq=False)
for a in sys.argv[2:]:
    k, _, v = a.partition("=")
    OPT[k] = (int(v) if v else True)

WS_OA = 0x0;      OA_ST = 0x20000
WS_ML = 0x80000;  ML_ST = 0x800
WS_PB = 0x82000;  PB_ST = 0x5000
WS_H  = 0x96000;  H_ST  = 0x1000
WS_X1 = 0x9A000;  X1_ST = 0x800
WS_X2 = 0xA8000;  X2_ST = 0x800;  X2R = 0x2000
WS_Q  = 0xC0000;  Q_ST  = 0x2000
WS_QP = 0xD0000;  QP_B = 0x20000
WS_FL = 0xA0000
WS_GO = 0xA1000
WS_TS = 0x180000
LQ = 0
LP = 65536
LM = 147456
COMB = LM;            COMB_ST = 0x840
PD   = LM + 0x1100
RED  = LM + 0x1C00
ST   = LM + 0x2000
CS   = LM + 0x2100
Q2S  = LM + 0x2400
PD3  = LP + 57344
SPIN = int(OPT.get("spin", 200000))
KPRE = int(OPT.get("kpre", 32))
FLAGPOS = int(OPT.get("flagpos", 63))
WNT = "nt " if OPT.get("wnt") else ""
QKC = not OPT.get("noqkc")
KEEPV = not OPT.get("nokeepv")
EARLY1 = OPT.get("early1")
NWMIN = 14

R4_N = 64
R1_0, R1_N = 0, 80
R2_0, R2_N = 80, 27
R3_0, R3_N = 107, 40
NSET0 = 147
RING = LP

sW = 3
sK, sV, sWT = 4, 8, 12
sWS, sDBG, sOUT, sX = 16, 18, 20, 22
sH, sS, sPH, sINV, sROLE, sJ = 24, 25, 26, 27, 28, 29
sOFF, sSPIN = 30, 31
sT = 32
sC, sONE = 48, 49
sTQ, sLAX = 50, 51
sKS, sGRP = 52, 53
sM0B = 54
sBO = 55
sVO = 56
sLKM = 57
sHAS4, sCLS, sPAR, sRING = 58, 59, 62, 63
sWQ = 96
sPROG = 100
ROT = None
sMSK = sPAR
def wrap():
    if ROT: e("s_and_b32 s%d, s%d, s%d" % (sOFF, sOFF, sMSK))
MQK = OPT.get("mqk")
BC = 1 if MQK else 4
sCLK = 60
sTS = 64
vL, vKV, vM01, vM23, vQ = 0, 1, 2, 3, 4
vRW, vRP, vRR, vRA, vPW, vFL, vRB, vRC = 8, 9, 10, 11, 12, 13, 14, 15
vS = 16
vKT = 32
vD = 48
vE = 56
vT = 58
vACC = 32
vA = 40
vK0 = 64

g = G()
e = g.e

def ts(i):
    if not OPT["ts"]:
        return
    e("s_memrealtime s[%d:%d]" % (sCLK, sCLK + 1))
    e("s_waitcnt lgkmcnt(0)")
    e("s_mov_b32 s%d, s%d" % (sTS + i, sCLK))

def ts_dyn(base):
    if not OPT["ts"]:
        return
    e("s_memrealtime s[%d:%d]" % (sCLK, sCLK + 1))
    e("s_waitcnt lgkmcnt(0)")
    for p in range(8):
        e("s_cmp_eq_u32 s%d, %d" % (sPH, p))
        e("s_cselect_b32 s%d, s%d, s%d" % (sTS + base + p, sCLK, sTS + base + p))

def ts_first(i):
    if not OPT["ts"]:
        return
    e("s_memrealtime s[%d:%d]" % (sCLK, sCLK + 1))
    e("s_waitcnt lgkmcnt(0)")
    e("s_cmp_eq_u32 s%d, 0" % sLKM)
    e("s_cselect_b32 s%d, s%d, s%d" % (sTS + i, sCLK, sTS + i))

def sentinel_check(regs, fail_label, tmp):
    r = list(regs)
    cur = None
    if len(r) == 1:
        cur = r[0]
    else:
        e("v_max_u32 v%d, v%d, v%d" % (tmp, r[0], r[1])); r = r[2:]
        while len(r) >= 2:
            e("v_max3_u32 v%d, v%d, v%d, v%d" % (tmp, tmp, r[0], r[1])); r = r[2:]
        if r:
            e("v_max_u32 v%d, v%d, v%d" % (tmp, tmp, r[0]))
        cur = tmp
    e("v_cmp_eq_u32 vcc, -1, v%d" % cur)
    e("s_nop 1")
    e("s_cmp_lg_u64 vcc, 0")
    e("s_cbranch_scc1 %s" % fail_label)

def poll(issue, regs, tmp):
    top = g.newlab("L_poll"); again = g.newlab("L_again"); done = g.newlab("L_pdone")
    e("s_mov_b32 s%d, 0" % sSPIN)
    g.lab(top)
    issue()
    e("s_waitcnt vmcnt(0)")
    sentinel_check(regs, again, tmp)
    e("s_branch %s" % done)
    g.lab(again)
    e("s_add_u32 s%d, s%d, 1" % (sSPIN, sSPIN))
    e("s_cmp_lt_u32 s%d, %d" % (sSPIN, SPIN))
    e("s_cbranch_scc1 %s" % top)
    g.lab(done)

PPR = int(OPT.get("ppr", 16))
def fpoll(issue, nld, regs, tmp):
    if PPR == 0:
        return poll(issue, regs, tmp)
    top = g.newlab("L_fp"); again = g.newlab("L_fa"); done = g.newlab("L_fd"); chk = g.newlab("L_fc")
    e("s_mov_b32 s%d, 0" % sSPIN)
    issue()
    e("s_waitcnt vmcnt(0)")
    e("s_branch %s" % chk)
    g.lab(top)
    e("s_waitcnt vmcnt(%d)" % (5 * nld))
    issue()
    g.lab(chk)
    sentinel_check(regs, again, tmp)
    e("s_branch %s" % done)
    g.lab(again)
    e("s_add_u32 s%d, s%d, 1" % (sSPIN, sSPIN))
    e("s_cmp_ge_u32 s%d, %d" % (sSPIN, SPIN * 8))
    e("s_cbranch_scc1 %s" % done)
    if PPR & (PPR - 1) == 0:
        e("s_and_b32 s%d, s%d, %d" % (sT, sSPIN, PPR - 1))
        e("s_cmp_eq_u32 s%d, 0" % sT)
    else:
        raise SystemExit("ppr must be a power of two")
    e("s_cbranch_scc1 %s" % top)
    e("s_branch %s" % chk)
    g.lab(done)

def counter_spin():
    top = g.newlab("L_cnt"); done = g.newlab("L_cdone")
    e("s_mov_b32 s%d, 0" % sSPIN)
    e("v_mov_b32 v%d, 0" % vT)
    g.lab(top)
    e("global_load_dword v%d, v%d, s[%d:%d] sc1" % (vT + 1, vT, sDBG, sDBG + 1))
    e("s_waitcnt vmcnt(0)")
    e("v_readfirstlane_b32 s%d, v%d" % (sT, vT + 1))
    e("s_add_u32 s%d, s%d, 1" % (sSPIN, sSPIN))
    e("s_cmp_ge_u32 s%d, %d" % (sSPIN, SPIN))
    e("s_cbranch_scc1 %s" % done)
    e("s_cmp_lt_u32 s%d, 256" % sT)
    e("s_cbranch_scc1 %s" % top)
    g.lab(done)

e("; @launch grid=(256,1,1) block=(256,1,1) lds=163840")
e('.amdgcn_target "amdgcn-amd-amdhsa--gfx950"')
e(".text")
e(".globl %s" % KN)
e(".p2align 8")
e(".type %s,@function" % KN)
g.lab(KN)
e("s_cmp_ge_u32 s2, 256")
e("s_cbranch_scc1 L_end")
e("s_load_dwordx4 s[32:35], s[0:1], 0")
e("s_load_dwordx4 s[36:39], s[0:1], 16")
e("s_load_dwordx2 s[40:41], s[0:1], 32")
e("s_load_dwordx4 s[44:47], s[0:1], 48")
e("s_load_dwordx4 s[56:59], s[0:1], 64")
e("s_load_dwordx2 s[%d:%d], s[0:1], 80" % (sWS, sWS + 1))
e("v_lshrrev_b32 v1, 6, v0")
e("v_and_b32 v0, 63, v0")
e("v_readfirstlane_b32 s%d, v1" % sW)
e("s_and_b32 s%d, s2, 31" % sH)
e("s_lshr_b32 s%d, s2, 5" % sS)
if OPT["ts"]:
    for i in range(32):
        e("s_mov_b32 s%d, 0" % (sTS + i))
e("s_mov_b32 s%d, 0x3e0293ee" % sC)
import struct, math
cval = struct.unpack("<I", struct.pack("<f", (128 ** -0.5) * math.log2(math.e)))[0]
g.L[-1] = "s_mov_b32 s%d, 0x%08x" % (sC, cval)
e("s_mov_b32 s%d, 0x3f803f80" % sONE)
e("v_lshlrev_b32 v%d, 4, v0" % vKV)
e("s_lshl_b32 s%d, s%d, 10" % (sM0B, sW))
e("v_add_u32 v%d, s%d, v%d" % (vKV, sM0B, vKV))
e("s_lshl_b32 s%d, s%d, 14" % (sM0B, sW))
e("v_and_b32 v%d, 3, v0" % vT)
e("v_mov_b32 v%d, 0" % vM01); e("v_mov_b32 v%d, 0" % vM23)
e("v_mov_b32 v%d, 0xffff" % (vT + 1)); e("v_mov_b32 v%d, 0xffff0000" % (vT + 2))
for val, dst, src in ((0, vM01, vT + 1), (1, vM01, vT + 2), (2, vM23, vT + 1), (3, vM23, vT + 2)):
    e("v_cmp_eq_u32 vcc, %d, v%d" % (val, vT))
    e("s_nop 1")
    e("v_cndmask_b32 v%d, v%d, v%d, vcc" % (dst, dst, src))
e("s_waitcnt lgkmcnt(0)")
ts(0)
e("s_mov_b64 s[%d:%d], s[32:33]" % (sX, sX + 1))
e("s_mov_b64 s[%d:%d], s[56:57]" % (sOUT, sOUT + 1))
e("s_mov_b64 s[%d:%d], s[58:59]" % (sDBG, sDBG + 1))
e("s_lshl_b32 s42, s%d, 21" % sH)
e("s_lshl_b32 s43, s%d, 18" % sS)
e("s_add_u32 s42, s42, s43")
e("s_add_u32 s%d, s34, s42" % sK); e("s_addc_u32 s%d, s35, 0" % (sK + 1))
e("s_mov_b32 s%d, 0x4040000" % (sK + 2)); e("s_mov_b32 s%d, 0x20000" % (sK + 3))
e("s_add_u32 s%d, s36, s42" % sV); e("s_addc_u32 s%d, s37, 0" % (sV + 1))
e("s_mov_b32 s%d, 0x4040000" % (sV + 2)); e("s_mov_b32 s%d, 0x20000" % (sV + 3))
KP1 = int(OPT.get("kp1", 0))
e("s_mov_b32 s%d, 0" % sOFF)
if ROT:
    rm = int(ROT)
    if rm == 1:
        e("s_lshl_b32 s42, s%d, 3" % sS); e("s_lshr_b32 s43, s%d, 2" % sH); e("s_add_u32 s42, s42, s43")
    elif rm == 2:
        e("s_mul_i32 s42, s2, 5")
    else:
        e("s_mul_i32 s42, s2, 17"); e("s_lshr_b32 s42, s42, 1")
    e("s_and_b32 s42, s42, 63"); e("s_lshl_b32 s%d, s42, 12" % sBO)
    e("s_mov_b32 s%d, s%d" % (sOFF, sBO)); e("s_mov_b32 s%d, 0x3ffff" % sMSK)
for t in range(KP1):
    e("buffer_load_dwordx4 v[%d:%d], v%d, s[%d:%d], s%d offen nt" % (vK0 + 4 * t, vK0 + 4 * t + 3, vKV, sK, sK + 3, sOFF))
    e("s_add_u32 s%d, s%d, 4096" % (sOFF, sOFF)); wrap()
if OPT.get("tsstart"): ts(5)
if OPT.get("lat"):
    e("buffer_load_dwordx4 v[64:67], v%d, s[%d:%d], s%d offen nt" % (vKV, sK, sK + 3, sOFF))
    e("s_waitcnt vmcnt(0)"); ts(24)
    e("buffer_load_dwordx4 v[64:67], v%d, s[%d:%d], s%d offen nt" % (vKV, sV, sV + 3, sOFF))
    e("s_waitcnt vmcnt(0)"); ts(25)
    e("s_mov_b32 s42, 0x4000000")
    e("buffer_load_dwordx4 v[64:67], v%d, s[%d:%d], s42 offen nt" % (vKV, sK, sK + 3))
    e("s_waitcnt vmcnt(0)"); ts(26)
    e("s_mov_b32 s42, 0x8000")
    e("buffer_load_dwordx4 v[64:67], v%d, s[%d:%d], s42 offen nt" % (vKV, sK, sK + 3))
    e("s_waitcnt vmcnt(0)"); ts(29)
e("s_mov_b64 s[%d:%d], s[38:39]" % (sWQ, sWQ + 1))
e("s_mov_b32 s%d, %d" % (sWQ + 2, 640 * 8192)); e("s_mov_b32 s%d, 0x20000" % (sWQ + 3))
e("s_cmp_lg_u32 s%d, 0" % sW)
e("s_cbranch_scc1 L_noclear")
e("s_mul_i32 s42, s2, 3072")
e("v_lshlrev_b32 v%d, 4, v0" % vT)
e("v_add_u32 v%d, s42, v%d" % (vT, vT))
for i in range(4):
    e("v_mov_b32 v%d, -1" % (vKT + i))
for i in range(3):
    e("global_store_dwordx4 v%d, v[%d:%d], s[%d:%d] offset:%d sc1" % (vT, vKT, vKT + 3, sWS, sWS + 1, i * 1024))
def qp_own_addr(dst):
    e("s_lshl_b32 s42, s%d, 3" % sH); e("s_add_u32 s42, s42, s%d" % sS); e("s_lshl_b32 s42, s42, 9")
    e("s_add_u32 s42, s42, %d" % WS_QP)
    e("v_lshrrev_b32 v%d, 5, v0" % dst); e("v_mul_u32_u24 v%d, %d, v%d" % (dst, QP_B, dst))
    e("v_and_b32 v%d, 31, v0" % (dst + 1)); e("v_lshl_add_u32 v%d, v%d, 4, v%d" % (dst, dst + 1, dst))
    e("v_add_u32 v%d, s42, v%d" % (dst, dst))
qp_own_addr(vT)
e("global_store_dwordx4 v%d, v[%d:%d], s[%d:%d] sc1" % (vT, vKT, vKT + 3, sWS, sWS + 1))
e("s_cmp_ge_u32 s2, %d" % R4_N)
e("s_cbranch_scc1 L_noclear")
e("v_lshrrev_b32 v%d, 3, v0" % vT); e("v_mul_u32_u24 v%d, %d, v%d" % (vT, Q_ST, vT))
e("v_and_b32 v%d, 7, v0" % (vT + 1)); e("v_lshl_add_u32 v%d, v%d, 4, v%d" % (vT, vT + 1, vT))
e("s_lshl_b32 s42, s2, 7"); e("s_add_u32 s42, s42, %d" % WS_Q); e("v_add_u32 v%d, s42, v%d" % (vT, vT))
e("s_mov_b32 exec_hi, 0")
e("global_store_dwordx4 v%d, v[%d:%d], s[%d:%d] sc1" % (vT, vKT, vKT + 3, sWS, sWS + 1))
e("s_mov_b64 exec, -1")
g.lab("L_noclear")
vXA = 16
vXR = 32
e("v_lshlrev_b32 v%d, 4, v0" % vT)
for b in range(2):
    for i in range(4): e("v_mov_b32 v%d, 0" % (vXA + 8 * b + 4 + i))
for b in range(2):
    e("global_load_dwordx4 v[%d:%d], v%d, s[%d:%d] offset:%d" % (vXA + 8 * b, vXA + 8 * b + 3, vT, sX, sX + 1, b * 1280))
e("s_mov_b64 exec, 0xffff")
for b in range(2):
    e("global_load_dwordx4 v[%d:%d], v%d, s[%d:%d] offset:%d" % (vXA + 8 * b + 4, vXA + 8 * b + 7, vT, sX, sX + 1, b * 1280 + 1024))
e("s_mov_b64 exec, -1")
e("s_mul_i32 s42, s%d, 80" % sS); e("s_mul_i32 s43, s%d, 20" % sW); e("s_add_u32 s42, s42, s43")
e("v_lshrrev_b32 v%d, 4, v0" % vT); e("v_add_u32 v%d, s42, v%d" % (vT, vT))
e("v_lshlrev_b32 v%d, 1, v%d" % (vT + 1, vT))
for b in range(2):
    for i in range(5):
        e("global_load_ushort v%d, v%d, s[%d:%d] offset:%d" % (vXR + 5 * b + i, vT + 1, sX, sX + 1, b * 1280 + 8 * i))
e("v_lshlrev_b32 v%d, 13, v%d" % (vT, vT))
e("v_and_b32 v%d, 15, v0" % (vT + 1)); e("v_lshl_add_u32 v%d, v%d, 4, v%d" % (vT, vT + 1, vT))
e("s_lshl_b32 s42, s%d, 8" % sH)
for i in range(5):
    e("buffer_load_dwordx4 a[%d:%d], v%d, s[%d:%d], s42 offen" % (4 * i, 4 * i + 3, vT, sWQ, sWQ + 3))
    e("s_add_u32 s42, s42, %d" % (4 * 8192))
if OPT.get("touch"):
    e("s_mov_b32 s43, 0x4000000")
    e("buffer_load_dword v44, off, s[%d:%d], 0 nt" % (sV, sV + 3))
    e("buffer_load_dword v45, off, s[%d:%d], s43 nt" % (sK, sK + 3))
    e("buffer_load_dword v46, off, s[%d:%d], s43 nt" % (sV, sV + 3))
for t in range(KP1, KPRE):
    e("buffer_load_dwordx4 v[%d:%d], v%d, s[%d:%d], s%d offen nt" % (vK0 + 4 * t, vK0 + 4 * t + 3, vKV, sK, sK + 3, sOFF))
    e("s_add_u32 s%d, s%d, 4096" % (sOFF, sOFF)); wrap()
if OPT.get("tsstart"): ts(27)

e("s_mov_b32 s%d, 0" % sROLE); e("s_mov_b32 s%d, 0" % sJ)
e("s_mov_b32 s%d, 0" % sKS); e("s_mov_b32 s%d, 0" % sGRP)
e("s_mov_b32 s%d, 0" % sHAS4); e("s_mov_b32 s%d, 0" % sCLS); e("s_mov_b32 s%d, 0" % sPAR); e("s_mov_b32 s%d, 0" % sRING)
e("s_mov_b64 s[%d:%d], s[38:39]" % (sWT, sWT + 1))
e("s_mov_b32 s%d, %d" % (sWT + 2, 640 * 8192)); e("s_mov_b32 s%d, 0x20000" % (sWT + 3))
OP_ATT, OP_S1, OP_S2, OP_S3, OP_S4, OP_RING, OP_LK = 1, 2, 3, 4, 5, 6, 7
def prog(steps):
    v = 0
    for i, (op, inv) in enumerate(steps):
        v |= (op | (inv << 4)) << (8 * i)
    e("s_mov_b32 s%d, 0x%08x" % (sPROG, v & 0xffffffff)); e("s_mov_b32 s%d, 0x%08x" % (sPROG + 1, v >> 32))
prog([(OP_RING, 2), (OP_ATT, 1), (OP_LK, 3), (OP_ATT, 3)])
def in_range(lo, n, skip):
    e("s_sub_u32 s42, s2, %d" % lo)
    e("s_cmp_lt_u32 s42, %d" % n)
    e("s_cbranch_scc0 %s" % skip)

def gemv64_consts(NL, rowb):
    KW = 8 * NL
    e("s_mul_i32 s42, s%d, %d" % (sW, NL * 1024))
    e("s_add_u32 s42, s42, %d" % LP)
    e("v_lshlrev_b32 v%d, 4, v0" % vRW)
    e("v_add_u32 v%d, s42, v%d" % (vRW, vRW))
    e("v_lshrrev_b32 v%d, 3, v0" % vT)
    e("v_mul_u32_u24 v%d, %d, v%d" % (vRP, NL * 4, vT))
    e("s_mul_i32 s42, s%d, %d" % (sW, KW * 4))
    e("s_add_u32 s42, s42, %d" % PD)
    e("v_add_u32 v%d, s42, v%d" % (vRP, vRP))
    e("v_and_b32 v%d, 7, v0" % vRR)
    e("v_lshlrev_b32 v%d, 3, v%d" % (vRR, vRR))
    e("v_lshrrev_b32 v%d, 5, v0" % (vT + 1))
    e("v_lshl_add_u32 v%d, v%d, 2, v%d" % (vRR, vT + 1, vRR))
    e("v_bfe_u32 v%d, v0, 4, 1" % (vT + 1))
    e("v_add_u32 v%d, v%d, v%d" % (vRR, vRR, vT + 1))
    e("v_bfe_u32 v%d, v0, 3, 1" % (vT + 1))
    e("v_lshl_add_u32 v%d, v%d, 1, v%d" % (vRR, vT + 1, vRR))
    e("s_lshl_b32 s42, s%d, 8" % sW)
    e("s_add_u32 s42, s42, %d" % RED)
    e("v_lshlrev_b32 v%d, 2, v%d" % (vRR, vRR))
    e("v_add_u32 v%d, s42, v%d" % (vRR, vRR))

def gemv64_wload(NL, rowb, k0_expr_sreg, cb_sreg, vT=vT, srd=sWT):
    KW = 8 * NL
    e("v_lshrrev_b32 v%d, 3, v0" % vT)
    e("v_mul_u32_u24 v%d, %d, v%d" % (vT, NL * rowb, vT)) if NL * rowb < (1 << 24) else None
    e("v_and_b32 v%d, 7, v0" % (vT + 1))
    e("v_lshl_add_u32 v%d, v%d, 4, v%d" % (vT, vT + 1, vT))
    e("s_mul_i32 s42, s%d, %d" % (sW, KW))
    if k0_expr_sreg is not None:
        e("s_add_u32 s42, s42, s%d" % k0_expr_sreg)
    e("s_mul_i32 s42, s42, %d" % rowb)
    e("s_add_u32 s42, s42, s%d" % cb_sreg)
    e("s_mul_i32 s43, s%d, %d" % (sW, NL * 1024))
    e("s_add_u32 s43, s43, %d" % LP)
    for i in range(NL):
        e("s_mov_b32 m0, s43")
        e("s_add_u32 s43, s43, 1024")
        e("buffer_load_dwordx4 v%d, s[%d:%d], s42 offen %slds" % (vT, srd, srd + 3, WNT))
        e("s_add_u32 s42, s42, %d" % rowb)

def x160_consts():
    e("v_min_u32 v%d, 39, v0" % vT)
    e("v_lshlrev_b32 v%d, 2, v%d" % (vT, vT))
    e("s_mul_i32 s42, s%d, 160" % sW)
    e("v_add_u32 v%d, s42, v%d" % (vT, vT))
    e("v_lshlrev_b32 v%d, 1, v%d" % (vRB, vT))
    e("v_lshlrev_b32 v%d, 2, v%d" % (vRA, vT))
    e("v_add_u32 v%d, %d, v%d" % (vPW, PD, vRA))
    e("v_mov_b32 v%d, 0" % vFL)
    e("v_cmp_gt_u32 vcc, 40, v0")
    e("s_nop 1")
    e("v_cndmask_b32 v%d, v%d, 1.0, vcc" % (vFL, vFL))

def s1_consts():
    gemv64_consts(16, 1280)
    e("s_lshl_b32 s42, s%d, 2" % sKS); e("s_add_u32 s42, s42, s%d" % sW)
    e("v_lshrrev_b32 v%d, 5, v0" % vT)
    e("v_and_b32 v%d, 31, v0" % (vT + 1))
    e("v_lshlrev_b32 v%d, 4, v%d" % (vT + 1, vT + 1))
    e("v_lshl_add_u32 v%d, v%d, 9, v%d" % (vRA, vT, vT + 1))
    e("s_lshl_b32 s43, s42, 12"); e("v_add_u32 v%d, s43, v%d" % (vRA, vRA))
    e("v_lshlrev_b32 v%d, 5, v%d" % (vRB, vT))
    e("s_lshl_b32 s43, s42, 6"); e("v_add_u32 v%d, s43, v%d" % (vRB, vRB))
    e("v_lshl_add_u32 v%d, v%d, 2, v%d" % (vPW, vT, vT + 1))
    e("s_lshl_b32 s43, s%d, 9" % sW); e("s_add_u32 s43, s43, %d" % PD)
    e("v_add_u32 v%d, s43, v%d" % (vPW, vPW))

def s4_consts():
    gemv64_consts(20, 8192); x160_consts()

in_range(R1_0, R1_N, "L_nr1")
e("s_mov_b32 s%d, 1" % sROLE); e("s_mov_b32 s%d, s42" % sJ)
e("s_mov_b64 s[%d:%d], s[40:41]" % (sWT, sWT + 1)); e("s_mov_b32 s%d, %d" % (sWT + 2, 4096 * 1280))
e("s_and_b32 s%d, s%d, 7" % (sKS, sJ))
e("s_lshr_b32 s%d, s%d, 3" % (sGRP, sJ))
SN = OPT.get("sn")
prog([(OP_S1, 0), (OP_ATT, 1), (OP_S1, 2), (OP_ATT, 3), (OP_S1, 3)] if SN else [(OP_S1, 0), (OP_ATT, 1), (OP_S1, 2), (OP_S1, 1), (OP_ATT, 3), (OP_S1, 3)])
e("s_cmp_ge_u32 s2, %d" % R4_N)
e("s_cbranch_scc1 L_roledone")
e("s_mov_b32 s%d, 1" % sHAS4)
prog([(OP_S1, 0), (OP_S4, 1), (OP_ATT, 1), (OP_S1, 2), (OP_S4, 3), (OP_ATT, 3), (OP_S1, 3)] if SN else [(OP_S1, 0), (OP_S4, 1), (OP_ATT, 1), (OP_S1, 2), (OP_S1, 1), (OP_S4, 3), (OP_ATT, 3), (OP_S1, 3)])
e("s_branch L_roledone")
g.lab("L_nr1")
in_range(R2_0, R2_N, "L_nr2")
e("s_mov_b32 s%d, 2" % sROLE); e("s_mov_b32 s%d, s42" % sJ)
e("s_mov_b64 s[%d:%d], s[44:45]" % (sWT, sWT + 1)); e("s_mov_b32 s%d, %d" % (sWT + 2, 640 * 3456))
e("s_lshl_b32 s%d, s%d, 7" % (sGRP, sJ))
gemv64_consts(20, 3456); x160_consts()
prog([(OP_S2, 0), (OP_ATT, 1), (OP_S2, 1), (OP_S2, 2), (OP_ATT, 3), (OP_S2, 3)] if SN else [(OP_S2, 0), (OP_ATT, 1), (OP_S2, 2), (OP_S2, 1), (OP_ATT, 3), (OP_S2, 3)])
e("s_branch L_roledone")
g.lab("L_nr2")
in_range(R3_0, R3_N, "L_nr3")
prog([(OP_S3, 0), (OP_ATT, 1), (OP_S3, 1), (OP_S3, 2), (OP_ATT, 3), (OP_S3, 3)] if SN else ([(OP_S3, 0), (OP_ATT, 1), (OP_S3, 2), (OP_S3, 1), (OP_ATT, 3), (OP_S3, 3)] if OPT.get("s3old") else [(OP_S3, 0), (OP_ATT, 1), (OP_S3, 2), (OP_ATT, 3), (OP_S3, 1), (OP_S3, 3)]))
e("s_mov_b32 s%d, 3" % sROLE); e("s_mov_b32 s%d, s42" % sJ)
if not OPT.get("s3lin"):
    e("s_and_b32 s43, s42, 7"); e("s_mul_i32 s43, s43, 5"); e("s_lshr_b32 s42, s42, 3"); e("s_add_u32 s%d, s43, s42" % sJ)
e("s_mov_b64 s[%d:%d], s[46:47]" % (sWT, sWT + 1)); e("s_mov_b32 s%d, %d" % (sWT + 2, 1728 * 1280))
e("s_mul_i32 s42, s%d, 14336" % sW); e("s_add_u32 s42, s42, %d" % LP)
e("v_lshlrev_b32 v%d, 3, v0" % vRW); e("v_add_u32 v%d, s42, v%d" % (vRW, vRW))
e("s_mul_i32 s42, s%d, 1792" % sW); e("s_add_u32 s42, s42, %d" % PD3)
e("v_lshrrev_b32 v%d, 2, v0" % vT); e("v_lshlrev_b32 v%d, 4, v%d" % (vRP, vT)); e("v_add_u32 v%d, s42, v%d" % (vRP, vRP))
e("v_min_u32 v%d, 53, v0" % vT)
e("v_lshlrev_b32 v%d, 5, v%d" % (vPW, vT)); e("v_add_u32 v%d, s42, v%d" % (vPW, vPW))
e("v_lshlrev_b32 v%d, 4, v%d" % (vRA, vT))
e("s_mul_i32 s43, s%d, 864" % sW); e("v_add_u32 v%d, s43, v%d" % (vRA, vRA))
e("v_and_b32 v%d, 3, v0" % vT); e("v_lshlrev_b32 v%d, 2, v%d" % (vT, vT))
e("v_lshrrev_b32 v%d, 4, v0" % (vT + 1)); e("v_add_u32 v%d, v%d, v%d" % (vT, vT, vT + 1))
e("v_lshlrev_b32 v%d, 2, v%d" % (vRR, vT))
e("s_lshl_b32 s43, s%d, 6" % sW); e("s_add_u32 s43, s43, %d" % RED); e("v_add_u32 v%d, s43, v%d" % (vRR, vRR))
e("v_and_b32 v%d, 14, v0" % vT); e("v_lshlrev_b32 v%d, 1, v%d" % (vRB, vT))
e("s_lshl_b32 s43, s%d, 5" % sJ); e("v_add_u32 v%d, s43, v%d" % (vRB, vRB))
e("v_lshlrev_b32 v%d, 2, v0" % vT); e("v_add_u32 v%d, s42, v%d" % (vT, vT))
e("v_mov_b32 v%d, 0" % (vT + 1))
e("s_mov_b64 exec, 0xffff")
e("ds_write_b32 v%d, v%d offset:1728" % (vT, vT + 1))
e("s_mov_b64 exec, -1")
e("s_branch L_roledone")
g.lab("L_nr3")
e("s_mov_b32 s%d, 1" % sCLS)
in_range(NSET0, R1_N if SN else 0, "L_roledone")
e("s_mov_b32 s%d, 2" % sCLS); e("s_mov_b32 s%d, s42" % sJ)
e("s_mov_b64 s[%d:%d], s[40:41]" % (sWT, sWT + 1)); e("s_mov_b32 s%d, %d" % (sWT + 2, 4096 * 1280))
e("s_and_b32 s%d, s%d, 7" % (sKS, sJ))
e("s_lshr_b32 s%d, s%d, 3" % (sGRP, sJ))
prog([(OP_RING, 2), (OP_ATT, 1), (OP_S1, 1), (OP_LK, 3), (OP_ATT, 3)])
g.lab("L_roledone")


vP, vGA, vGAA, vGW = 16, 36, 44, 48

def signal_cleared():
    lab = g.newlab("L_nosig")
    e("s_cmp_lg_u32 s%d, 0" % sW)
    e("s_cbranch_scc1 %s" % lab)
    e("v_mov_b32 v%d, 0" % vT); e("v_mov_b32 v%d, 1" % (vT + 1))
    e("s_mov_b64 exec, 1")
    e("global_atomic_add v%d, v%d, s[%d:%d] sc1" % (vT, vT + 1, sDBG, sDBG + 1))
    e("s_mov_b64 exec, -1")
    g.lab(lab)

def reduce8_to_col(acc, out):
    g.nop(5)
    for i in range(4):
        e("v_permlane32_swap_b32 v%d, v%d" % (acc + i, acc + 4 + i))
    for i in range(4):
        e("v_add_f32 v%d, v%d, v%d" % (acc + i, acc + i, acc + 4 + i))
    g.nop(1)
    e("v_permlane16_swap_b32 v%d, v%d" % (acc, acc + 1))
    e("v_permlane16_swap_b32 v%d, v%d" % (acc + 2, acc + 3))
    e("v_add_f32 v%d, v%d, v%d" % (acc, acc, acc + 1))
    e("v_add_f32 v%d, v%d, v%d" % (acc + 2, acc + 2, acc + 3))
    g.nop(2)
    e("v_add_f32_dpp v%d, v%d, v%d row_ror:8 row_mask:0xf bank_mask:0x3" % (out, acc, acc))
    e("v_add_f32_dpp v%d, v%d, v%d row_ror:8 row_mask:0xf bank_mask:0xc" % (out, acc + 2, acc + 2))

def gemv64(NL, ones=False):
    g.lg = []
    for i in range(min(4, NL)):
        g.lds("ds_read_b128 v[%d:%d], v%d offset:%d" % (vGW + 4 * i, vGW + 4 * i + 3, vRW, i * 1024), "W%d" % i)
    if not ones:
        for j in range(NL // 4):
            g.lds("ds_read_b128 v[%d:%d], v%d offset:%d" % (vP + 4 * j, vP + 4 * j + 3, vRP, j * 16), "P%d" % j)
    for i in range(8):
        e("v_mov_b32 v%d, 0" % (vGA + i))
    def ands(i):
        b = vGAA + 2 * (i % 2)
        if ones:
            if i < 2:
                e("v_and_b32 v%d, s%d, v%d" % (b, sONE, vM01)); e("v_and_b32 v%d, s%d, v%d" % (b + 1, sONE, vM23))
        else:
            if i % 4 == 0:
                g.lwait("P%d" % (i // 4))
            e("v_and_b32 v%d, v%d, v%d" % (b, vP + i, vM01)); e("v_and_b32 v%d, v%d, v%d" % (b + 1, vP + i, vM23))
    ands(0)
    for i in range(NL):
        if i + 1 < NL:
            ands(i + 1)
        if ones and i >= 1:
            pass
        g.lwait("W%d" % i)
        if i == 0 or ones:
            g.nop(2)
        b = vGAA + 2 * (i % 2); wb = vGW + 4 * (i % 4)
        e("v_mfma_f32_4x4x4_16b_bf16 v[%d:%d], v[%d:%d], v[%d:%d], v[%d:%d]" % (vGA, vGA + 3, b, b + 1, wb, wb + 1, vGA, vGA + 3))
        e("v_mfma_f32_4x4x4_16b_bf16 v[%d:%d], v[%d:%d], v[%d:%d], v[%d:%d]" % (vGA + 4, vGA + 7, b, b + 1, wb + 2, wb + 3, vGA + 4, vGA + 7))
        if i + 4 < NL:
            g.lds("ds_read_b128 v[%d:%d], v%d offset:%d" % (wb, wb + 3, vRW, (i + 4) * 1024), "W%d" % (i + 4))
    reduce8_to_col(vGA, vGAA)
    e("ds_write_b32 v%d, v%d" % (vRR, vGAA))
    g.lg = []

def wave_sum2(a, b, t):
    for ctl in ("quad_perm:[1,0,3,2]", "quad_perm:[2,3,0,1]", "row_half_mirror", "row_mirror"):
        g.nop(1)
        e("v_add_f32_dpp v%d, v%d, v%d %s row_mask:0xf bank_mask:0xf" % (a, a, a, ctl))
        e("v_add_f32_dpp v%d, v%d, v%d %s row_mask:0xf bank_mask:0xf" % (b, b, b, ctl))
    g.nop(2)
    e("v_permlane32_swap_b32 v%d, v%d" % (a, b))
    e("v_add_f32 v%d, v%d, v%d" % (a, a, b))
    e("v_mov_b32 v%d, v%d" % (t, a))
    g.nop(2)
    e("v_permlane16_swap_b32 v%d, v%d" % (a, t))
    e("v_add_f32 v%d, v%d, v%d" % (a, a, t))

def x_to_p_and_stats(x0):
    for i in range(4):
        e("v_cvt_pk_bf16_f32 v%d, v%d, v%d" % (vGW + i, x0 + i, x0 + i))
    e("ds_write_b128 v%d, v[%d:%d]" % (vPW, vGW, vGW + 3))
    e("v_add_f32 v%d, v%d, v%d" % (vT, x0, x0 + 1))
    e("v_add_f32 v%d, v%d, v%d" % (vT + 1, x0 + 2, x0 + 3))
    e("v_mul_f32 v%d, v%d, v%d" % (vT + 2, x0, x0))
    e("v_add_f32 v%d, v%d, v%d" % (vT, vT, vT + 1))
    for i in (1, 2, 3):
        e("v_fmac_f32 v%d, v%d, v%d" % (vT + 2, x0 + i, x0 + i))
    e("v_mul_f32 v%d, v%d, v%d" % (vT, vT, vFL))
    e("v_mul_f32 v%d, v%d, v%d" % (vT + 2, vT + 2, vFL))
    wave_sum2(vT, vT + 2, vT + 1)
    e("v_lshrrev_b32 v%d, 5, v0" % (vT + 1))
    e("v_lshlrev_b32 v%d, 2, v%d" % (vT + 1, vT + 1))
    e("s_lshl_b32 s%d, s%d, 3" % (sT, sW)); e("s_add_u32 s%d, s%d, %d" % (sT, sT, ST))
    e("v_add_u32 v%d, s%d, v%d" % (vT + 1, sT, vT + 1))
    e("s_mov_b32 exec_lo, 1"); e("s_mov_b32 exec_hi, 1")
    e("ds_write_b32 v%d, v%d" % (vT + 1, vT))
    e("s_mov_b64 exec, -1")
    e("s_waitcnt lgkmcnt(0)")

def final_col_sum(y, with_ln):
    e("v_lshlrev_b32 v%d, 2, v0" % vT)
    e("v_add_u32 v%d, %d, v%d" % (vT + 1, RED, vT))
    e("ds_read2_b32 v[%d:%d], v%d offset0:0 offset1:64" % (16, 17, vT + 1))
    e("ds_read2_b32 v[%d:%d], v%d offset0:128 offset1:192" % (18, 19, vT + 1))
    if with_ln:
        e("v_mov_b32 v%d, %d" % (vT + 2, ST))
        e("ds_read_b128 v[20:23], v%d" % (vT + 2))
        e("ds_read_b128 v[24:27], v%d offset:16" % (vT + 2))
        e("v_add_u32 v%d, %d, v%d" % (vT + 1, CS, vT))
        e("ds_read_b32 v28, v%d" % (vT + 1))
    e("s_waitcnt lgkmcnt(0)")
    e("v_add_f32 v16, v16, v17"); e("v_add_f32 v18, v18, v19"); e("v_add_f32 v%d, v16, v18" % y)
    if with_ln:
        e("v_add_f32 v20, v20, v22"); e("v_add_f32 v24, v24, v26"); e("v_add_f32 v20, v20, v24")
        e("v_add_f32 v21, v21, v23"); e("v_add_f32 v25, v25, v27"); e("v_add_f32 v21, v21, v25")
        e("v_mul_f32 v20, 0x3acccccd, v20")
        e("v_mul_f32 v21, 0x3acccccd, v21")
        e("v_fma_f32 v21, -v20, v20, v21")
        e("v_add_f32 v21, 0x3727c5ac, v21")
        e("v_rsq_f32 v21, v21")
        e("v_fma_f32 v%d, -v20, v28, v%d" % (y, y))
        e("v_mul_f32 v%d, v%d, v21" % (y, y))

def round_bf16(r, t=None):
    e("v_cvt_pk_bf16_f32 v%d, v%d, v%d" % (r, r, r))
    e("v_and_b32 v%d, 0xffff0000, v%d" % (r, r))

def pack_pair_even(y, out):
    g.nop(2)
    e("v_mov_b32_dpp v%d, v%d quad_perm:[1,0,3,2] row_mask:0xf bank_mask:0xf" % (out, y))
    e("v_cvt_pk_bf16_f32 v%d, v%d, v%d" % (out, y, out))

def pack8(y, out):
    g.nop(2)
    e("v_mov_b32_dpp v%d, v%d quad_perm:[1,0,3,2] row_mask:0xf bank_mask:0xf" % (out, y))
    e("v_cvt_pk_bf16_f32 v%d, v%d, v%d" % (out, y, out))
    g.nop(2)
    e("v_mov_b32_dpp v%d, v%d quad_perm:[2,3,0,1] row_mask:0xf bank_mask:0xf" % (out + 1, out))
    e("v_mov_b32_dpp v%d, v%d row_shl:4 row_mask:0xf bank_mask:0xf" % (out + 2, out))
    g.nop(1)
    e("v_mov_b32_dpp v%d, v%d row_shl:4 row_mask:0xf bank_mask:0xf" % (out + 3, out + 1))

def exec8():
    e("s_mov_b32 exec_lo, 0x01010101"); e("s_mov_b32 exec_hi, 0x01010101")

def colsum(NL):
    gemv64(NL, ones=True)
    e("s_waitcnt lgkmcnt(0)")
    e("s_barrier")
    lab = g.newlab("L_cs")
    e("s_cmp_lg_u32 s%d, 0" % sW)
    e("s_cbranch_scc1 %s" % lab)
    final_col_sum(30, False)
    e("v_add_u32 v%d, %d, v%d" % (vT + 1, CS, vT))
    e("ds_write_b32 v%d, v30" % (vT + 1))
    e("s_waitcnt lgkmcnt(0)")
    g.lab(lab)
    e("s_barrier")

def s3_wload(vT=vT):
    e("v_bfe_u32 v%d, v0, 1, 4" % vT)
    e("v_mul_u32_u24 v%d, %d, v%d" % (vT, 4 * 1280, vT))
    e("v_lshrrev_b32 v%d, 5, v0" % (vT + 1))
    e("v_mul_u32_u24 v%d, 1280, v%d" % (vT + 1, vT + 1))
    e("v_add_u32 v%d, v%d, v%d" % (vT, vT, vT + 1))
    e("v_and_b32 v%d, 1, v0" % (vT + 1))
    e("v_lshl_add_u32 v%d, v%d, 4, v%d" % (vT, vT + 1, vT))
    e("s_mul_i32 s42, s%d, %d" % (sW, 432 * 1280))
    e("s_lshl_b32 s43, s%d, 5" % sJ)
    e("s_add_u32 s42, s42, s43")
    e("s_mul_i32 s43, s%d, 14336" % sW); e("s_add_u32 s43, s43, %d" % LP)
    for ld in range(14):
        i0 = 2 * ld
        rowoff = (64 * (i0 // 4) + (i0 % 4)) * 1280
        e("s_mov_b32 m0, s43")
        e("s_add_u32 s44, s42, %d" % rowoff)
        e("buffer_load_dwordx4 v%d, s[%d:%d], s44 offen %slds" % (vT, sWT, sWT + 3, WNT))
        e("s_add_u32 s43, s43, 1024")

XRM = 0 if OPT.get("nox2r") else 3
def x2_replica():
    e("s_and_b32 s%d, s%d, %d" % (sT + 1, sJ, XRM)); e("s_mul_i32 s%d, s%d, %d" % (sT + 1, sT + 1, X2R)); e("s_add_u32 s%d, s%d, s%d" % (sT, sT, sT + 1))

def s4_block():
    g.lab("L_s4")
    e("s_mov_b32 s%d, s%d" % (sTQ, sINV))
    s4_consts()
    nc = g.newlab("L_s4nc")
    e("s_cmp_lg_u32 s%d, 1" % sTQ); e("s_cbranch_scc1 %s" % nc)
    ts(24)
    e("s_waitcnt vmcnt(0)")
    ts(25)
    colsum(20)
    ts(26)
    g.lab(nc)
    e("s_sub_u32 s%d, s%d, 1" % (sT, sTQ)); e("s_mul_i32 s%d, s%d, %d" % (sT, sT, X2_ST)); e("s_add_u32 s%d, s%d, %d" % (sT, sT, WS_X2))
    x2_replica()
    e("v_add_u32 v%d, s%d, v%d" % (50, sT, vRB))
    fpoll(lambda: e("global_load_dwordx2 v[4:5], v50, s[%d:%d] sc1" % (sWS, sWS + 1)), 1, [4, 5], vT)
    ts_s4(0)
    e("v_lshlrev_b32 v16, 16, v4"); e("v_and_b32 v17, 0xffff0000, v4")
    e("v_lshlrev_b32 v18, 16, v5"); e("v_and_b32 v19, 0xffff0000, v5")
    x_to_p_and_stats(16)
    gemv64(20)
    e("s_waitcnt lgkmcnt(0)")
    e("s_barrier")
    lab = g.newlab("L_s4w")
    e("s_cmp_lg_u32 s%d, 0" % sW)
    e("s_cbranch_scc1 %s" % lab)
    final_col_sum(30, True)
    pack8(30, 32)
    e("s_mul_i32 s%d, s%d, %d" % (sT, sTQ, Q_ST)); e("s_add_u32 s%d, s%d, %d" % (sT, sT, WS_Q))
    e("s_lshl_b32 s%d, s%d, 7" % (sT + 1, sJ)); e("s_add_u32 s%d, s%d, s%d" % (sT, sT, sT + 1))
    e("v_lshlrev_b32 v%d, 1, v0" % vT); e("v_add_u32 v%d, s%d, v%d" % (vT, sT, vT))
    exec8()
    e("global_store_dwordx4 v%d, v[32:35], s[%d:%d] sc1" % (vT, sWS, sWS + 1))
    e("s_mov_b64 exec, -1")
    g.lab(lab)
    ts_s4(1)
    e("s_cmp_eq_u32 s%d, 3" % sTQ)
    e("s_cselect_b32 s%d, 1, 0" % sLAX)
    e("s_barrier")
    e("s_branch L_disp")

def ts_s4(which):
    if not OPT["ts"]:
        return
    e("s_memrealtime s[%d:%d]" % (sCLK, sCLK + 1))
    e("s_waitcnt lgkmcnt(0)")
    for tq, idx in ((1, 2 if which == 0 else 30), (3, 3 if which == 0 else 31)):
        e("s_cmp_eq_u32 s%d, %d" % (sTQ, tq))
        e("s_cselect_b32 s%d, s%d, s%d" % (sTS + idx, sCLK, sTS + idx))

def allreduce_rows(regs, tmps):
    for r, t in zip(regs, tmps): e("v_mov_b32 v%d, v%d" % (t, r))
    g.nop(2)
    for r, t in zip(regs, tmps): e("v_permlane16_swap_b32 v%d, v%d" % (r, t))
    for r, t in zip(regs, tmps): e("v_add_f32 v%d, v%d, v%d" % (r, r, t))
    for r, t in zip(regs, tmps): e("v_mov_b32 v%d, v%d" % (t, r))
    g.nop(2)
    for r, t in zip(regs, tmps): e("v_permlane32_swap_b32 v%d, v%d" % (r, t))
    for r, t in zip(regs, tmps): e("v_add_f32 v%d, v%d, v%d" % (r, r, t))

def q_initial():
    st = [44, 45, 46, 47]
    for b in range(2):
        for i in range(8):
            x = vXA + 8 * b + i
            if i == 0:
                e("v_dot2_f32_bf16 v%d, v%d, s%d, 0" % (st[2 * b], x, sONE))
                e("v_dot2_f32_bf16 v%d, v%d, v%d, 0" % (st[2 * b + 1], x, x))
            else:
                e("v_dot2_f32_bf16 v%d, v%d, s%d, v%d" % (st[2 * b], x, sONE, st[2 * b]))
                e("v_dot2_f32_bf16 v%d, v%d, v%d, v%d" % (st[2 * b + 1], x, x, st[2 * b + 1]))
    g.nop(3)
    for ctl in ("quad_perm:[1,0,3,2]", "quad_perm:[2,3,0,1]", "row_half_mirror", "row_mirror"):
        for r in st:
            e("v_add_f32_dpp v%d, v%d, v%d %s row_mask:0xf bank_mask:0xf" % (r, r, r, ctl))
    allreduce_rows(st, [48, 49, 50, 51])
    for b in range(2):
        m, v = st[2 * b], st[2 * b + 1]
        e("v_mul_f32 v%d, 0x3acccccd, v%d" % (m, m))
        e("v_mul_f32 v%d, 0x3acccccd, v%d" % (v, v))
        e("v_fma_f32 v%d, -v%d, v%d, v%d" % (v, m, m, v))
        e("v_add_f32 v%d, 0x3727c5ac, v%d" % (v, v))
        e("v_rsq_f32 v%d, v%d" % (v, v))
    e("s_nop 0")
    for b in range(2):
        for i in range(5):
            r = vXR + 5 * b + i
            e("v_lshlrev_b32 v%d, 16, v%d" % (r, r))
            e("v_sub_f32 v%d, v%d, v%d" % (r, r, st[2 * b]))
            e("v_mul_f32 v%d, v%d, v%d" % (r, r, st[2 * b + 1]))
            e("v_cvt_pk_bf16_f32 v%d, v%d, v%d" % (r, r, r))
    for i in range(16): e("v_mov_b32 v%d, 0" % (16 + i))
    n = 0
    for i in range(5):
        for b in range(2):
            A = 52 + 2 * (n % 2); n += 1
            e("v_and_b32 v%d, v%d, v%d" % (A, vXR + 5 * b + i, vM01)); e("v_and_b32 v%d, v%d, v%d" % (A + 1, vXR + 5 * b + i, vM23))
            g.nop(2)
            acc = 16 + 8 * b
            e("v_mfma_f32_4x4x4_16b_bf16 v[%d:%d], v[%d:%d], a[%d:%d], v[%d:%d]" % (acc, acc + 3, A, A + 1, 4 * i, 4 * i + 1, acc, acc + 3))
            e("v_mfma_f32_4x4x4_16b_bf16 v[%d:%d], v[%d:%d], a[%d:%d], v[%d:%d]" % (acc + 4, acc + 7, A, A + 1, 4 * i + 2, 4 * i + 3, acc + 4, acc + 7))
    g.nop(5)
    for b in range(2):
        acc = 16 + 8 * b
        for i in range(4):
            e("v_permlane32_swap_b32 v%d, v%d" % (acc + i, acc + 4 + i))
    for b in range(2):
        acc = 16 + 8 * b
        for i in range(4):
            e("v_add_f32 v%d, v%d, v%d" % (acc + i, acc + i, acc + 4 + i))
    g.nop(1)
    for b in range(2):
        acc = 16 + 8 * b
        e("v_permlane16_swap_b32 v%d, v%d" % (acc, acc + 1))
        e("v_permlane16_swap_b32 v%d, v%d" % (acc + 2, acc + 3))
    for b in range(2):
        acc = 16 + 8 * b
        e("v_add_f32 v%d, v%d, v%d" % (acc, acc, acc + 1))
        e("v_add_f32 v%d, v%d, v%d" % (acc + 2, acc + 2, acc + 3))
    t1 = vT + 1
    e("s_lshl_b32 s%d, s%d, 10" % (sT, sW)); e("s_add_u32 s%d, s%d, %d" % (sT, sT, LP))
    e("v_and_b32 v%d, 15, v0" % t1); e("v_lshlrev_b32 v%d, 5, v%d" % (t1, t1))
    e("v_lshrrev_b32 v%d, 5, v0" % (vT + 3)); e("v_lshl_add_u32 v%d, v%d, 4, v%d" % (t1, vT + 3, t1))
    e("v_bfe_u32 v%d, v0, 4, 1" % (vT + 3)); e("v_lshl_add_u32 v%d, v%d, 2, v%d" % (t1, vT + 3, t1))
    e("v_add_u32 v%d, s%d, v%d" % (t1, sT, t1))
    e("ds_write2_b32 v%d, v16, v18 offset0:0 offset1:2" % t1)
    e("ds_write2_b32 v%d, v24, v26 offset0:128 offset1:130" % t1)
    e("s_waitcnt lgkmcnt(0)")
    e("s_barrier")
    lab = g.newlab("L_qiw")
    e("s_cmp_lg_u32 s%d, 0" % sW); e("s_cbranch_scc1 %s" % lab)
    e("v_lshlrev_b32 v%d, 4, v0" % t1); e("v_add_u32 v%d, %d, v%d" % (t1, LP, t1))
    for w in range(4):
        e("ds_read_b128 v[%d:%d], v%d offset:%d" % (16 + 4 * w, 19 + 4 * w, t1, w * 1024))
    qp_own_addr(vT + 2)
    e("s_waitcnt lgkmcnt(0)")
    for d in range(4):
        e("v_add_f32 v%d, v%d, v%d" % (16 + d, 16 + d, 20 + d)); e("v_add_f32 v%d, v%d, v%d" % (24 + d, 24 + d, 28 + d))
    for d in range(4):
        e("v_add_f32 v%d, v%d, v%d" % (16 + d, 16 + d, 24 + d))
    e("global_store_dwordx4 v%d, v[16:19], s[%d:%d] sc1" % (vT + 2, sWS, sWS + 1))
    g.lab(lab)

def qp_addr(dst):
    e("s_mov_b32 s%d, %d" % (sT, WS_QP))
    e("s_lshl_b32 s%d, s%d, 12" % (sT + 1, sH)); e("s_add_u32 s%d, s%d, s%d" % (sT, sT, sT + 1))
    e("v_lshrrev_b32 v%d, 4, v0" % dst); e("v_lshlrev_b32 v%d, 10, v%d" % (dst, dst))
    e("v_and_b32 v%d, 15, v0" % (dst + 1)); e("v_lshl_add_u32 v%d, v%d, 5, v%d" % (dst, dst + 1, dst))
    e("v_add_u32 v%d, s%d, v%d" % (dst, sT, dst))
    e("v_add_u32 v%d, %d, v%d" % (dst + 1, QP_B, dst))

def qp_issue(addr):
    for b in range(2):
        for i, off in enumerate((0, 16, 512, 528)):
            e("global_load_dwordx4 v[%d:%d], v%d, s[%d:%d] offset:%d sc1" % (16 + 16 * b + 4 * i, 19 + 16 * b + 4 * i, addr + b, sWS, sWS + 1, off))

def qp_finish(addr):
    bad = g.newlab("L_qbad"); good = g.newlab("L_qgood")
    sentinel_check(list(range(16, 48)), bad, vT)
    e("s_branch %s" % good)
    g.lab(bad)
    poll(lambda: qp_issue(addr), list(range(16, 48)), vT)
    g.lab(good)
    for b in range(2):
        for i in range(8): e("v_add_f32 v%d, v%d, v%d" % (16 + 16 * b + i, 16 + 16 * b + i, 24 + 16 * b + i))
    allreduce_rows(list(range(16, 24)) + list(range(32, 40)), list(range(24, 32)) + list(range(40, 48)))
    for i in range(4): e("v_cvt_pk_bf16_f32 v%d, v%d, v%d" % (vQ + i, 16 + 2 * i, 17 + 2 * i))
    for i in range(4): e("v_cvt_pk_bf16_f32 v%d, v%d, v%d" % (48 + i, 32 + 2 * i, 33 + 2 * i))
    e("s_lshl_b32 s%d, s%d, 8" % (sT, sW)); e("s_add_u32 s%d, s%d, %d" % (sT, sT, Q2S))
    e("v_and_b32 v%d, 15, v0" % vT); e("v_lshlrev_b32 v%d, 4, v%d" % (vT, vT)); e("v_add_u32 v%d, s%d, v%d" % (vT, sT, vT))
    e("s_mov_b64 exec, 0xffff")
    e("ds_write_b128 v%d, v[48:51]" % vT)
    e("s_mov_b64 exec, -1")

DEPTH = int(OPT.get("depth", 58))
def kload(t, wait=None):
    if wait is not None:
        e("s_waitcnt vmcnt(%d)" % min(wait, DEPTH))
    if t < 48:
        e("buffer_load_dwordx4 v[%d:%d], v%d, s[%d:%d], s%d offen nt" % (vK0 + 4 * t, vK0 + 4 * t + 3, vKV, sK, sK + 3, sOFF))
        e("s_add_u32 s%d, s%d, 4096" % (sOFF, sOFF)); wrap()
    else:
        e("s_add_u32 m0, s%d, %d" % (sM0B, LQ + (t - 48) * 1024))
        e("s_nop 0")
        e("buffer_load_dwordx4 v%d, s[%d:%d], s%d offen nt lds" % (vKV, sK, sK + 3, sOFF))
        e("s_add_u32 s%d, s%d, 4096" % (sOFF, sOFF)); wrap()

def vload(t, wait=58):
    e("s_waitcnt vmcnt(%d)" % min(wait, DEPTH))
    e("buffer_load_dwordx4 a[%d:%d], v%d, s[%d:%d], s%d offen nt" % (4 * t, 4 * t + 3, vKV, sV, sV + 3, sOFF))
    e("s_add_u32 s%d, s%d, 4096" % (sOFF, sOFF)); wrap()

def lka():
    g.lab("L_lka")
    ts_first(5)
    e("s_mov_b32 s%d, s%d" % (sOFF, sBO))
    for t in range(56):
        if t == KPRE:
            g.lab("L_lka_pre")
        kload(t, 58 if t >= 32 else None)
    ts_first(6)
    e("s_cmp_eq_u32 s%d, 1" % sLKM)
    e("s_cbranch_scc1 L_softmax")

def lkbv():
    g.lab("L_lkbv")
    e("s_add_u32 s%d, s%d, %d" % (sOFF, sBO, 56 * 4096)); wrap()
    for t in range(56, 64):
        kload(t, 58)
    e("v_mov_b32 v%d, 0" % vT)
    e("global_load_dword v%d, v%d, s[%d:%d] sc1" % (vT + 1, vT, sDBG, sDBG + 1))
    e("s_mov_b32 s%d, s%d" % (sOFF, sBO))
    for t in range(32):
        vload(t)
    e("s_waitcnt vmcnt(32)")
    e("v_readfirstlane_b32 s%d, v%d" % (sT, vT + 1))
    ok = g.newlab("L_cok")
    e("s_cmp_ge_u32 s%d, 256" % sT)
    e("s_cbranch_scc1 %s" % ok)
    counter_spin()
    g.lab(ok)
    ts_first(7)
    e("s_lshl_b32 s%d, s%d, 1" % (sINV, sLKM))
    e("s_min_u32 s%d, s%d, 3" % (sINV, sINV))
    if OPT["ts"]:
        e("s_lshl_b32 s%d, s%d, 2" % (sT, sINV))
        e("s_lshr_b32 s%d, 0x6320, s%d" % (sPH, sT)); e("s_and_b32 s%d, s%d, 15" % (sPH, sPH))
    noq = g.newlab("L_noq")
    e("s_cmp_eq_u32 s%d, 2" % sLKM)
    e("s_cbranch_scc1 %s" % noq)
    qp_addr(vT + 2)
    qp_issue(vT + 2)
    g.lab(noq)
    if KEEPV:
        k2 = g.newlab("L_keepv")
        e("s_cmp_eq_u32 s%d, 2" % sLKM); e("s_cbranch_scc0 %s" % k2)
        for t in range(32, 44):
            vload(t, 58)
        e("s_branch L_disp")
        g.lab(k2)
    for t in range(32, 64):
        vload(t, 50 if t < 44 else 58)
    e("s_cmp_eq_u32 s%d, 2" % sLKM)
    e("s_cbranch_scc1 L_disp")
    e("s_waitcnt vmcnt(32)")
    qp_finish(vT + 2)
    if (not OPT.get("wearly")):
        e("s_cmp_eq_u32 s%d, 1" % sROLE)
    else:
        e("s_cmp_lg_u32 s%d, 0" % sROLE)
    e("s_cselect_b32 s%d, 1, 0" % sLAX)
    e("s_branch L_qk")

def mid2():
    g.lab("L_mid2")
    if EARLY1:
        e("s_mov_b32 s%d, s%d" % (sVO, sBO))
        for t in range(64):
            e("s_waitcnt vmcnt(58)")
            e("buffer_load_dwordx4 a[%d:%d], v%d, s[%d:%d], s%d offen nt" % (4 * t, 4 * t + 3, vKV, sV, sV + 3, sVO))
            e("s_add_u32 s%d, s%d, 4096" % (sVO, sVO))
            if t == FLAGPOS: flag_store()
    e("s_mov_b32 s%d, 2" % sINV)
    e("s_mov_b32 s%d, s%d" % (sLAX, sHAS4))
    if OPT["ts"]:
        e("s_mov_b32 s%d, 3" % sPH)
    q2_read()
    e("s_waitcnt vmcnt(58) lgkmcnt(0)")
    e("s_branch L_qk")

def q2_read():
    e("s_lshl_b32 s%d, s%d, 8" % (sT, sW)); e("s_add_u32 s%d, s%d, %d" % (sT, sT, Q2S))
    e("v_and_b32 v%d, 15, v0" % vT); e("v_lshlrev_b32 v%d, 4, v%d" % (vT, vT)); e("v_add_u32 v%d, s%d, v%d" % (vT, sT, vT))
    e("ds_read_b128 v[%d:%d], v%d" % (vQ, vQ + 3, vT))

def flag_store():
    nf = g.newlab("L_nofl")
    e("s_cmp_eq_u32 s%d, 0" % sW); e("s_cbranch_scc0 %s" % nf)
    e("s_lshl_b32 s%d, s%d, 7" % (sT, sH)); e("s_lshl_b32 s%d, s%d, 4" % (sT + 1, sS)); e("s_add_u32 s%d, s%d, s%d" % (sT, sT, sT + 1))
    e("s_add_u32 s%d, s%d, %d" % (sT, sT, WS_FL))
    e("v_mov_b32 v48, s%d" % sT)
    for i in range(4): e("v_mov_b32 v%d, 0" % (52 + i))
    e("s_mov_b64 exec, 1")
    e("global_store_dwordx4 v48, v[52:55], s[%d:%d] sc1" % (sWS, sWS + 1))
    e("s_mov_b64 exec, -1")
    g.lab(nf)

def pv_c():
    g.lab("L_pvc")
    e("s_mov_b32 s%d, s%d" % (sVO, sBO))
    for i in range(8):
        e("v_mov_b32 v%d, 0" % (vACC + i))
    def ands(t):
        b = vA + 2 * (t % 3); T, u = t // 4, t % 4
        e("v_and_b32_dpp v%d, v%d, v%d row_newbcast:%d row_mask:0xf bank_mask:0xf" % (b, vS + T, vM01, BC * u))
        e("v_and_b32_dpp v%d, v%d, v%d row_newbcast:%d row_mask:0xf bank_mask:0xf" % (b + 1, vS + T, vM23, BC * u))
    def vl(t):
        e("s_waitcnt vmcnt(%d)" % min(58, int(OPT.get("depthc", 58))))
        e("buffer_load_dwordx4 a[%d:%d], v%d, s[%d:%d], s%d offen nt" % (4 * t, 4 * t + 3, vKV, sV, sV + 3, sVO))
        e("s_add_u32 s%d, s%d, 4096" % (sVO, sVO))
        if t == FLAGPOS: flag_store()
    ands(0)
    for t in range(64):
        if t + 1 < 64: ands(t + 1)
        else: g.nop(2)
        b = vA + 2 * (t % 3)
        e("v_mfma_f32_4x4x4_16b_bf16 v[%d:%d], v[%d:%d], a[%d:%d], v[%d:%d]" % (vACC, vACC + 3, b, b + 1, 4 * t, 4 * t + 1, vACC, vACC + 3))
        e("v_mfma_f32_4x4x4_16b_bf16 v[%d:%d], v[%d:%d], a[%d:%d], v[%d:%d]" % (vACC + 4, vACC + 7, b, b + 1, 4 * t + 2, 4 * t + 3, vACC + 4, vACC + 7))
        if t < 8 and not QKC: kload(56 + t, 58)
        if t >= 2: vl(t - 2)
    vl(62); vl(63)
    e("s_branch L_pvdone")

def pv_w():
    g.lab("L_pvw")
    e("s_mov_b32 s%d, 0" % sLAX)
    NL, rowb, tv = 16, 1280, 48
    e("v_lshrrev_b32 v%d, 3, v0" % tv)
    e("v_mul_u32_u24 v%d, %d, v%d" % (tv, NL * rowb, tv))
    e("v_and_b32 v%d, 7, v0" % (tv + 1))
    e("v_lshl_add_u32 v%d, v%d, 4, v%d" % (tv, tv + 1, tv))
    e("s_mul_i32 s42, s%d, %d" % (sW, 8 * NL))
    e("s_lshl_b32 s44, s%d, 9" % sKS); e("s_add_u32 s42, s42, s44")
    e("s_mul_i32 s42, s42, %d" % rowb)
    e("s_lshl_b32 s45, s%d, 7" % sGRP); e("s_add_u32 s42, s42, s45")
    e("s_mul_i32 s43, s%d, %d" % (sW, NL * 1024)); e("s_add_u32 s43, s43, %d" % LP)
    for i in range(8):
        e("v_mov_b32 v%d, 0" % (vACC + i))
    def ands(t):
        b = vA + 2 * (t % 3); T, u = t // 4, t % 4
        e("v_and_b32_dpp v%d, v%d, v%d row_newbcast:%d row_mask:0xf bank_mask:0xf" % (b, vS + T, vM01, BC * u))
        e("v_and_b32_dpp v%d, v%d, v%d row_newbcast:%d row_mask:0xf bank_mask:0xf" % (b + 1, vS + T, vM23, BC * u))
    ands(0)
    for t in range(64):
        if t + 1 < 64: ands(t + 1)
        else: g.nop(2)
        if t % 4 == 0:
            e("s_waitcnt vmcnt(%d)" % min(63, 60 - t + t // 4))
        b = vA + 2 * (t % 3)
        e("v_mfma_f32_4x4x4_16b_bf16 v[%d:%d], v[%d:%d], a[%d:%d], v[%d:%d]" % (vACC, vACC + 3, b, b + 1, 4 * t, 4 * t + 1, vACC, vACC + 3))
        e("v_mfma_f32_4x4x4_16b_bf16 v[%d:%d], v[%d:%d], a[%d:%d], v[%d:%d]" % (vACC + 4, vACC + 7, b, b + 1, 4 * t + 2, 4 * t + 3, vACC + 4, vACC + 7))
        if t % 4 == 1:
            e("s_mov_b32 m0, s43")
            e("s_add_u32 s43, s43, 1024")
            e("buffer_load_dwordx4 v%d, s[%d:%d], s42 offen %slds" % (tv, sWT, sWT + 3, WNT))
            e("s_add_u32 s42, s42, %d" % rowb)
    e("s_branch L_pvdone")

def pv_n():
    g.lab("L_pvn")
    for i in range(8):
        e("v_mov_b32 v%d, 0" % (vACC + i))
    def ands(t):
        b = vA + 2 * (t % 3); T, u = t // 4, t % 4
        e("v_and_b32_dpp v%d, v%d, v%d row_newbcast:%d row_mask:0xf bank_mask:0xf" % (b, vS + T, vM01, BC * u))
        e("v_and_b32_dpp v%d, v%d, v%d row_newbcast:%d row_mask:0xf bank_mask:0xf" % (b + 1, vS + T, vM23, BC * u))
    e("s_waitcnt lgkmcnt(0)")
    ands(0)
    for t in range(64):
        if t + 1 < 64: ands(t + 1)
        else: g.nop(2)
        b = vA + 2 * (t % 3)
        r, n = ("a", 4 * t) if t < 44 else ("v", vK0 + 4 * (t - 44))
        e("v_mfma_f32_4x4x4_16b_bf16 v[%d:%d], v[%d:%d], %s[%d:%d], v[%d:%d]" % (vACC, vACC + 3, b, b + 1, r, n, n + 1, vACC, vACC + 3))
        e("v_mfma_f32_4x4x4_16b_bf16 v[%d:%d], v[%d:%d], %s[%d:%d], v[%d:%d]" % (vACC + 4, vACC + 7, b, b + 1, r, n + 2, n + 3, vACC + 4, vACC + 7))
    e("s_branch L_pvdone")

def qaddr(dst):
    e("s_mul_i32 s%d, s%d, %d" % (sT, sINV, Q_ST)); e("s_add_u32 s%d, s%d, %d" % (sT, sT, WS_Q))
    e("s_lshl_b32 s%d, s%d, 8" % (sT + 1, sH)); e("s_add_u32 s%d, s%d, s%d" % (sT, sT, sT + 1))
    e("v_and_b32 v%d, 15, v0" % dst); e("v_lshlrev_b32 v%d, 4, v%d" % (dst, dst))
    e("v_add_u32 v%d, s%d, v%d" % (dst, sT, dst))

def dots(T, par, from_kt):
    out = []
    for jj in range(4):
        for u in range(4):
            src = (vKT + 4 * u + jj) if from_kt else (vK0 + 4 * (4 * T + u) + jj)
            d = vD + 4 * par + u
            if jj == 0:
                out.append("v_dot2_f32_bf16 v%d, v%d, v%d, 0" % (d, src, vQ + jj))
            else:
                out.append("v_dot2c_f32_bf16 v%d, v%d, v%d" % (d, src, vQ + jj))
    return out
def red(T, par):
    d = vD + 4 * par; s = vS + T
    return [
        "v_add_f32_dpp v%d, v%d, v%d row_ror:8 row_mask:0xf bank_mask:0x3" % (vE, d, d),
        "v_add_f32_dpp v%d, v%d, v%d row_ror:8 row_mask:0xf bank_mask:0x3" % (vE + 1, d + 1, d + 1),
        "v_add_f32_dpp v%d, v%d, v%d row_ror:8 row_mask:0xf bank_mask:0xc" % (vE, d + 2, d + 2),
        "v_add_f32_dpp v%d, v%d, v%d row_ror:8 row_mask:0xf bank_mask:0xc" % (vE + 1, d + 3, d + 3),
        "v_add_f32_dpp v%d, v%d, v%d row_shl:4 row_mask:0xf bank_mask:0x5" % (s, vE, vE),
        "v_add_f32_dpp v%d, v%d, v%d row_shr:4 row_mask:0xf bank_mask:0xa" % (s, vE + 1, vE + 1),
        "v_add_f32_dpp v%d, v%d, v%d quad_perm:[1,0,3,2] row_mask:0xf bank_mask:0xf" % (s, s, s),
        "v_add_f32_dpp v%d, v%d, v%d quad_perm:[2,3,0,1] row_mask:0xf bank_mask:0xf" % (s, s, s),
    ]
def mqk_stream(tiles):
    vDD, vTT = 48, 60
    for u in (1, 2, 3):
        e("s_mov_b32 s%d, 0x%08x" % (30 + 2 * u, 0x11111111 << u)); e("s_mov_b32 s%d, 0x%08x" % (31 + 2 * u, 0x11111111 << u))
    def M(i):
        T, u, src, pre, post = tiles[i]
        d = vDD + 4 * (i % 3)
        return ["v_mfma_f32_4x4x4_16b_bf16 v[%d:%d], v[%d:%d], v[%d:%d], 0" % (d, d + 3, vQ, vQ + 1, src, src + 1),
                "v_mfma_f32_4x4x4_16b_bf16 v[%d:%d], v[%d:%d], v[%d:%d], v[%d:%d]" % (d, d + 3, vQ + 2, vQ + 3, src + 2, src + 3, d, d + 3)]
    def V(i):
        T, u, src, pre, post = tiles[i]
        d = vDD + 4 * (i % 3); s_ = vS + T
        o = [r for r in range(4) if r != u]
        qp = lambda r: "quad_perm:[%d,%d,%d,%d] row_mask:0xf bank_mask:0xf" % (r, r, r, r)
        out = ["v_add_f32_dpp v%d, v%d, v%d %s" % (vTT, d + o[0], d + u, qp(o[0])),
               "v_add_f32_dpp v%d, v%d, v%d %s" % (vTT, d + o[1], vTT, qp(o[1])),
               "v_add_f32_dpp v%d, v%d, v%d %s" % (s_ if u == 0 else vTT, d + o[2], vTT, qp(o[2]))]
        if u:
            out.append("v_cndmask_b32_e64 v%d, v%d, v%d, s[%d:%d]" % (s_, s_, vTT, 30 + 2 * u, 31 + 2 * u))
        return out
    def F(T, k):
        return "v_add_f32_dpp v%d, v%d, v%d row_ror:%d row_mask:0xf bank_mask:0xf" % (vS + T, vS + T, vS + T, 8 if k == 0 else 4)
    n = len(tiles)
    fin = None
    for i in range(n + 2):
        m = []
        if i < n:
            if tiles[i][3]: tiles[i][3]()
            m = M(i)
        v = V(i - 2) if i >= 2 else []
        if i >= n:
            g.nop(3)
        if i == 2:
            g.nop(3)
        if m: e(m[0])
        for x in v[:2]: e(x)
        if fin is not None:
            if not m: g.nop(2)
            e(F(fin, 0))
        if m and not v: g.nop(2)
        if m: e(m[1])
        for x in v[2:]: e(x)
        if fin is not None:
            g.nop(2)
            e(F(fin, 1)); fin = None
        if i < n and tiles[i][4]: tiles[i][4]()
        if i >= 2 and tiles[i - 2][1] == 3:
            fin = tiles[i - 2][0]
    g.nop(2); e(F(fin, 0)); g.nop(2); e(F(fin, 1)); g.nop(2)

def red_tail(prev):
    r = red(*prev)
    g.nop(3)
    for i, x in enumerate(r):
        e(x)
        if i >= 3: g.nop(2)
        elif i == 1: g.nop(1)

sRM = 45
RD = int(OPT.get("ringd", 20))
RQ = RD - 20
def ring_slot(n):
    j = n % RD
    return (True, LQ + j * 1024) if j < RQ else (False, (j - RQ) * 1024)
def ring_issue(n):
    srd = sK if n < 64 else sV
    if n == 64:
        e("s_mov_b32 s%d, 0x4000000" % sOFF)
    inq, off = ring_slot(n)
    e("s_add_u32 m0, s%d, %d" % (sM0B if inq else sRM, off))
    e("s_nop 0")
    e("buffer_load_dwordx4 v%d, s[%d:%d], s%d offen %slds" % (vKV, srd, srd + 3, sOFF, "" if OPT.get("ringnt0") else "nt "))
    e("s_add_u32 s%d, s%d, 4096" % (sOFF, sOFF))
def ring_wait(G):
    issued = min(128, RD + 4 * G)
    e("s_waitcnt vmcnt(%d)" % (issued - (4 * G + 4)))

def ring_k():
    g.lab("L_ring")
    e("s_mul_i32 s%d, s%d, 20480" % (sRM, sW)); e("s_add_u32 s%d, s%d, %d" % (sRM, sRM, RING))
    if OPT.get("gate"):
        e("v_lshlrev_b32 v%d, 4, v0" % (vT + 2)); e("v_add_u32 v%d, %d, v%d" % (vT + 2, WS_GO, vT + 2))
        e("s_mov_b32 exec_hi, 0")
        poll(lambda: e("global_load_dword v%d, v%d, s[%d:%d] sc1" % (vT + 3, vT + 2, sWS, sWS + 1)), [vT + 3], vT)
        e("s_mov_b64 exec, -1")
    e("s_mov_b32 s%d, 0x4000000" % sOFF)
    for n in range(RD):
        ring_issue(n)
    q2_read()
    e("s_waitcnt lgkmcnt(0)")
    ts_dyn(8)
    ra = vT + 3
    rq = vT + 4
    e("v_lshlrev_b32 v%d, 4, v0" % ra); e("v_add_u32 v%d, s%d, v%d" % (rq, sM0B, ra)); e("v_add_u32 v%d, s%d, v%d" % (ra, sRM, ra))
    if MQK:
        tiles = []
        for G in range(16):
            def pre(G=G):
                ring_wait(G)
                for u in range(4):
                    inq, off = ring_slot(4 * G + u)
                    e("ds_read_b128 v[%d:%d], v%d offset:%d" % (vKT + 4 * u, vKT + 4 * u + 3, rq if inq else ra, off))
                e("s_waitcnt lgkmcnt(0)")
                for u in range(4):
                    ring_issue(4 * G + u + RD)
            for u in range(4):
                tiles.append((G, u, vKT + 4 * u, pre if u == 0 else None, None))
        mqk_stream(tiles)
        e("s_mov_b32 s%d, 1" % sRING)
        e("s_branch L_softmax")
        return
    prev = None
    for G in range(16):
        par = G % 2
        ring_wait(G)
        for u in range(4):
            inq, off = ring_slot(4 * G + u)
            e("ds_read_b128 v[%d:%d], v%d offset:%d" % (vKT + 4 * u, vKT + 4 * u + 3, rq if inq else ra, off))
        if prev is not None:
            r = red(*prev)
            for i, x in enumerate(r):
                e(x)
                if i >= 3: g.nop(2)
                elif i == 1: g.nop(1)
        e("s_waitcnt lgkmcnt(0)")
        for u in range(4):
            ring_issue(4 * G + u + RD)
        for x in dots(G, par, True): e(x)
        g.nop(3)
        prev = (G, par)
    red_tail(prev)
    e("s_mov_b32 s%d, 1" % sRING)
    e("s_branch L_softmax")

def ring_pv():
    g.lab("L_pvring")
    e("s_mov_b32 s%d, 0" % sRING)
    VT = [46, 50, 54, 60]
    ra = 44; rq = 45
    e("v_lshlrev_b32 v%d, 4, v0" % ra); e("v_add_u32 v%d, s%d, v%d" % (rq, sM0B, ra)); e("v_add_u32 v%d, s%d, v%d" % (ra, sRM, ra))
    for i in range(8):
        e("v_mov_b32 v%d, 0" % (vACC + i))
    def ands(t):
        b = vA + 2 * (t % 2); T, u = t // 4, t % 4
        e("v_and_b32_dpp v%d, v%d, v%d row_newbcast:%d row_mask:0xf bank_mask:0xf" % (b, vS + T, vM01, BC * u))
        e("v_and_b32_dpp v%d, v%d, v%d row_newbcast:%d row_mask:0xf bank_mask:0xf" % (b + 1, vS + T, vM23, BC * u))
    for G in range(16, 32):
        ring_wait(G)
        for u in range(4):
            inq, off = ring_slot(4 * G + u)
            e("ds_read_b128 v[%d:%d], v%d offset:%d" % (VT[u], VT[u] + 3, rq if inq else ra, off))
        t0 = 4 * (G - 16)
        ands(t0)
        e("s_waitcnt lgkmcnt(0)")
        for u in range(4):
            if 4 * G + u + RD < 128:
                ring_issue(4 * G + u + RD)
        for u in range(4):
            t = t0 + u
            if u < 3: ands(t + 1)
            else: g.nop(2)
            b = vA + 2 * (t % 2)
            e("v_mfma_f32_4x4x4_16b_bf16 v[%d:%d], v[%d:%d], v[%d:%d], v[%d:%d]" % (vACC, vACC + 3, b, b + 1, VT[u], VT[u] + 1, vACC, vACC + 3))
            e("v_mfma_f32_4x4x4_16b_bf16 v[%d:%d], v[%d:%d], v[%d:%d], v[%d:%d]" % (vACC + 4, vACC + 7, b, b + 1, VT[u] + 2, VT[u] + 3, vACC + 4, vACC + 7))
    if RQ:
        e("s_mov_b32 s%d, %d" % (sOFF, 48 * 4096))
        for t in range(48, 48 + RQ):
            kload(t)
    e("s_branch L_pvdone")

def att_core():
    g.lab("L_att")
    qaddr(vT + 2)
    fpoll(lambda: e("global_load_dwordx4 v[%d:%d], v%d, s[%d:%d] sc1" % (vQ, vQ + 3, vT + 2, sWS, sWS + 1)), 1, [vQ, vQ + 1, vQ + 2, vQ + 3], vT)
    g.lab("L_qk")
    ts_dyn(8)
    e("v_lshlrev_b32 v%d, 4, v0" % (vT + 3)); e("v_add_u32 v%d, s%d, v%d" % (vT + 3, sM0B, vT + 3))
    order = []
    for j in range(4):
        order += [3 * j, 3 * j + 1, 3 * j + 2, 12 + j]
    def ldsread(j):
        return ["ds_read_b128 v[%d:%d], v%d offset:%d" % (vKT + 4 * u, vKT + 4 * u + 3, vT + 3, LQ + (4 * j + u) * 1024) for u in range(4)]
    def qk_m(reload):
        for x in ldsread(0): e(x)
        tiles = []
        for n, T in enumerate(order):
            for u in range(4):
                pre = post = None
                if T >= 12 and u == 0:
                    pre = lambda: e("s_waitcnt lgkmcnt(0)")
                if u == 3:
                    def post(n=n, T=T):
                        if T >= 12 and T < 15:
                            for x in ldsread(T - 12 + 1): e(x)
                        if reload:
                            if n >= 13: e("s_waitcnt vmcnt(58)")
                            for uu in range(4):
                                t = 4 * T + uu
                                e("s_mov_b32 s%d, 0x%x" % (sOFF, 0x4000000 + t * 4096))
                                if t < 48:
                                    e("buffer_load_dwordx4 v[%d:%d], v%d, s[%d:%d], s%d offen nt" % (vK0 + 4 * t, vK0 + 4 * t + 3, vKV, sK, sK + 3, sOFF))
                                else:
                                    e("s_add_u32 m0, s%d, %d" % (sM0B, LQ + (t - 48) * 1024))
                                    e("s_nop 0")
                                    e("buffer_load_dwordx4 v%d, s[%d:%d], s%d offen nt lds" % (vKV, sK, sK + 3, sOFF))
                tiles.append((T, u, (vKT + 4 * u) if T >= 12 else (vK0 + 4 * (4 * T + u)), pre, post))
        mqk_stream(tiles)
    def qk(reload):
        if MQK: return qk_m(reload)
        for x in ldsread(0): e(x)
        prev = None
        for n, T in enumerate(order):
            par = n % 2
            if T >= 12:
                e("s_waitcnt lgkmcnt(0)")
            main = dots(T, par, T >= 12)
            side = red(*prev) if prev is not None else []
            for x in interleave(main, side, 2): e(x)
            if T >= 12 and T < 15:
                for x in ldsread(T - 12 + 1): e(x)
            if reload:
                if n >= 13: e("s_waitcnt vmcnt(58)")
                for u in range(4):
                    t = 4 * T + u
                    e("s_mov_b32 s%d, 0x%x" % (sOFF, 0x4000000 + t * 4096))
                    if t < 48:
                        e("buffer_load_dwordx4 v[%d:%d], v%d, s[%d:%d], s%d offen nt" % (vK0 + 4 * t, vK0 + 4 * t + 3, vKV, sK, sK + 3, sOFF))
                    else:
                        e("s_add_u32 m0, s%d, %d" % (sM0B, LQ + (t - 48) * 1024))
                        e("s_nop 0")
                        e("buffer_load_dwordx4 v%d, s[%d:%d], s%d offen nt lds" % (vKV, sK, sK + 3, sOFF))
            prev = (T, par)
        red_tail(prev)
    if QKC:
        nqc = g.newlab("L_nqc")
        e("s_cmp_eq_u32 s%d, 1" % sINV); e("s_cbranch_scc0 %s" % nqc)
        e("s_cmp_eq_u32 s%d, 0" % sCLS); e("s_cbranch_scc0 %s" % nqc)
        qk(True)
        e("s_mov_b32 s%d, 0x4000000" % sBO)
        e("s_mov_b32 s%d, 1" % sLKM)
        e("s_branch L_softmax")
        g.lab(nqc)
    qk(False)
    if KEEPV:
        assert RD == 20 and not SN
        nk = g.newlab("L_nkv")
        e("s_cmp_eq_u32 s%d, 2" % sLKM); e("s_cbranch_scc0 %s" % nk)
        e("s_mul_i32 s%d, s%d, 20480" % (sT, sW)); e("s_add_u32 s%d, s%d, %d" % (sT, sT, RING))
        e("v_lshlrev_b32 v%d, 4, v0" % (vT + 2)); e("v_add_u32 v%d, s%d, v%d" % (vT + 2, sT, vT + 2))
        for t in range(44, 64):
            if t == 56: e("s_waitcnt lgkmcnt(0)")
            e("ds_read_b128 v[%d:%d], v%d offset:%d" % (vK0 + 4 * (t - 44), vK0 + 4 * (t - 44) + 3, vT + 2, ((64 + t) % 20) * 1024))
        e("s_branch L_softmax")
        g.lab(nk)
    nl = g.newlab("L_nolk")
    e("s_cmp_eq_u32 s%d, 1" % sINV)
    e("s_cbranch_scc0 %s" % nl)
    e("s_cmp_eq_u32 s%d, 0" % sCLS)
    e("s_cbranch_scc0 %s" % nl)
    e("s_mov_b32 s%d, 0x4000000" % sBO)
    e("s_mov_b32 s%d, 1" % sLKM)
    e("s_branch L_lka")
    g.lab(nl)
    g.lab("L_softmax")
    m = vT; t1 = vT + 2
    e("v_max3_f32 v%d, v%d, v%d, v%d" % (m, vS, vS + 1, vS + 2))
    for i in range(3, 15, 2):
        e("v_max3_f32 v%d, v%d, v%d, v%d" % (m, m, vS + i, vS + i + 1))
    e("v_max_f32 v%d, v%d, v%d" % (m, m, vS + 15))
    g.nop(2)
    R1, R2 = ("quad_perm:[1,0,3,2]", "quad_perm:[2,3,0,1]") if MQK else ("row_ror:4", "row_ror:8")
    e("v_max_f32_dpp v%d, v%d, v%d %s row_mask:0xf bank_mask:0xf" % (m, m, m, R1)); g.nop(2)
    e("v_max_f32_dpp v%d, v%d, v%d %s row_mask:0xf bank_mask:0xf" % (m, m, m, R2))
    e("v_mov_b32 v%d, v%d" % (t1, m)); g.nop(2)
    e("v_permlane16_swap_b32 v%d, v%d" % (m, t1)); e("v_max_f32 v%d, v%d, v%d" % (m, m, t1))
    e("v_mov_b32 v%d, v%d" % (t1, m)); g.nop(2)
    e("v_permlane32_swap_b32 v%d, v%d" % (m, t1)); e("v_max_f32 v%d, v%d, v%d" % (m, m, t1))
    e("v_mul_f32 v%d, s%d, v%d" % (m, sC, m))
    for i in range(16):
        e("v_fma_f32 v%d, v%d, s%d, -v%d" % (vS + i, vS + i, sC, m))
    for i in range(16):
        e("v_exp_f32 v%d, v%d" % (vS + i, vS + i))
    l = vT + 1
    e("v_add_f32 v%d, v%d, v%d" % (l, vS, vS + 1))
    for i in range(2, 16):
        e("v_add_f32 v%d, v%d, v%d" % (l, l, vS + i))
    for i in range(16):
        e("v_cvt_pk_bf16_f32 v%d, v%d, v%d" % (vS + i, vS + i, vS + i))
    e("v_add_f32_dpp v%d, v%d, v%d %s row_mask:0xf bank_mask:0xf" % (l, l, l, R1)); g.nop(2)
    e("v_add_f32_dpp v%d, v%d, v%d %s row_mask:0xf bank_mask:0xf" % (l, l, l, R2))
    e("v_mov_b32 v%d, v%d" % (t1, l)); g.nop(2)
    e("v_permlane16_swap_b32 v%d, v%d" % (l, t1)); e("v_add_f32 v%d, v%d, v%d" % (l, l, t1))
    e("v_mov_b32 v%d, v%d" % (t1, l)); g.nop(2)
    e("v_permlane32_swap_b32 v%d, v%d" % (l, t1)); e("v_add_f32 v%d, v%d, v%d" % (l, l, t1))
    e("s_cmp_eq_u32 s%d, 1" % sRING)
    e("s_cbranch_scc1 L_pvring")
    if KEEPV:
        e("s_cmp_eq_u32 s%d, 2" % sLKM)
        e("s_cbranch_scc1 L_pvn")
    e("s_cmp_eq_u32 s%d, 1" % sLKM)
    e("s_cbranch_scc0 L_pvstd")
    if not EARLY1:
        e("s_cmp_eq_u32 s%d, 1" % sINV)
        e("s_cbranch_scc1 L_pvc")
    g.lab("L_pvstd")
    nwl = g.newlab("L_nowl")
    e("s_cmp_eq_u32 s%d, 1" % sLAX)
    e("s_cbranch_scc0 %s" % nwl)
    w2l = g.newlab("L_w2l"); w3l = g.newlab("L_w3l")
    e("s_cmp_eq_u32 s%d, 2" % sROLE); e("s_cbranch_scc1 %s" % w2l)
    e("s_cmp_eq_u32 s%d, 3" % sROLE); e("s_cbranch_scc1 %s" % w3l)
    if not OPT.get("nopvw"):
        e("s_branch L_pvw")
    e("s_lshl_b32 s44, s%d, 9" % sKS)
    e("s_lshl_b32 s45, s%d, 7" % sGRP)
    gemv64_wload(16, 1280, 44, 45, vT=48)
    e("s_branch %s" % nwl)
    g.lab(w2l)
    gemv64_wload(20, 3456, None, sGRP, vT=48)
    e("s_branch %s" % nwl)
    g.lab(w3l)
    s3_wload(vT=48)
    g.lab(nwl)
    e("s_cmp_eq_u32 s%d, 1" % sLAX)
    e("s_cselect_b64 vcc, -1, 0")
    e("s_mov_b32 s%d, 0" % sLAX)
    for i in range(8):
        e("v_mov_b32 v%d, 0" % (vACC + i))
    def ands(t):
        b = vA + 2 * (t % 3); T, u = t // 4, t % 4
        e("v_and_b32_dpp v%d, v%d, v%d row_newbcast:%d row_mask:0xf bank_mask:0xf" % (b, vS + T, vM01, BC * u))
        e("v_and_b32_dpp v%d, v%d, v%d row_newbcast:%d row_mask:0xf bank_mask:0xf" % (b + 1, vS + T, vM23, BC * u))
    e("s_bitcmp1_b32 s%d, 0" % sINV)
    ands(0)
    for t in range(64):
        if t + 1 < 64:
            ands(t + 1)
        else:
            g.nop(2)
        if t % 4 == 0:
            lab = g.newlab("L_nw")
            e("s_cbranch_scc1 %s" % lab)
            if 60 - t + NWMIN < 63:
                e("s_waitcnt vmcnt(%d)" % (60 - t + NWMIN))
            e("s_cbranch_vccnz %s" % lab)
            e("s_waitcnt vmcnt(%d)" % (60 - t))
            g.lab(lab)
        b = vA + 2 * (t % 3)
        e("v_mfma_f32_4x4x4_16b_bf16 v[%d:%d], v[%d:%d], a[%d:%d], v[%d:%d]" % (vACC, vACC + 3, b, b + 1, 4 * t, 4 * t + 1, vACC, vACC + 3))
        e("v_mfma_f32_4x4x4_16b_bf16 v[%d:%d], v[%d:%d], a[%d:%d], v[%d:%d]" % (vACC + 4, vACC + 7, b, b + 1, 4 * t + 2, 4 * t + 3, vACC + 4, vACC + 7))
    g.lab("L_pvdone")
    g.nop(5)
    for i in range(4):
        e("v_permlane32_swap_b32 v%d, v%d" % (vACC + i, vACC + 4 + i))
    for i in range(4):
        e("v_add_f32 v%d, v%d, v%d" % (vACC + i, vACC + i, vACC + 4 + i))
    g.nop(1)
    e("v_permlane16_swap_b32 v%d, v%d" % (vACC, vACC + 1))
    e("v_permlane16_swap_b32 v%d, v%d" % (vACC + 2, vACC + 3))
    e("v_add_f32 v%d, v%d, v%d" % (vACC, vACC, vACC + 1))
    e("v_add_f32 v%d, v%d, v%d" % (vACC + 2, vACC + 2, vACC + 3))
    e("s_mul_i32 s%d, s%d, %d" % (sT, sPAR, COMB_ST)); e("s_add_u32 s%d, s%d, %d" % (sT, sT, COMB))
    e("s_xor_b32 s%d, s%d, 1" % (sPAR, sPAR))
    e("s_lshl_b32 s%d, s%d, 9" % (sT + 1, sW)); e("s_add_u32 s%d, s%d, s%d" % (sT + 1, sT + 1, sT))
    e("v_and_b32 v%d, 15, v0" % t1); e("v_lshlrev_b32 v%d, 5, v%d" % (t1, t1))
    e("v_lshrrev_b32 v%d, 5, v0" % (vT + 3)); e("v_lshl_add_u32 v%d, v%d, 4, v%d" % (t1, vT + 3, t1))
    e("v_bfe_u32 v%d, v0, 4, 1" % (vT + 3)); e("v_lshl_add_u32 v%d, v%d, 2, v%d" % (t1, vT + 3, t1))
    e("v_add_u32 v%d, s%d, v%d" % (t1, sT + 1, t1))
    e("ds_write2_b32 v%d, v%d, v%d offset0:0 offset1:2" % (t1, vACC, vACC + 2))
    e("s_lshl_b32 s%d, s%d, 3" % (sT + 1, sW)); e("s_add_u32 s%d, s%d, s%d" % (sT + 1, sT + 1, sT))
    e("v_mov_b32 v%d, s%d" % (t1, sT + 1))
    e("v_mov_b32 v%d, v%d" % (vT + 4, m)); e("v_mov_b32 v%d, v%d" % (vT + 5, l))
    e("s_mov_b64 exec, 1")
    e("ds_write_b64 v%d, v[%d:%d] offset:2048" % (t1, vT + 4, vT + 5))
    e("s_mov_b64 exec, -1")
    e("s_waitcnt lgkmcnt(0)")
    e("s_barrier")
    nw = g.newlab("L_npub")
    e("s_cmp_lg_u32 s%d, 0" % sW)
    e("s_cbranch_scc1 %s" % nw)
    e("v_and_b32 v%d, 31, v0" % t1); e("v_lshlrev_b32 v%d, 4, v%d" % (t1, t1)); e("v_add_u32 v%d, s%d, v%d" % (t1, sT, t1))
    for w in range(4):
        e("ds_read_b128 v[%d:%d], v%d offset:%d" % (16 + 4 * w, 19 + 4 * w, t1, w * 512))
    e("v_mov_b32 v%d, s%d" % (vT + 3, sT))
    e("ds_read_b128 v[40:43], v%d offset:2048" % (vT + 3))
    e("ds_read_b128 v[44:47], v%d offset:2064" % (vT + 3))
    e("s_waitcnt lgkmcnt(0)")
    e("v_max_f32 v32, v40, v42"); e("v_max3_f32 v32, v32, v44, v46")
    for w, r in enumerate((40, 42, 44, 46)):
        e("v_sub_f32 v%d, v%d, v32" % (r, r))
    for r in (40, 42, 44, 46):
        e("v_exp_f32 v%d, v%d" % (r, r))
    e("s_nop 0")
    for d in range(4): e("v_mul_f32 v%d, v%d, v40" % (36 + d, 16 + d))
    e("v_mul_f32 v33, v41, v40")
    for w, r in ((1, 42), (2, 44), (3, 46)):
        for d in range(4): e("v_fmac_f32 v%d, v%d, v%d" % (36 + d, 16 + 4 * w + d, r))
        e("v_fmac_f32 v33, v%d, v%d" % (r + 1, r))
    e("s_mul_i32 s%d, s%d, %d" % (sT, sINV, OA_ST))
    e("s_lshl_b32 s%d, s%d, 12" % (sT + 1, sH)); e("s_add_u32 s%d, s%d, s%d" % (sT, sT, sT + 1))
    e("s_lshl_b32 s%d, s%d, 9" % (sT + 1, sS)); e("s_add_u32 s%d, s%d, s%d" % (sT, sT, sT + 1))
    e("v_lshlrev_b32 v%d, 4, v0" % t1); e("v_add_u32 v%d, s%d, v%d" % (t1, sT, t1))
    e("s_mov_b32 exec_hi, 0")
    e("global_store_dwordx4 v%d, v[36:39], s[%d:%d] sc1" % (t1, sWS, sWS + 1))
    e("s_mov_b64 exec, -1")
    e("s_mul_i32 s%d, s%d, %d" % (sT, sINV, ML_ST)); e("s_add_u32 s%d, s%d, %d" % (sT, sT, WS_ML))
    e("s_lshl_b32 s%d, s%d, 6" % (sT + 1, sH)); e("s_add_u32 s%d, s%d, s%d" % (sT, sT, sT + 1))
    e("s_and_b32 s%d, s%d, 1" % (sT + 1, sS)); e("s_lshl_b32 s%d, s%d, 5" % (sT + 1, sT + 1)); e("s_add_u32 s%d, s%d, s%d" % (sT, sT, sT + 1))
    e("s_lshr_b32 s%d, s%d, 1" % (sT + 1, sS)); e("s_lshl_b32 s%d, s%d, 3" % (sT + 1, sT + 1)); e("s_add_u32 s%d, s%d, s%d" % (sT, sT, sT + 1))
    e("v_mov_b32 v%d, s%d" % (t1, sT))
    e("s_mov_b64 exec, 1")
    e("global_store_dwordx2 v%d, v[32:33], s[%d:%d] sc1" % (t1, sWS, sWS + 1))
    e("s_mov_b64 exec, -1")
    g.lab(nw)
    ts_dyn(16)
    e("s_cmp_eq_u32 s%d, 0" % sCLS)
    e("s_cbranch_scc0 L_disp")
    e("s_cmp_eq_u32 s%d, 1" % sINV)
    e("s_cbranch_scc1 L_mid2")
    if (not OPT.get("wearly")):
        e("s_cmp_eq_u32 s%d, 0" % sINV)
        e("s_cbranch_scc1 L_wload")
    e("s_branch L_disp")

def s1_block():
    g.lab("L_s1")
    nwo = g.newlab("L_nwo")
    e("s_cmp_eq_u32 s%d, 2" % sCLS); e("s_cbranch_scc0 %s" % nwo)
    e("s_lshl_b32 s44, s%d, 9" % sKS)
    e("s_lshl_b32 s45, s%d, 7" % sGRP)
    gemv64_wload(16, 1280, 44, 45, vT=48)
    g.lab(nwo)
    s1_consts()
    e("s_mul_i32 s%d, s%d, %d" % (sT, sINV, OA_ST)); e("v_add_u32 v50, s%d, v%d" % (sT, vRA))
    e("s_mul_i32 s%d, s%d, %d" % (sT, sINV, ML_ST)); e("s_add_u32 s%d, s%d, %d" % (sT, sT, WS_ML)); e("v_add_u32 v51, s%d, v%d" % (sT, vRB))
    def issue():
        for i in range(4):
            e("global_load_dwordx4 v[%d:%d], v50, s[%d:%d] offset:%d sc1" % (16 + 4 * i, 19 + 4 * i, sWS, sWS + 1, i * 1024))
        e("global_load_dwordx4 v[32:35], v51, s[%d:%d] sc1" % (sWS, sWS + 1))
        e("global_load_dwordx4 v[36:39], v51, s[%d:%d] offset:16 sc1" % (sWS, sWS + 1))
    if OPT.get("s1dma"):
        SO = LP + 65536; SM = LM + 0x2800
        PS = int(OPT.get("pps", 2))
        e("s_lshl_b32 s42, s%d, 12" % sW); e("s_add_u32 s42, s42, %d" % SO)
        e("s_lshl_b32 s43, s%d, 6" % sW); e("s_add_u32 s43, s43, %d" % SM)
        for i in range(1, 4): e("v_add_u32 v%d, %d, v50" % (51 + i, i * 1024))
        e("v_lshrrev_b32 v55, 5, v0"); e("v_lshlrev_b32 v55, 5, v55")
        e("v_sub_u32 v51, v51, v55")
        e("v_and_b32 v56, 3, v0"); e("v_lshl_add_u32 v51, v56, 4, v51")
        e("v_add_u32 v55, s43, v55")
        e("v_lshlrev_b32 v56, 4, v0"); e("v_add_u32 v56, s42, v56")
        def dissue():
            for i in range(4):
                e("s_add_u32 m0, s42, %d" % (i * 1024))
                e("s_nop 0")
                e("global_load_lds_dwordx4 v%d, s[%d:%d] sc1" % (50 if i == 0 else 51 + i, sWS, sWS + 1))
            e("s_mov_b32 m0, s43")
            e("s_mov_b64 exec, 15")
            e("global_load_lds_dwordx4 v51, s[%d:%d] sc1" % (sWS, sWS + 1))
            e("s_mov_b64 exec, -1")
        top = g.newlab("L_dp"); again = g.newlab("L_da"); done = g.newlab("L_dd"); chk = g.newlab("L_dc")
        e("s_mov_b32 s%d, 0" % sSPIN)
        dissue()
        e("s_waitcnt vmcnt(0)")
        e("s_branch %s" % chk)
        g.lab(top)
        e("s_waitcnt vmcnt(25)")
        dissue()
        g.lab(chk)
        for i in range(4):
            e("ds_read_b128 v[%d:%d], v56 offset:%d" % (16 + 4 * i, 19 + 4 * i, i * 1024))
        e("ds_read_b128 v[32:35], v55"); e("ds_read_b128 v[36:39], v55 offset:16")
        e("s_waitcnt lgkmcnt(0)")
        sentinel_check(list(range(16, 40)), again, vT)
        e("s_branch %s" % done)
        g.lab(again)
        e("s_add_u32 s%d, s%d, 1" % (sSPIN, sSPIN))
        e("s_cmp_ge_u32 s%d, %d" % (sSPIN, SPIN * 4))
        e("s_cbranch_scc1 %s" % done)
        e("s_and_b32 s%d, s%d, %d" % (sT, sSPIN, PS - 1))
        e("s_cmp_eq_u32 s%d, 0" % sT)
        e("s_cbranch_scc1 %s" % top)
        e("s_branch %s" % chk)
        g.lab(done)
    else:
        poll(issue, list(range(16, 40)), vT)
    ts_dyn(8)
    if OPT.get("gate"):
        ng = g.newlab("L_nogo")
        e("s_cmp_eq_u32 s%d, 0" % sINV); e("s_cbranch_scc0 %s" % ng)
        e("s_cmp_eq_u32 s%d, 0" % sGRP); e("s_cbranch_scc0 %s" % ng)
        e("s_lshl_b32 s%d, s%d, 2" % (sT, sKS)); e("s_add_u32 s%d, s%d, s%d" % (sT, sT, sW)); e("s_lshl_b32 s%d, s%d, 4" % (sT, sT))
        e("s_add_u32 s%d, s%d, %d" % (sT, sT, WS_GO))
        e("v_mov_b32 v48, s%d" % sT)
        for i in range(4): e("v_mov_b32 v%d, 0" % (52 + i))
        e("s_mov_b64 exec, 1")
        e("global_store_dwordx4 v48, v[52:55], s[%d:%d] sc1" % (sWS, sWS + 1))
        e("s_mov_b64 exec, -1")
        g.lab(ng)
    e("v_max_f32 v40, v32, v34"); e("v_max3_f32 v40, v40, v36, v38")
    e("v_mov_b32 v41, v40"); g.nop(2)
    e("v_permlane32_swap_b32 v40, v41"); e("v_max_f32 v40, v40, v41")
    for r in (32, 34, 36, 38): e("v_sub_f32 v%d, v%d, v40" % (r, r))
    for r in (32, 34, 36, 38): e("v_exp_f32 v%d, v%d" % (r, r))
    e("s_nop 0")
    e("v_mul_f32 v42, v33, v32")
    for r in (34, 36, 38): e("v_fmac_f32 v42, v%d, v%d" % (r + 1, r))
    for d in range(4): e("v_mul_f32 v%d, v%d, v32" % (44 + d, 16 + d))
    for i, r in ((1, 34), (2, 36), (3, 38)):
        for d in range(4): e("v_fmac_f32 v%d, v%d, v%d" % (44 + d, 16 + 4 * i + d, r))
    e("v_mov_b32 v43, v42"); g.nop(2)
    e("v_permlane32_swap_b32 v42, v43")
    e("v_permlane32_swap_b32 v44, v45")
    e("v_permlane32_swap_b32 v46, v47")
    e("v_add_f32 v42, v42, v43"); e("v_add_f32 v44, v44, v45"); e("v_add_f32 v46, v46, v47")
    e("v_rcp_f32 v42, v42"); e("s_nop 0")
    e("v_mul_f32 v44, v44, v42"); e("v_mul_f32 v46, v46, v42")
    e("v_cvt_pk_bf16_f32 v44, v44, v44"); e("v_cvt_pk_bf16_f32 v46, v46, v46")
    e("ds_write2_b32 v%d, v44, v46 offset0:0 offset1:2" % vPW)
    e("s_waitcnt lgkmcnt(0)")
    gemv64(16)
    e("s_waitcnt lgkmcnt(0)")
    e("s_barrier")
    ts_dyn(16)
    lab = g.newlab("L_s1w")
    e("s_cmp_lg_u32 s%d, 0" % sW); e("s_cbranch_scc1 %s" % lab)
    final_col_sum(30, False)
    e("s_mul_i32 s%d, s%d, %d" % (sT, sINV, PB_ST)); e("s_add_u32 s%d, s%d, %d" % (sT, sT, WS_PB))
    e("s_mul_i32 s%d, s%d, 2560" % (sT + 1, sKS)); e("s_add_u32 s%d, s%d, s%d" % (sT, sT, sT + 1))
    e("s_lshl_b32 s%d, s%d, 8" % (sT + 1, sGRP)); e("s_add_u32 s%d, s%d, s%d" % (sT, sT, sT + 1))
    e("v_add_u32 v%d, s%d, v%d" % (vT, sT, vT))
    for q in range(4):
        e("v_mov_b32_dpp v%d, v30 quad_perm:[%d,%d,%d,%d] row_mask:0xf bank_mask:0xf" % (32 + q, q, q, q, q))
    e("s_mov_b32 exec_lo, 0x11111111"); e("s_mov_b32 exec_hi, 0x11111111")
    e("global_store_dwordx4 v%d, v[32:35], s[%d:%d] sc1" % (vT, sWS, sWS + 1))
    e("s_mov_b64 exec, -1")
    g.lab(lab)
    nr = g.newlab("L_s1nr")
    e("s_cmp_eq_u32 s%d, 1" % sHAS4); e("s_cbranch_scc0 %s" % nr)
    e("s_cmp_lt_u32 s%d, %d" % (sINV, 3 if SN else 2)); e("s_cbranch_scc0 %s" % nr)
    e("s_lshl_b32 s45, s%d, 7" % sJ)
    gemv64_wload(20, 8192, None, 45, vT=16, srd=sWQ)
    g.lab(nr)
    e("s_barrier")
    e("s_branch L_disp")

def s2_block():
    g.lab("L_s2")
    nc = g.newlab("L_s2nc")
    e("s_cmp_lg_u32 s%d, 0" % sINV); e("s_cbranch_scc1 %s" % nc)
    ts(24)
    e("s_waitcnt vmcnt(0)")
    ts(25)
    colsum(20)
    ts(26)
    g.lab(nc)
    e("s_mul_i32 s%d, s%d, %d" % (sT, sINV, PB_ST)); e("s_add_u32 s%d, s%d, %d" % (sT, sT, WS_PB))
    e("v_add_u32 v52, s%d, v%d" % (sT, vRA))
    for k in range(1, 4): e("v_add_u32 v%d, %d, v52" % (52 + k, 5120 * k))
    odd = g.newlab("L_s2odd"); got = g.newlab("L_s2got")
    e("s_and_b32 s%d, s%d, 1" % (sT, sINV)); e("s_cmp_eq_u32 s%d, 1" % sT); e("s_cbranch_scc1 %s" % odd)
    e("s_lshr_b32 s%d, s%d, 1" % (sT, sINV)); e("s_mul_i32 s%d, s%d, 1280" % (sT, sT))
    e("v_add_u32 v50, s%d, v%d" % (sT, vRB))
    e("global_load_dwordx2 v[48:49], v50, s[%d:%d]" % (sX, sX + 1))
    e("s_branch %s" % got)
    g.lab(odd)
    e("s_sub_u32 s%d, s%d, 1" % (sT, sINV)); e("s_mul_i32 s%d, s%d, %d" % (sT, sT, X2_ST)); e("s_add_u32 s%d, s%d, %d" % (sT, sT, WS_X2))
    x2_replica()
    e("v_add_u32 v50, s%d, v%d" % (sT, vRB))
    poll(lambda: e("global_load_dwordx2 v[48:49], v50, s[%d:%d] sc1" % (sWS, sWS + 1)), [48, 49], vT)
    g.lab(got)
    def issue():
        for ks in range(8):
            e("global_load_dwordx4 v[%d:%d], v%d, s[%d:%d] offset:%d sc1" % (16 + 4 * ks, 19 + 4 * ks, 52 + ks // 2, sWS, sWS + 1, (ks % 2) * 2560))
    poll(issue, list(range(16, 48)), vT)
    ts_dyn(8)
    for d in range(4):
        e("v_add_f32 v%d, v%d, v%d" % (16 + d, 16 + d, 20 + d)); e("v_add_f32 v%d, v%d, v%d" % (24 + d, 24 + d, 28 + d))
        e("v_add_f32 v%d, v%d, v%d" % (32 + d, 32 + d, 36 + d)); e("v_add_f32 v%d, v%d, v%d" % (40 + d, 40 + d, 44 + d))
    for d in range(4):
        e("v_add_f32 v%d, v%d, v%d" % (16 + d, 16 + d, 24 + d)); e("v_add_f32 v%d, v%d, v%d" % (32 + d, 32 + d, 40 + d))
    for d in range(4):
        e("v_add_f32 v%d, v%d, v%d" % (16 + d, 16 + d, 32 + d))
    for d in range(4): round_bf16(16 + d)
    e("v_lshlrev_b32 v20, 16, v48"); e("v_and_b32 v21, 0xffff0000, v48")
    e("v_lshlrev_b32 v22, 16, v49"); e("v_and_b32 v23, 0xffff0000, v49")
    for d in range(4): e("v_add_f32 v%d, v%d, v%d" % (16 + d, 16 + d, 20 + d))
    for d in range(4): round_bf16(16 + d)
    nx = g.newlab("L_s2nx")
    e("s_cmp_lg_u32 s%d, 0" % sJ); e("s_cbranch_scc1 %s" % nx)
    e("v_cvt_pk_bf16_f32 v20, v16, v17"); e("v_cvt_pk_bf16_f32 v21, v18, v19")
    e("s_mul_i32 s%d, s%d, %d" % (sT, sINV, X1_ST)); e("s_add_u32 s%d, s%d, %d" % (sT, sT, WS_X1))
    e("v_add_u32 v50, s%d, v%d" % (sT, vRB))
    e("global_store_dwordx2 v50, v[20:21], s[%d:%d] sc1" % (sWS, sWS + 1))
    g.lab(nx)
    x_to_p_and_stats(16)
    gemv64(20)
    e("s_waitcnt lgkmcnt(0)")
    e("s_barrier")
    ts_dyn(16)
    lab = g.newlab("L_s2w")
    e("s_cmp_lg_u32 s%d, 0" % sW); e("s_cbranch_scc1 %s" % lab)
    final_col_sum(30, True)
    round_bf16(30)
    e("v_mul_f32 v31, 0xbfb8aa3b, v30")
    e("v_exp_f32 v31, v31"); e("s_nop 0")
    e("v_add_f32 v31, 1.0, v31")
    e("v_rcp_f32 v31, v31"); e("s_nop 0")
    e("v_mul_f32 v30, v30, v31")
    pack8(30, 32)
    e("s_mul_i32 s%d, s%d, %d" % (sT, sINV, H_ST)); e("s_add_u32 s%d, s%d, %d" % (sT, sT, WS_H))
    e("s_lshl_b32 s%d, s%d, 7" % (sT + 1, sJ)); e("s_add_u32 s%d, s%d, s%d" % (sT, sT, sT + 1))
    e("v_lshlrev_b32 v%d, 1, v0" % vT); e("v_add_u32 v%d, s%d, v%d" % (vT, sT, vT))
    exec8()
    e("global_store_dwordx4 v%d, v[32:35], s[%d:%d] sc1" % (vT, sWS, sWS + 1))
    e("s_mov_b64 exec, -1")
    g.lab(lab)
    e("s_barrier")
    e("s_branch L_disp")

def s3_block():
    g.lab("L_s3")
    e("s_mul_i32 s%d, s%d, %d" % (sT, sINV, H_ST)); e("s_add_u32 s%d, s%d, %d" % (sT, sT, WS_H))
    e("v_add_u32 v50, s%d, v%d" % (sT, vRA))
    e("s_mul_i32 s%d, s%d, %d" % (sT, sINV, X1_ST)); e("s_add_u32 s%d, s%d, %d" % (sT, sT, WS_X1))
    e("v_add_u32 v51, s%d, v%d" % (sT, vRB))
    def issue():
        e("global_load_dwordx4 v[4:7], v50, s[%d:%d] sc1" % (sWS, sWS + 1))
        e("global_load_dword v15, v51, s[%d:%d] sc1" % (sWS, sWS + 1))
    fpoll(issue, 2, [4, 5, 6, 7, 15], vT)
    ts_dyn(8)
    for i in range(4):
        e("v_and_b32 v%d, 0xffff, v%d" % (28, 4 + i))
        e("v_lshl_or_b32 v%d, v%d, 16, v%d" % (20 + 2 * i, 28, 28))
        e("v_lshrrev_b32 v%d, 16, v%d" % (28, 4 + i))
        e("v_lshl_or_b32 v%d, v%d, 16, v%d" % (21 + 2 * i, 28, 28))
    e("ds_write_b128 v%d, v[20:23]" % vPW)
    e("ds_write_b128 v%d, v[24:27] offset:16" % vPW)
    e("s_waitcnt lgkmcnt(0)")
    g.lg = []
    NI = 28; NB = 6
    for i in range(NB):
        g.lds("ds_read_b64 v[%d:%d], v%d offset:%d" % (52 + 2 * i, 53 + 2 * i, vRW, i * 512), "W%d" % i)
    for jj in range(7):
        g.lds("ds_read_b128 v[%d:%d], v%d offset:%d" % (16 + 4 * jj, 19 + 4 * jj, vRP, jj * 256), "P%d" % jj)
    for i in range(4): e("v_mov_b32 v%d, 0" % (44 + i))
    def ands(i):
        b = 48 + 2 * (i % 2)
        if i % 4 == 0: g.lwait("P%d" % (i // 4))
        e("v_and_b32 v%d, v%d, v%d" % (b, 16 + i, vM01)); e("v_and_b32 v%d, v%d, v%d" % (b + 1, 16 + i, vM23))
    ands(0)
    for i in range(NI):
        if i + 1 < NI: ands(i + 1)
        else: g.nop(2)
        g.lwait("W%d" % i)
        if i == 0: g.nop(2)
        b = 48 + 2 * (i % 2); wb = 52 + 2 * (i % NB)
        e("v_mfma_f32_4x4x4_16b_bf16 v[44:47], v[%d:%d], v[%d:%d], v[44:47]" % (b, b + 1, wb, wb + 1))
        if i + NB < NI:
            g.lds("ds_read_b64 v[%d:%d], v%d offset:%d" % (wb, wb + 1, vRW, (i + NB) * 512), "W%d" % (i + NB))
    g.lg = []
    g.nop(5)
    e("v_permlane32_swap_b32 v44, v46"); e("v_permlane32_swap_b32 v45, v47")
    e("v_add_f32 v44, v44, v46"); e("v_add_f32 v45, v45, v47")
    g.nop(2)
    e("v_permlane16_swap_b32 v44, v45"); e("v_add_f32 v44, v44, v45")
    g.nop(2)
    e("v_add_f32_dpp v44, v44, v44 row_ror:8 row_mask:0xf bank_mask:0xf"); g.nop(2)
    e("v_add_f32_dpp v44, v44, v44 row_ror:4 row_mask:0xf bank_mask:0xf")
    e("ds_write_b32 v%d, v44" % vRR)
    e("s_waitcnt lgkmcnt(0)")
    e("s_barrier")
    ts_dyn(16)
    lab = g.newlab("L_s3w")
    e("s_cmp_lg_u32 s%d, 0" % sW); e("s_cbranch_scc1 %s" % lab)
    e("v_and_b32 v%d, 15, v0" % vT); e("v_lshlrev_b32 v%d, 2, v%d" % (vT, vT)); e("v_add_u32 v%d, %d, v%d" % (vT, RED, vT))
    e("ds_read2_b32 v[16:17], v%d offset0:0 offset1:16" % vT)
    e("ds_read2_b32 v[18:19], v%d offset0:32 offset1:48" % vT)
    e("s_waitcnt lgkmcnt(0)")
    e("v_add_f32 v16, v16, v17"); e("v_add_f32 v18, v18, v19"); e("v_add_f32 v30, v16, v18")
    round_bf16(30)
    e("v_lshlrev_b32 v16, 16, v15"); e("v_and_b32 v17, 0xffff0000, v15")
    e("v_and_b32 v18, 1, v0"); e("v_cmp_eq_u32 vcc, 1, v18"); e("s_nop 1")
    e("v_cndmask_b32 v16, v16, v17, vcc")
    e("v_add_f32 v30, v30, v16")
    pack8(30, 32)
    odd = g.newlab("L_s3odd"); fin = g.newlab("L_s3fin")
    e("s_mov_b32 exec_lo, 0x0101"); e("s_mov_b32 exec_hi, 0")
    e("s_and_b32 s%d, s%d, 1" % (sT, sINV)); e("s_cmp_eq_u32 s%d, 1" % sT); e("s_cbranch_scc1 %s" % odd)
    e("s_mul_i32 s%d, s%d, %d" % (sT, sINV, X2_ST)); e("s_add_u32 s%d, s%d, %d" % (sT, sT, WS_X2))
    e("v_add_u32 v%d, s%d, v%d" % (vT, sT, vRB))
    e("s_mov_b64 exec, -1")
    e("v_lshrrev_b32 v%d, 4, v0" % (vT + 1)); e("v_mul_u32_u24 v%d, %d, v%d" % (vT + 1, X2R, vT + 1)); e("v_add3_u32 v%d, v%d, s%d, v%d" % (vT, vRB, sT, vT + 1))
    exec8()
    e("global_store_dwordx4 v%d, v[32:35], s[%d:%d] sc1" % (vT, sWS, sWS + 1))
    e("s_branch %s" % fin)
    g.lab(odd)
    e("s_lshr_b32 s%d, s%d, 1" % (sT, sINV)); e("s_mul_i32 s%d, s%d, 1280" % (sT, sT))
    e("v_add_u32 v%d, s%d, v%d" % (vT, sT, vRB))
    e("global_store_dwordx4 v%d, v[32:35], s[%d:%d] sc1" % (vT, sOUT, sOUT + 1))
    g.lab(fin)
    e("s_mov_b64 exec, -1")
    g.lab(lab)
    e("s_barrier")
    e("s_branch L_disp")

def wload_block():
    g.lab("L_wload")
    n2 = g.newlab("L_wl")
    e("s_cmp_eq_u32 s%d, 2" % sROLE); e("s_cbranch_scc0 %s" % n2)
    gemv64_wload(20, 3456, None, sGRP, vT=16)
    e("s_branch L_disp")
    g.lab(n2)
    e("s_cmp_eq_u32 s%d, 3" % sROLE); e("s_cbranch_scc0 L_disp")
    s3_wload(vT=16)
    e("s_branch L_disp")

e("s_mov_b32 s%d, 0" % sLKM)
if not ROT: e("s_mov_b32 s%d, 0" % sBO)
e("s_mov_b32 s%d, 0" % sPH); e("s_mov_b32 s%d, 0" % sINV); e("s_mov_b32 s%d, 0" % sTQ)
if OPT.get("tsstart"): ts(28)
e("s_waitcnt vmcnt(%d)" % (KPRE - KP1))
signal_cleared()
ts(1)
q_initial()
ts(4)
if not ROT: e("s_mov_b32 s%d, %d" % (sOFF, KPRE * 4096))
e("s_branch L_lka_pre")
s4_block()
lka()
lkbv()
mid2()
if not EARLY1: pv_c()
pv_w()
if KEEPV: pv_n()
ring_k()
ring_pv()
att_core()
s1_block(); s2_block(); s3_block()
wload_block()

g.lab("L_lk")
e("s_lshl_b32 s%d, s%d, 7" % (sT, sH)); e("s_add_u32 s%d, s%d, %d" % (sT, sT, WS_FL))
e("v_lshlrev_b32 v%d, 4, v0" % (vT + 2)); e("v_add_u32 v%d, s%d, v%d" % (vT + 2, sT, vT + 2))
e("s_cmp_lt_u32 s%d, %d" % (sH, NSET0 - 128))
e("s_cselect_b32 s%d, 31, 15" % (sT + 2))
e("s_mov_b32 exec_lo, s%d" % (sT + 2)); e("s_mov_b32 exec_hi, 0")
if not OPT.get("noflag"):
    poll(lambda: e("global_load_dword v%d, v%d, s[%d:%d] sc1" % (vT + 3, vT + 2, sWS, sWS + 1)), [vT + 3], vT)
e("s_mov_b64 exec, -1")
e("s_mov_b32 s%d, 0x4000000" % sBO)
e("s_mov_b32 s%d, 2" % sLKM)
if OPT["ts"]:
    e("s_memrealtime s[%d:%d]" % (sCLK, sCLK + 1)); e("s_waitcnt lgkmcnt(0)"); e("s_mov_b32 s%d, s%d" % (sTS + 29, sCLK))
e("s_branch L_lka")

g.lab("L_disp")
ts_dyn(24) if False else None
e("s_and_b32 s%d, s%d, 15" % (sT, sPROG))
e("s_bfe_u32 s%d, s%d, 0x40004" % (sINV, sPROG))
e("s_lshr_b64 s[%d:%d], s[%d:%d], 8" % (sPROG, sPROG + 1, sPROG, sPROG + 1))
if OPT["ts"]:
    e("s_lshl_b32 s%d, s%d, 2" % (sT + 1, sINV))
    e("s_lshr_b32 s%d, 0x6320, s%d" % (sT + 2, sT + 1)); e("s_lshr_b32 s%d, 0x7451, s%d" % (sT + 3, sT + 1))
    e("s_cmp_eq_u32 s%d, %d" % (sT, OP_ATT)); e("s_cselect_b32 s%d, s%d, s%d" % (sPH, sT + 2, sT + 3))
    e("s_cmp_eq_u32 s%d, %d" % (sT, OP_RING)); e("s_cselect_b32 s%d, s%d, s%d" % (sPH, sT + 2, sPH))
    e("s_and_b32 s%d, s%d, 15" % (sPH, sPH))
    e("s_cmp_eq_u32 s%d, %d" % (sT, OP_S4)); e("s_cselect_b32 s%d, 15, s%d" % (sPH, sPH))
for op, lab in ((OP_ATT, "L_att"), (OP_S1, "L_s1"), (OP_S2, "L_s2"), (OP_S3, "L_s3"), (OP_S4, "L_s4"), (OP_RING, "L_ring"), (OP_LK, "L_lk")):
    e("s_cmp_eq_u32 s%d, %d" % (sT, op)); e("s_cbranch_scc1 %s" % lab)
g.lab("L_fin")
if OPT["ts"]:
    lab = g.newlab("L_nots")
    e("s_cmp_lg_u32 s%d, 0" % sW); e("s_cbranch_scc1 %s" % lab)
    e("s_lshl_b32 s%d, s2, 7" % sT); e("s_add_u32 s%d, s%d, %d" % (sT, sT, WS_TS))
    e("v_mov_b32 v%d, s%d" % (vT, sT))
    e("s_mov_b64 exec, 1")
    for i in range(32):
        e("v_mov_b32 v%d, s%d" % (vT + 1, sTS + i))
        e("global_store_dword v%d, v%d, s[%d:%d] offset:%d" % (vT, vT + 1, sWS, sWS + 1, 4 * i))
        e("s_nop 1")
    e("s_mov_b64 exec, -1")
    g.lab(lab)
if OPT.get("dts"):
    lab = g.newlab("L_nodts")
    e("s_memrealtime s[%d:%d]" % (sCLK, sCLK + 1))
    e("s_waitcnt lgkmcnt(0)")
    e("s_cmp_lg_u32 s%d, 0" % sW); e("s_cbranch_scc1 %s" % lab)
    e("v_mov_b32 v%d, 0" % vT)
    e("s_mov_b64 exec, 1")
    e("s_not_b32 s%d, s%d" % (sT, sTS))
    lst = [sT, sTS + 0, sTS + 1, sTS + 16, sTS + 8 + 2, sTS + 16 + 2, sTS + 16 + 3, sTS + 16 + 6, sTS + 16+1, sTS + 16 + 4, sTS + 16 + 7, sCLK]
    if OPT.get("dts2"):
        lst = [sT, sTS + 0, sTS + 5, sTS + 27, sTS + 28, sTS + 1, sTS + 4, sTS + 16, sCLK]
        e("s_sub_u32 s42, s%d, s%d" % (sTS + 27, sTS + 0)); e("s_not_b32 s43, s42")
        e("s_sub_u32 s44, s%d, s%d" % (sTS + 4, sTS + 0)); e("s_not_b32 s45, s44")
        lst = [sT, sTS + 0, sTS + 27, sTS + 4, sTS + 16, sCLK, 42, 43, 44, 45]
        for k, r in enumerate((42, 44)):
            e("v_mov_b32 v%d, s%d" % (vT + 1, r))
            e("global_atomic_add v%d, v%d, s[%d:%d] offset:%d sc1" % (vT, vT + 1, sDBG, sDBG + 1, 48 + 4 * k))
            e("s_nop 1")
    for i, r in enumerate(lst):
        e("v_mov_b32 v%d, s%d" % (vT + 1, r))
        e("global_atomic_umax v%d, v%d, s[%d:%d] offset:%d sc1" % (vT, vT + 1, sDBG, sDBG + 1, 4 + 4 * i))
        e("s_nop 1")
    e("s_mov_b64 exec, -1")
    g.lab(lab)
if OPT.get("s1dma"): e("s_waitcnt vmcnt(0)")
g.lab("L_end")
e("s_endpgm")
e('.section .rodata,"a"')
e(".p2align 6")
e(".amdhsa_kernel %s" % KN)
e("  .amdhsa_next_free_vgpr 512")
e("  .amdhsa_next_free_sgpr 102")
e("  .amdhsa_accum_offset 256")
e("  .amdhsa_group_segment_fixed_size 0")
e("  .amdhsa_kernarg_size 88")
e("  .amdhsa_user_sgpr_count 2")
e("  .amdhsa_user_sgpr_kernarg_segment_ptr 1")
e("  .amdhsa_system_sgpr_workgroup_id_x 1")
e(".end_amdhsa_kernel")
open(sys.argv[1], "w").write(g.text())
```
